```python
import torch

def _softmax(x, axis=-1):
    return torch.softmax(x, dim=axis)
def _gelu(x):
    return torch.nn.functional.gelu(x, approximate="tanh")
def _silu(x):
    return torch.nn.functional.silu(x)
def _sigmoid(x):
    return torch.sigmoid(x)
def _layernorm(x, axis=-1, eps=1e-5):
    m = x.mean(dim=axis, keepdim=True)
    v = x.var(dim=axis, keepdim=True, unbiased=False)
    return (x - m) / torch.sqrt(v + eps)
def _scatter_add(tgt, idx, src, axis=0):
    return tgt.clone().index_add_(axis, idx, src)
def _segment_sum(src, seg, n):
    out = torch.zeros((n,) + src.shape[1:], dtype=src.dtype)
    return out.index_add_(0, seg, src)
def _pad(x, pw):
    flat = tuple(v for pair in reversed(pw) for v in pair)
    return torch.nn.functional.pad(x, flat)

kernel_name = 'concat_heads__gqa_block_cached__mha_block_cached__near_ridge'

def setup_inputs():

    _w = (lambda a: (lambda t: t.to(torch.bfloat16) if t.is_floating_point() else t)(torch.as_tensor(a)))
    def _A_setup():
        B, Sq, D = 8, 96, 640
        Hq, Hkv, Sk, Dh = 32, 32, 96, 128
        assert Hq % Hkv == 0, (Hq, Hkv)
        return {
            "x": _w((lambda *s: torch.randn(*s, dtype=torch.bfloat16) * 0.8)(B, Sq, D)),
            "k_cache": _w((lambda *s: torch.randn(*s, dtype=torch.bfloat16) * 0.8)(B, Hkv, Sk, Dh)),
            "v_cache": _w((lambda *s: torch.randn(*s, dtype=torch.bfloat16) * 0.05)(B, Hkv, Sk, Dh)),
            "wq": _w((lambda *s: torch.randn(*s, dtype=torch.bfloat16) * 0.8)(D, Hq * Dh) * (D ** -0.5)),
            "wo": _w((lambda *s: torch.randn(*s, dtype=torch.bfloat16) * 0.05)(Hq * Dh, D) * ((Hq * Dh) ** -0.5)),
        }
    _A_in = _A_setup()

    def _B_setup():
        B, Sq, D = 8, 96, 640
        H, Sk, Dh = 32, 96, 128
        return {
            "x": _w((lambda *s: torch.randn(*s, dtype=torch.bfloat16) * 0.8)(B, Sq, D)),
            "k_cache": _w((lambda *s: torch.randn(*s, dtype=torch.bfloat16) * 0.8)(B, H, Sk, Dh)),
            "v_cache": _w((lambda *s: torch.randn(*s, dtype=torch.bfloat16) * 0.05)(B, H, Sk, Dh)),
            "wq": _w((lambda *s: torch.randn(*s, dtype=torch.bfloat16) * 0.8)(D, H * Dh) * (D ** -0.5)),
            "wo": _w((lambda *s: torch.randn(*s, dtype=torch.bfloat16) * 0.05)(H * Dh, D) * ((H * Dh) ** -0.5)),
        }
    _B_in = _B_setup()

    return {
        "A_x": _A_in["x"],
        "A_k_cache": _A_in["k_cache"],
        "A_v_cache": _A_in["v_cache"],
        "A_wq": _A_in["wq"],
        "A_wo": _A_in["wo"],
        "B_x": _B_in["x"],
        "B_k_cache": _B_in["k_cache"],
        "B_v_cache": _B_in["v_cache"],
        "B_wq": _B_in["wq"],
        "B_wo": _B_in["wo"],
    }

def reference(A_x, A_k_cache, A_v_cache, A_wq, A_wo, B_x, B_k_cache, B_v_cache, B_wq, B_wo):
    def _A_ref(x, k_cache, v_cache, wq, wo):
        B, Sq, D = x.shape
        Hq, Dh = 32, 128
        Hkv = k_cache.shape[1]
        rep = Hq // Hkv
        q = (lambda x, *d: x.permute(*d))((x @ wq).reshape(B, Sq, Hq, Dh), 0, 2, 1, 3)
        k = (lambda x, n, axis: torch.repeat_interleave(x, n, dim=axis))(k_cache, rep, axis=1)
        v = (lambda x, n, axis: torch.repeat_interleave(x, n, dim=axis))(v_cache, rep, axis=1)
        scores = torch.einsum("bhqd,bhkd->bhqk", q, k) * (Dh ** -0.5)
        p = _softmax(scores, axis=-1)
        o = torch.einsum("bhqk,bhkd->bhqd", p, v)
        return (lambda x, *d: x.permute(*d))(o, 0, 2, 1, 3).reshape(B, Sq, Hq * Dh) @ wo

    def _B_ref(x, k_cache, v_cache, wq, wo):
        B, Sq, D = x.shape
        H, Dh = 32, 128
        q = (lambda x, *d: x.permute(*d))((x @ wq).reshape(B, Sq, H, Dh), 0, 2, 1, 3)
        scores = torch.einsum("bhqd,bhkd->bhqk", q, k_cache) * (Dh ** -0.5)
        p = _softmax(scores, axis=-1)
        o = torch.einsum("bhqk,bhkd->bhqd", p, v_cache)
        return (lambda x, *d: x.permute(*d))(o, 0, 2, 1, 3).reshape(B, Sq, H * Dh) @ wo

    a = _A_ref(A_x, A_k_cache, A_v_cache, A_wq, A_wo)
    b = _B_ref(B_x, B_k_cache, B_v_cache, B_wq, B_wo)
    return torch.concatenate([a, b], axis=-1)
```

```python
NAME = "concat_heads__gqa_block_cached__mha_block_cached__near_ridge"

class Asm:
    def __init__(self):
        self.lines = []
    def __call__(self, s=""):
        for l in s.split("\n"):
            self.lines.append(l)
    def text(self):
        return "\n".join(self.lines) + "\n"

def header(launches):
    out = []
    if len(launches) == 1 and launches[0][0] is None:
        _, g, b, lds = launches[0]
        out.append(f"; @launch grid=({g},1,1) block=({b},1,1) lds={lds}")
    else:
        for lab, g, b, lds in launches:
            out.append(f"; @launch kernel={lab} grid=({g},1,1) block=({b},1,1) lds={lds}")
    out.append('.amdgcn_target "amdgcn-amd-amdhsa--gfx950"')
    out.append(".text")
    return "\n".join(out) + "\n"

def kstart(label):
    return f".globl {label}\n.p2align 8\n.type {label},@function\n{label}:\n"

def kdesc(label, vgpr, sgpr=102, accum=None):
    if accum is None:
        accum = min(256, (vgpr + 3) // 4 * 4)
    return f""".p2align 6
.amdhsa_kernel {label}
  .amdhsa_next_free_vgpr {vgpr}
  .amdhsa_next_free_sgpr {sgpr}
  .amdhsa_accum_offset {accum}
  .amdhsa_group_segment_fixed_size 0
  .amdhsa_kernarg_size 104
  .amdhsa_user_sgpr_count 2
  .amdhsa_user_sgpr_kernarg_segment_ptr 1
  .amdhsa_system_sgpr_workgroup_id_x 1
.end_amdhsa_kernel
"""
RODATA = '.section .rodata,"a"\n'
```

```python
import re

_REG = re.compile(r'^(-|abs\()?([vas])(\d+)\)?$')
_RNG = re.compile(r'^(-)?([vas])\[(\d+):(\d+)\]$')

def regs_of(op):
    op = op.strip()
    m = _REG.match(op)
    if m:
        return [(m.group(2), int(m.group(3)))]
    m = _RNG.match(op)
    if m:
        return [(m.group(2), i) for i in range(int(m.group(3)), int(m.group(4)) + 1)]
    if op == 'vcc':
        return [('s', 'vcc')]
    if op == 'm0':
        return [('s', 'm0')]
    if op == 'exec':
        return [('s', 'exec')]
    return []

def R(kind, lo, n=1):
    return f"{kind}{lo}" if n == 1 else f"{kind}[{lo}:{lo+n-1}]"
def V(lo, n=1): return R('v', lo, n)
def A(lo, n=1): return R('a', lo, n)
def S(lo, n=1): return R('s', lo, n)

TRANS = ('v_exp_f32', 'v_log_f32', 'v_rcp_f32', 'v_rsq_f32', 'v_sqrt_f32')

class E:
    def __init__(self):
        self.lines = []
        self.pos = 0
        self.valu_w = {}
        self.trans_w = {}
        self.mfma_w = {}
        self.mfma_c = {}
        self.store_r = {}
        self.sgpr_valu_w = {}
        self.m0_w = -100
        self.exec_valu_w = -100
        self.lgkm = []
        self.vm = []
        self.smem_pending = False
        self.nops = 0
        self.count = {}
    def raw(self, s):
        self.lines.append(s)
    def comment(self, s):
        self.lines.append("; " + s)
    def label(self, s):
        self.lines.append(s + ":")
    def _nop(self, n):
        while n > 0:
            k = min(n, 16)
            self.lines.append(f"    s_nop {k-1}")
            self.pos += k; self.nops += k
            n -= k
    def _wait(self, vm=None, lgkm=None):
        parts = []
        if vm is not None:
            assert vm <= 63
            parts.append(f"vmcnt({vm})")
            self.vm = self.vm[len(self.vm) - vm:] if vm > 0 else []
        if lgkm is not None:
            lg = min(lgkm, 15)
            parts.append(f"lgkmcnt({lg})")
            self.lgkm = self.lgkm[len(self.lgkm) - lg:] if lg > 0 else []
            if lg == 0:
                self.smem_pending = False
        self.lines.append("    s_waitcnt " + " ".join(parts))
        self.pos += 1
    def _need_vm(self, pred):
        idx = -1
        for i, (tag, rs) in enumerate(self.vm):
            if pred(tag, rs):
                idx = i
        return None if idx < 0 else len(self.vm) - 1 - idx
    def _need_lgkm(self, regs):
        idx = -1
        for i, rs in enumerate(self.lgkm):
            if rs & regs:
                idx = i
        return None if idx < 0 else len(self.lgkm) - 1 - idx
    def wait_vm_tag(self, tags, lgkm=None):
        if not isinstance(tags, (list, tuple, set)):
            tags = [tags]
        n = self._need_vm(lambda t, rs: t in tags)
        if lgkm is not None and len(self.lgkm) <= lgkm and not self.smem_pending:
            lgkm = None
        if n is not None or lgkm is not None:
            self._wait(vm=n, lgkm=lgkm)
    def wait_all(self, vm=True, lgkm=True):
        self._wait(vm=0 if vm else None, lgkm=0 if lgkm else None)
    def wait_lgkm(self, n=0):
        if len(self.lgkm) > n or self.smem_pending:
            self._wait(lgkm=n)
    def settle(self):
        need = 0
        for r, p in self.valu_w.items(): need = max(need, 2 - (self.pos - p - 1))
        for r, (p, ps, k) in self.mfma_w.items(): need = max(need, (8 if ps == 4 else 12) - (self.pos - p - 1))
        for r, p in self.sgpr_valu_w.items(): need = max(need, 5 - (self.pos - p - 1))
        for r, p in self.store_r.items(): need = max(need, 2 - (self.pos - p - 1))
        need = max(need, 1 - (self.pos - self.m0_w - 1))
        if need > 0: self._nop(need)
    def __call__(self, text, tag=None):
        t = text.strip()
        mn, _, rest = t.partition(' ')
        self.count[mn] = self.count.get(mn, 0) + 1
        ops = [o.strip() for o in rest.split(',')] if rest else []
        mods = ''
        if ops:
            newops = []
            for o in ops:
                first, _, m = o.partition(' ')
                newops.append(first); mods += ' ' + m
            ops = newops
        dst, src = [], []
        kind = None
        if mn.startswith('v_mfma'):
            kind = 'mfma'
            dst = regs_of(ops[0]); sa = regs_of(ops[1]); sb = regs_of(ops[2]); sc = regs_of(ops[3])
            src = sa + sb + sc
            passes = 4 if '16x16' in mn else 8
        elif mn.startswith('ds_read'):
            kind = 'dsr'; dst = regs_of(ops[0]); src = regs_of(ops[1])
        elif mn.startswith('ds_write'):
            kind = 'dsw'
            for o in ops: src += regs_of(o)
        elif mn.startswith('buffer_load') or mn.startswith('global_load'):
            kind = 'vml'
            if ' lds' in mods or 'load_lds' in mn:
                for o in ops: src += regs_of(o)
                kind = 'dma'
            else:
                dst = regs_of(ops[0])
                for o in ops[1:]: src += regs_of(o)
        elif mn.startswith('buffer_store') or mn.startswith('global_store'):
            kind = 'vms'
            for o in ops: src += regs_of(o)
            data = regs_of(ops[0]) if mn.startswith('buffer') else regs_of(ops[1])
        elif mn.startswith('buffer_atomic'):
            kind = 'vma'
            for o in ops: src += regs_of(o)
            if 'sc0' in mods: dst = regs_of(ops[0])
        elif mn.startswith('buffer_wbl2') or mn.startswith('buffer_inv'):
            kind = 'vmx'
        elif mn.startswith('v_'):
            kind = 'valu'
            dst = regs_of(ops[0])
            for o in ops[1:]: src += regs_of(o)
            if 'permlane' in mn and 'swap' in mn:
                dst = regs_of(ops[0]) + regs_of(ops[1]); src = list(dst)
            if mn.startswith('v_fmac') or mn.startswith('v_pk_fmac') or mn.startswith('v_writelane'):
                src += dst
            if mn.startswith('v_cndmask') and len(ops) == 3:
                src += regs_of('vcc')
            if '_co_' in mn:
                dst += regs_of(ops[1])
        elif mn.startswith('s_'):
            kind = 'salu'
            if mn.startswith('s_load') or mn.startswith('s_memtime') or mn.startswith('s_memrealtime') or mn.startswith('s_buffer_load'):
                kind = 'smem'
            if mn in ('s_nop',):
                n = int(ops[0]) + 1
                self.lines.append("    " + t); self.pos += n
                return
            if mn == 's_waitcnt':
                raise ValueError("use wait_* helpers")
            if ops and not mn.startswith('s_cmp') and not mn.startswith('s_cbranch') and not mn.startswith('s_branch') and mn not in ('s_setprio', 's_sleep', 's_barrier'):
                dst = regs_of(ops[0])
                for o in ops[1:]: src += regs_of(o)
            else:
                for o in ops: src += regs_of(o)
        else:
            raise ValueError("unknown instr " + t)
        vsrc = set(r for r in src if r[0] in 'va'); vdst = set(r for r in dst if r[0] in 'va')
        ssrc = set(r for r in src if r[0] == 's'); sdst = set(r for r in dst if r[0] == 's')
        touch = vsrc | vdst
        nv = self._need_vm(lambda tg, rs: rs & touch)
        nl = self._need_lgkm(touch)
        if nl is not None and self.smem_pending: nl = 0
        if nv is not None or nl is not None:
            self._wait(vm=nv, lgkm=nl)
        if kind in ('vml', 'dma', 'vms', 'vma', 'vmx') and len(self.vm) >= 63:
            raise ValueError("vmcnt overflow")
        need = 0
        def dist(p): return self.pos - p - 1
        if kind == 'mfma':
            for r in vsrc:
                if r in self.valu_w: need = max(need, 2 - dist(self.valu_w[r]))
            key = (dst[0], len(dst))
            for r in set(sa + sb):
                if r in self.mfma_w:
                    p, ps, k = self.mfma_w[r]; need = max(need, (8 if ps == 4 else 12) - dist(p))
            for r in set(sc):
                if r in self.mfma_w:
                    p, ps, k = self.mfma_w[r]
                    if not (k == (sc[0], len(sc)) and ps == passes):
                        need = max(need, (6 if ps == 4 else 10) - dist(p))
            for r in vdst:
                if r in self.mfma_w and r not in set(sc):
                    p, ps, k = self.mfma_w[r]; need = max(need, (6 if ps == 4 else 10) - dist(p))
            need = max(need, 4 - dist(self.exec_valu_w))
        else:
            for r in touch:
                if r in self.mfma_w:
                    p, ps, k = self.mfma_w[r]; need = max(need, (8 if ps == 4 else 12) - dist(p))
        if kind == 'valu':
            for r in vdst:
                if r in self.mfma_c:
                    p, ps = self.mfma_c[r]; need = max(need, (3 if ps == 4 else 7) - dist(p))
                if r in self.store_r: need = max(need, 2 - dist(self.store_r[r]))
            if mn.split('_e')[0] not in TRANS or True:
                for r in vsrc:
                    if r in self.trans_w and not any(mn.startswith(x) for x in TRANS): need = max(need, 1 - dist(self.trans_w[r]))
            if 'permlane' in mn or 'dpp' in mn or 'row_' in mods or 'quad_perm' in mods:
                for r in vsrc:
                    if r in self.valu_w: need = max(need, 2 - dist(self.valu_w[r]))
            if mn.startswith('v_readfirstlane') or mn.startswith('v_readlane'):
                for r in vsrc:
                    if r in self.valu_w: need = max(need, 1 - dist(self.valu_w[r]))
            for r in ssrc:
                if r in self.sgpr_valu_w: need = max(need, 2 - dist(self.sgpr_valu_w[r]))
        if kind in ('dsr', 'vml'):
            for r in vdst:
                if r in self.store_r: need = max(need, 1 - dist(self.store_r[r]))
                if r in self.mfma_c:
                    p, ps = self.mfma_c[r]; need = max(need, (3 if ps == 4 else 7) - dist(p))
        if kind in ('vml', 'dma', 'vms', 'vma'):
            for r in ssrc:
                if r in self.sgpr_valu_w: need = max(need, 5 - dist(self.sgpr_valu_w[r]))
        if kind in ('salu', 'smem'):
            for r in ssrc:
                if r in self.sgpr_valu_w: need = max(need, 2 - dist(self.sgpr_valu_w[r]))
        if kind == 'dma':
            need = max(need, 1 - dist(self.m0_w))
        if need > 0: self._nop(need)
        self.lines.append("    " + t)
        p = self.pos
        for r in vdst:
            self.valu_w.pop(r, None); self.trans_w.pop(r, None); self.mfma_w.pop(r, None)
        if kind == 'mfma':
            for r in dst: self.mfma_w[r] = (p, passes, (dst[0], len(dst)))
            for r in sc: self.mfma_c[r] = (p, passes)
        elif kind == 'valu':
            for r in vdst:
                self.valu_w[r] = p
                if any(mn.startswith(x) for x in TRANS): self.trans_w[r] = p
            for r in sdst: self.sgpr_valu_w[r] = p
            if mn.startswith('v_cmpx'): self.exec_valu_w = p
        elif kind == 'dsr':
            self.lgkm.append(set(vdst))
        elif kind == 'dsw':
            self.lgkm.append(set())
        elif kind == 'vml':
            self.vm.append((tag, set(vdst)))
        elif kind in ('dma', 'vmx'):
            self.vm.append((tag, set()))
        elif kind == 'vma':
            self.vm.append((tag, set(vdst)))
        elif kind == 'vms':
            self.vm.append((tag, set()))
            if len(data) >= 3:
                for r in data: self.store_r[r] = p
        elif kind == 'smem':
            self.smem_pending = True
        elif kind == 'salu':
            for r in sdst:
                self.sgpr_valu_w.pop(r, None)
                if r == ('s', 'm0'): self.m0_w = p
        self.pos += 1
    def barrier(self):
        self("s_barrier")
    def text(self):
        return "\n".join(self.lines) + "\n"

def interleave(e, mf, fill, per=None, start=0):
    n = len(mf); m = len(fill); done = 0
    for i, s in enumerate(mf):
        e(s)
        if i < start: continue
        if per is None:
            tgt = (m * (i - start + 1) + (n - start) - 1) // (n - start)
        else:
            tgt = min(m, per * (i - start + 1))
        while done < tgt:
            put(e, fill[done]); done += 1
    while done < m:
        put(e, fill[done]); done += 1

def put(e, f):
    if callable(f): f()
    elif isinstance(f, tuple): e(f[0], tag=f[1])
    elif isinstance(f, list):
        for x in f: put(e, x)
    else: e(f)
```

```python
import sys, math, struct
from asmlib import *
from emit import *

def f2u(x): return struct.unpack("<I", struct.pack("<f", x))[0]
SCALE = math.log2(math.e) / math.sqrt(128.0)
WS_O = 0
WS_P = 16 << 20
X_BYTES, KV_BYTES, W_BYTES, OUT_BYTES, WS_BYTES = 983040, 6291456, 5242880, 1966080, 268435456

def srd(e, r, lo, size):
    e(f"s_mov_b32 s{r}, s{lo}"); e(f"s_mov_b32 s{r+1}, s{lo+1}")
    e(f"s_mov_b32 s{r+2}, {size}"); e(f"s_mov_b32 s{r+3}, 0x20000")

def code_prefetch(e, lab, vtmp, vdst, spair):
    e(f"s_getpc_b64 {S(spair,2)}")
    e.label(lab + "_pc")
    e(f"v_lshlrev_b32 v{vtmp}, 7, v0")
    e(f"v_min_u32 v{vtmp}, {lab}_end-{lab}_pc, v{vtmp}")
    e(f"global_load_dword v{vdst}, v{vtmp}, {S(spair,2)}", tag="code")

def load_ptrs(e):
    e("s_load_dwordx16 s[8:23], s[0:1], 0")
    e("s_load_dwordx8 s[24:31], s[0:1], 64")
    e("s_load_dwordx2 s[32:33], s[0:1], 96")

def k1(opt):
    e = E()
    nt_kv = opt.get("nt_kv", ""); nt_w = opt.get("nt_w", ""); nt_x = opt.get("nt_x", ""); st_o = opt.get("st_o", "")
    e("s_cmp_ge_u32 s2, 256"); e("s_cbranch_scc1 L1_end")
    load_ptrs(e)
    code_prefetch(e, "L1", 1, 2, 34)
    e("s_and_b32 s3, s2, 7"); e("s_lshr_b32 s4, s2, 3")
    e("s_lshr_b32 s5, s3, 2")
    e("s_and_b32 s6, s3, 3"); e("s_lshl_b32 s6, s6, 3"); e("s_and_b32 s7, s4, 7"); e("s_add_u32 s6, s6, s7")
    e("s_lshr_b32 s7, s4, 3")
    e("v_lshrrev_b32 v3, 6, v0"); e("v_and_b32 v0, 63, v0"); e("v_readfirstlane_b32 s36, v3")
    WQRA, XRA, WQVO, XVO, KWA, KVO, VVO, KRA = 8, 16, 18, 22, 28, 36, 37, 39
    AF, BF, ACC = 48, 112, 136
    e("v_lshrrev_b32 v3, 4, v0")
    e("v_and_b32 v4, 15, v0")
    e("s_lshl_b32 s37, s36, 4")
    e("v_add_u32 v5, s37, v3")
    e("v_lshlrev_b32 v5, 13, v5")
    for k in range(4):
        e(f"v_or_b32 v6, {(k >> 1) << 2}, v3"); e("v_lshlrev_b32 v6, 1, v6"); e("v_xor_b32 v6, v6, v4")
        e(f"v_lshl_add_u32 v6, v6, 4, v5")
        e(f"v_add_u32 v{WQVO+k}, {4*k*8192 - k*1024}, v6")
    e("v_lshrrev_b32 v5, 3, v0"); e("v_and_b32 v6, 7, v0")
    e("v_xor_b32 v6, v6, v3")
    e("v_mul_u32_u24 v5, 1280, v5")
    e("v_lshl_add_u32 v5, v6, 4, v5")
    e("v_xor_b32 v6, 64, v5")
    for m in range(6):
        e(f"v_add_u32 v{XVO+m}, {8*m*1280 - (m % 3)*1024}, v{5 + (m & 1)}")
    e.wait_lgkm(0)
    e("s_cmp_eq_u32 s5, 0")
    for i in range(4):
        e(f"s_cselect_b64 {S(8+2*i,2)}, {S(8+2*i,2)}, {S(18+2*i,2)}")
    SX, SK, SV, SW, SWS = 40, 44, 48, 52, 56
    srd(e, SX, 8, X_BYTES); srd(e, SW, 14, W_BYTES); srd(e, SK, 10, KV_BYTES); srd(e, SV, 12, KV_BYTES); srd(e, SWS, 32, WS_BYTES)
    e("s_lshl_b32 s60, s7, 2"); e("s_add_u32 s60, s60, s36")
    e(f"s_mul_i32 s61, s60, {48*1280}")
    e("s_lshl_b32 s62, s6, 8")
    e("s_lshl_b32 s63, s36, 12")
    e("s_mul_i32 s64, s36, 24576"); e("s_add_u32 s64, s64, 65536")
    e("s_lshr_b32 s65, s60, 1"); e("s_lshl_b32 s65, s65, 5"); e("s_add_u32 s65, s65, s6"); e("s_mul_i32 s65, s65, 24576")
    e("s_and_b32 s66, s36, 1"); e("s_mul_i32 s66, s66, 12288"); e("s_add_u32 s65, s65, s66")
    e("s_add_u32 s66, s65, 4096"); e("s_add_u32 s67, s65, 8192")

    def dma_chunk(c):
        slot = c % 4
        out = []
        out.append(f"s_add_u32 m0, s63, {slot*16384}")
        if c > 0: out.insert(0, f"s_add_u32 s62, s62, {64*8192}")
        for k in range(4):
            out.append((f"buffer_load_dwordx4 v{WQVO+k}, {S(SW,4)}, s62 offen offset:{k*1024} {nt_w} lds", f"c{c}"))
        for m in range(6):
            if m % 3 == 0:
                out.append(f"s_add_u32 m0, s64, {slot*6144 + (m//3)*3072 - c*128}")
            out.append((f"buffer_load_dwordx4 v{XVO+m}, {S(SX,4)}, s61 offen offset:{(m%3)*1024 + c*128} {nt_x} lds", f"c{c}"))
        return out
    def k_load(n):
        return (f"buffer_load_dwordx4 {A(4*n,4)}, v{KVO}, {S(SK,4)}, s{65 + (n>>2)} offen offset:{(n&3)*1024} {nt_kv}", f"k{n>>2}")
    def v_dma(n):
        out = []
        if n % 4 == 0 or n == 6:
            out.append(f"s_add_u32 m0, s64, {12288 + (n>>2)*4096}")
        out.append((f"buffer_load_dwordx4 v{VVO + (n&1)}, {S(SV,4)}, s{65 + (n>>2)} offen offset:{(n&3)*1024} {nt_kv} lds", "v"))
        return out
    e(f"v_lshlrev_b32 v{KVO}, 4, v0")
    for c in range(4):
        put(e, dma_chunk(c))
        if c >= 2: put(e, k_load(c - 2))
    e("v_bfe_u32 v5, v0, 2, 2"); e("v_and_b32 v6, 1, v3"); e("v_lshl_or_b32 v6, v6, 2, v5")
    e("v_lshl_add_u32 v5, v3, 3, v5"); e("v_lshlrev_b32 v5, 8, v5")
    e("v_and_b32 v7, 3, v0"); e("v_lshl_add_u32 v5, v7, 3, v5")
    for t in range(8):
        e(f"v_xor_b32 v7, {t}, v6"); e(f"v_lshl_add_u32 v{WQRA+t}, v7, 5, v5")
    e("v_lshrrev_b32 v5, 1, v4"); e("v_xor_b32 v5, v5, v3"); e("v_lshlrev_b32 v5, 4, v5")
    e("v_lshl_add_u32 v5, v4, 7, v5"); e(f"v_add_u32 v{XRA}, s64, v5"); e(f"v_xor_b32 v5, 64, v5"); e(f"v_add_u32 v{XRA+1}, s64, v5")
    e("v_and_b32 v5, 1, v4"); e("v_lshlrev_b32 v5, 1, v5"); e("v_xor_b32 v5, v5, v3")
    e("v_and_b32 v6, 12, v4"); e("v_or_b32 v5, v5, v6"); e("v_lshlrev_b32 v5, 4, v5")
    e("v_bfe_u32 v6, v4, 1, 1"); e("v_lshl_add_u32 v5, v6, 3, v5")
    e("v_lshl_add_u32 v5, v3, 8, v5"); e("v_add_u32 v5, s63, v5")
    for nn in range(4):
        for hh in range(2):
            e(f"v_xor_b32 v6, {(nn << 6) | (hh << 4)}, v5"); e(f"v_add_u32 v{KWA + nn*2 + hh}, {nn*1024}, v6")
    e("v_lshlrev_b32 v5, 1, v3"); e("v_xor_b32 v5, v5, v4"); e("v_lshlrev_b32 v5, 4, v5"); e(f"v_lshl_add_u32 v{VVO}, v3, 8, v5")
    e(f"v_xor_b32 v{VVO+1}, 128, v{VVO}")
    e("v_xor_b32 v5, v3, v4"); e("v_lshlrev_b32 v5, 4, v5"); e("v_lshl_add_u32 v5, v4, 8, v5")
    e("s_lshr_b32 s68, s36, 1"); e("s_lshl_b32 s69, s68, 13"); e("v_add_u32 v5, s69, v5")
    for s in range(4):
        e(f"v_xor_b32 v{KRA+s}, {s << 6}, v5")
    e("s_mul_i32 s69, s68, 49152"); e(f"s_add_u32 s69, s69, {65536 + 12288}")
    e("v_lshlrev_b32 v5, 10, v3"); e("v_sub_u32 v43, s69, v5")
    e("s_lshl_b32 s70, s5, 5"); e("s_add_u32 s70, s70, s6"); e("s_mul_i32 s70, s70, 192")
    e("s_mul_i32 s71, s60, 3"); e("s_add_u32 s70, s70, s71"); e("s_lshl_b32 s70, s70, 10")
    if WS_O: e(f"s_add_u32 s70, s70, {WS_O}")
    e(f"s_mov_b32 s72, {f2u(SCALE)}"); e("s_mov_b32 s73, s72")

    def reads(c, kk, st):
        slot = c % 4
        out = []
        rb = [f"ds_read_b128 {V(BF + st*12 + u*4, 4)}, v{XRA+kk} offset:{slot*6144 + u*2048}" for u in range(3)]
        ra = []
        for t in range(8):
            for j in range(2):
                ra.append(f"ds_read_b64_tr_b16 {V(AF + st*32 + t*4 + j*2, 2)}, v{WQRA+t} offset:{slot*16384 + kk*8192 + j*1024}")
        return ra[:2] + rb + ra[2:]
    def mfmas(st, first):
        out = []
        for t in range(8):
            for u in range(3):
                d = V(ACC + (t*3+u)*4, 4)
                out.append(f"v_mfma_f32_16x16x32_bf16 {d}, {V(AF + st*32 + t*4, 4)}, {V(BF + st*12 + u*4, 4)}, {'0' if first else d}")
        return out
    def k_writes(un):
        base = [2, 3, 0][un] * 16384
        out = []
        for nn in range(4):
            n = un*4 + nn
            for hh in range(2):
                out.append(f"ds_write_b64 v{KWA + nn*2 + hh}, {A(4*n + 2*hh, 2)} offset:{base}")
        return out
    e.wait_vm_tag("c0"); e.barrier()
    put(e, reads(0, 0, 0))
    kn = 2
    for c in range(10):
        fill = reads(c, 1, 1)
        interleave(e, mfmas(0, c == 0), fill, per=1)
        if c < 9:
            e.wait_vm_tag(f"c{c+1}", lgkm=0)
        else:
            e.wait_lgkm(0)
        e.barrier()
        fill = []
        if c < 9: fill += reads(c + 1, 0, 0)
        extra = []
        if c + 4 < 10:
            extra += dma_chunk(c + 4)
            for _ in range(2):
                if kn < 12: extra.append(k_load(kn)); kn += 1
        if c == 6: extra += sum([v_dma(n) for n in range(6)], [])
        if c == 7: extra += sum([v_dma(n) for n in range(6, 12)], [])
        if c in (6, 7, 8): extra += k_writes(c - 6)
        if c == 9:
            for T in range(6):
                for s in range(4):
                    off = [2, 3, 0][T % 3] * 16384 + (T // 3) * 4096
                    extra.append(f"ds_read_b128 {A(144 + (T*4+s)*4, 4)}, v{KRA+s} offset:{off}")
        merged = []
        i = j = 0
        while i < len(fill) or j < len(extra):
            if i < len(fill): merged.append(fill[i]); i += 1
            if j < len(extra): merged.append(extra[j]); j += 1
        interleave(e, mfmas(1, False), merged)
    assert kn == 12
    QB, SA, PB = 48, 136, 96
    for t in range(8):
        e(f"v_add_u32 v{WQRA+t}, v43, v{WQRA+t}")
    for s in range(4):
        for u in range(3):
            for jj in range(2):
                a0 = ACC + ((2*s+jj)*3+u)*4
                e(f"v_cvt_pk_bf16_f32 v{QB + (s*3+u)*4 + 2*jj}, v{a0}, v{a0+1}")
                e(f"v_cvt_pk_bf16_f32 v{QB + (s*3+u)*4 + 2*jj + 1}, v{a0+2}, v{a0+3}")
    for s in range(4):
        for T in range(6):
            for u in range(3):
                d = V(SA + (T*3+u)*4, 4)
                e(f"v_mfma_f32_16x16x32_bf16 {d}, {A(144 + (T*4+s)*4, 4)}, {V(QB + (s*3+u)*4, 4)}, {'0' if s == 0 else d}")
    MX, TM = 232, 238
    def sreg(T, u, r): return SA + (T*3+u)*4 + r
    for u in range(3):
        vals = [sreg(T, u, r) for T in range(6) for r in range(4)]
        e(f"v_max3_f32 v{MX+2*u}, v{vals[0]}, v{vals[1]}, v{vals[2]}")
        for i in range(3, 23, 2):
            e(f"v_max3_f32 v{MX+2*u}, v{MX+2*u}, v{vals[i]}, v{vals[i+1]}")
        e(f"v_max_f32 v{MX+2*u}, v{MX+2*u}, v{vals[23]}")
    def xlane(op):
        for sw in ("v_permlane16_swap_b32", "v_permlane32_swap_b32"):
            for u in range(3): e(f"v_mov_b32 v{TM+2*u}, v{MX+2*u}")
            for u in range(3): e(f"{sw} v{TM+2*u}, v{MX+2*u}")
            for u in range(3): e(f"{op} v{MX+2*u}, v{MX+2*u}, v{TM+2*u}")
    xlane("v_max_f32")
    for u in range(3): e(f"v_mul_f32 v{MX+2*u}, s72, v{MX+2*u}")
    for u in range(3):
        for T in range(6):
            for r in (0, 2):
                x = sreg(T, u, r)
                e(f"v_pk_fma_f32 {V(x,2)}, {V(x,2)}, s[72:73], {V(MX+2*u,2)} op_sel_hi:[1,1,0] neg_lo:[0,0,1] neg_hi:[0,0,1]")
            for r in range(4):
                x = sreg(T, u, r)
                e(f"v_exp_f32 v{x}, v{x}")
    for u in range(3):
        prs = [sreg(T, u, r) for T in range(6) for r in (0, 2)]
        e(f"v_pk_add_f32 {V(TM+2*u,2)}, {V(prs[0],2)}, {V(prs[1],2)}")
        for x in prs[2:]:
            e(f"v_pk_add_f32 {V(TM+2*u,2)}, {V(TM+2*u,2)}, {V(x,2)}")
        e(f"v_add_f32 v{MX+2*u}, v{TM+2*u}, v{TM+2*u+1}")
    xlane("v_add_f32")
    for u in range(3): e(f"v_rcp_f32 v{MX+2*u}, v{MX+2*u}")
    for u in range(3):
        for T in range(6):
            for r in (0, 2):
                x = sreg(T, u, r)
                e(f"v_pk_mul_f32 {V(x,2)}, {V(x,2)}, {V(MX+2*u,2)} op_sel_hi:[1,0]")
            for r in (0, 2):
                x = sreg(T, u, r)
                e(f"v_cvt_pk_bf16_f32 v{PB + ((T>>1)*3+u)*4 + (T&1)*2 + (r>>1)}, v{x}, v{x+1}")
    e.wait_vm_tag("v"); e.barrier()
    vreads = []
    for t in range(8):
        for s in range(3):
            for j in range(2):
                uu = 2*s + j
                vreads.append(f"ds_read_b64_tr_b16 {A(48 + (t*3+s)*4 + 2*j, 2)}, v{WQRA+t} offset:{(uu//3)*24576 + (uu%3)*4096}")
    put(e, vreads[:12])
    OB = 48
    rest = vreads[12:]
    def ostore(sp):
        out = []
        for u in range(3):
            for jj in range(2):
                a0 = ACC + ((2*sp+jj)*3+u)*4
                out.append(f"v_cvt_pk_bf16_f32 v{OB + (sp*3+u)*4 + 2*jj}, v{a0}, v{a0+1}")
                out.append(f"v_cvt_pk_bf16_f32 v{OB + (sp*3+u)*4 + 2*jj + 1}, v{a0+2}, v{a0+3}")
            out.append(f"buffer_store_dwordx4 {V(OB + (sp*3+u)*4, 4)}, v{KVO}, {S(SWS,4)}, s70 offen offset:{u*1024} {st_o}")
        out.append(f"s_add_u32 s70, s70, {48*1024}")
        return out
    for sp in range(4):
        mf = []
        for t in (2*sp, 2*sp+1):
            for s in range(3):
                for u in range(3):
                    d = V(ACC + (t*3+u)*4, 4)
                    mf.append(f"v_mfma_f32_16x16x32_bf16 {d}, {A(48 + (t*3+s)*4, 4)}, {V(PB + (s*3+u)*4, 4)}, {'0' if s == 0 else d}")
        fill = rest[sp*12:(sp+1)*12]
        if sp > 0: fill = fill[:6] + ostore(sp - 1) + fill[6:]
        interleave(e, mf, fill)
    put(e, ostore(3))
    e.label("L1_end")
    e("s_endpgm")
    return e

def k2(opt):
    e = E()
    nt_w = opt.get("nt_wo", ""); ld_o = opt.get("ld_o", ""); st_p = opt.get("st_p", "")
    NS = 8; PF = 6
    e("s_cmp_ge_u32 s2, 240"); e("s_cbranch_scc1 L2_end")
    load_ptrs(e)
    code_prefetch(e, "L2", 1, 2, 34)
    e("s_and_b32 s3, s2, 7"); e("s_lshr_b32 s4, s2, 3")
    e("s_lshr_b32 s5, s3, 2"); e("s_and_b32 s6, s3, 3")
    e("s_mul_i32 s7, s4, 52"); e("s_lshr_b32 s7, s7, 8")
    e("s_mul_i32 s37, s7, 5"); e("s_sub_u32 s37, s4, s37")
    e("v_lshrrev_b32 v3, 6, v0"); e("v_and_b32 v0, 63, v0"); e("v_readfirstlane_b32 s36, v3")
    RA, RA2, WVO, LO = 8, 16, 24, 28
    AF, ACC, OF = 32, 96, 0
    NOF = 2 * PF + 4
    e("v_lshrrev_b32 v3, 4, v0"); e("v_and_b32 v4, 15, v0")
    e("s_lshl_b32 s38, s36, 4"); e("v_add_u32 v5, s38, v3"); e("v_mul_u32_u24 v5, 1280, v5")
    for k in range(4):
        e(f"v_or_b32 v6, {(k & 1) << 2}, v3"); e("v_lshlrev_b32 v6, 1, v6"); e("v_xor_b32 v6, v6, v4")
        e(f"v_lshl_add_u32 v6, v6, 4, v5")
        e(f"v_add_u32 v{WVO+k}, {4*k*1280 - k*1024}, v6")
    e(f"v_lshlrev_b32 v{LO}, 4, v0")
    e.wait_lgkm(0)
    e("s_cmp_eq_u32 s5, 0")
    e("s_cselect_b64 s[16:17], s[16:17], s[26:27]")
    SW, SWS = 40, 44
    srd(e, SW, 16, W_BYTES); srd(e, SWS, 32, WS_BYTES)
    e(f"s_mul_i32 s60, s6, {1024*1280}"); e("s_lshl_b32 s61, s37, 8"); e("s_add_u32 s60, s60, s61")
    e("s_lshl_b32 s63, s36, 12")
    e(f"s_mul_i32 s62, s3, {32*49152}"); e("s_lshl_b32 s61, s7, 2"); e("s_add_u32 s61, s61, s36"); e("s_lshl_b32 s61, s61, 11")
    e("s_add_u32 s62, s62, s61")
    if WS_O: e(f"s_add_u32 s62, s62, {WS_O}")
    def loads(c):
        out = []
        if c > 0: out.append(f"s_add_u32 s60, s60, {64*1280}")
        out.append(f"s_add_u32 m0, s63, {(c % NS)*16384}")
        for k in range(4):
            out.append((f"buffer_load_dwordx4 v{WVO+k}, {S(SW,4)}, s60 offen offset:{k*1024} {nt_w} lds", f"c{c}"))
        for kk in range(2):
            ks = 2*c + kk
            if ks > 0: out.append(f"s_add_u32 s62, s62, 49152")
            for u in range(2):
                out.append((f"buffer_load_dwordx4 {A(OF + ((ks % NOF)*2+u)*4, 4)}, v{LO}, {S(SWS,4)}, s62 offen offset:{u*1024} {ld_o}", f"c{c}"))
        return out
    for c in range(PF + 1): put(e, loads(c))
    e("v_bfe_u32 v5, v0, 2, 2"); e("v_and_b32 v6, 1, v3"); e("v_lshl_or_b32 v6, v6, 2, v5")
    e("v_lshl_add_u32 v5, v3, 2, v5"); e("v_lshlrev_b32 v5, 8, v5")
    e("v_and_b32 v7, 3, v0"); e("v_lshl_add_u32 v5, v7, 3, v5")
    for t in range(8):
        e(f"v_xor_b32 v7, {t}, v6"); e(f"v_lshl_add_u32 v{RA+t}, v7, 5, v5"); e(f"v_add_u32 v{RA2+t}, 0x10000, v{RA+t}")
    e("s_lshl_b32 s64, s6, 1"); e("s_add_u32 s64, s64, s5"); e("s_mul_i32 s64, s64, 30"); e("s_add_u32 s64, s64, s4")
    e("s_lshl_b32 s64, s64, 2"); e("s_add_u32 s64, s64, s36"); e("s_lshl_b32 s64, s64, 13"); e(f"s_add_u32 s64, s64, {WS_P}")
    e("s_add_u32 s65, s64, 4096")
    def reads(c, kk, st):
        slot = c % NS
        base = RA if slot < 4 else RA2
        return [f"ds_read_b64_tr_b16 {V(AF + st*32 + t*4 + j*2, 2)}, v{base+t} offset:{(slot & 3)*16384 + kk*8192 + j*4096}" for t in range(8) for j in range(2)]
    def mfmas(ks, st):
        out = []
        for t in range(8):
            for u in range(2):
                d = V(ACC + (t*2+u)*4, 4)
                out.append(f"v_mfma_f32_16x16x32_bf16 {d}, {V(AF + st*32 + t*4, 4)}, {A(OF + ((ks % NOF)*2+u)*4, 4)}, {'0' if ks == 0 else d}")
        return out
    e.wait_vm_tag("c0"); e.barrier()
    put(e, reads(0, 0, 0))
    for c in range(16):
        interleave(e, mfmas(2*c, 0), reads(c, 1, 1), per=2)
        if c < 15:
            e.wait_vm_tag(f"c{c+1}", lgkm=0); e.barrier()
        fill = reads(c + 1, 0, 0) if c < 15 else []
        extra = loads(c + PF + 1) if c + PF + 1 < 16 else []
        interleave(e, mfmas(2*c + 1, 1), fill + extra, per=2)
    PBUF = 32
    for u in range(2):
        for tp in range(4):
            r = PBUF + (u*4+tp)*4
            for jj in range(2):
                a0 = ACC + ((2*tp+jj)*2+u)*4
                e(f"v_cvt_pk_bf16_f32 v{r + 2*jj}, v{a0}, v{a0+1}")
                e(f"v_cvt_pk_bf16_f32 v{r + 2*jj + 1}, v{a0+2}, v{a0+3}")
            e(f"buffer_store_dwordx4 {V(r,4)}, v{LO}, {S(SWS,4)}, s{64+u} offen offset:{tp*1024} {st_p}")
    e.label("L2_end")
    e("s_endpgm")
    return e

def k3(opt):
    e = E()
    e("s_cmp_ge_u32 s2, 480"); e("s_cbranch_scc1 L3_end")
    e("s_load_dwordx2 s[8:9], s[0:1], 80"); e("s_load_dwordx2 s[10:11], s[0:1], 96")
    e("v_lshrrev_b32 v3, 6, v0"); e("v_and_b32 v0, 63, v0"); e("v_readfirstlane_b32 s36, v3")
    e("s_lshl_b32 s4, s2, 2"); e("s_add_u32 s4, s4, s36"); e("s_lshl_b32 s4, s4, 10"); e(f"s_add_u32 s4, s4, {WS_P}")
    e("v_lshlrev_b32 v1, 4, v0")
    e.wait_lgkm(0)
    srd(e, 12, 10, WS_BYTES); srd(e, 16, 8, OUT_BYTES)
    for kp in range(4):
        e(f"buffer_load_dwordx4 {V(8+4*kp,4)}, v1, s[12:15], s4 offen")
        e(f"s_add_u32 s4, s4, {1920*1024}")
    e("s_lshr_b32 s5, s2, 3"); e("s_and_b32 s6, s2, 7")
    e("s_cmp_ge_u32 s5, 30"); e("s_cselect_b32 s7, 1, 0"); e("s_mul_i32 s20, s7, 30"); e("s_sub_u32 s5, s5, s20")
    e("s_mul_i32 s21, s5, 52"); e("s_lshr_b32 s21, s21, 8"); e("s_mul_i32 s22, s21, 5"); e("s_sub_u32 s22, s5, s22")
    e("s_lshl_b32 s21, s21, 3"); e("s_add_u32 s21, s21, s6"); e(f"s_mul_i32 s21, s21, {16*2560}")
    e("s_mul_i32 s7, s7, 1280"); e("s_add_u32 s21, s21, s7"); e("s_lshl_b32 s22, s22, 8"); e("s_add_u32 s21, s21, s22")
    e("s_lshl_b32 s22, s36, 6"); e("s_add_u32 s21, s21, s22")
    e("v_and_b32 v2, 15, v0"); e("v_mul_u32_u24 v2, 2560, v2"); e("v_lshrrev_b32 v3, 4, v0"); e("v_lshl_add_u32 v2, v3, 3, v2")
    for r in range(4):
        e(f"v_lshlrev_b32 v{32+2*r}, 16, v{8+r}"); e(f"v_and_b32 v{33+2*r}, 0xffff0000, v{8+r}")
    for kp in range(1, 4):
        for r in range(4):
            e(f"v_lshlrev_b32 v4, 16, v{8+4*kp+r}"); e(f"v_and_b32 v5, 0xffff0000, v{8+4*kp+r}")
            e(f"v_pk_add_f32 {V(32+2*r,2)}, {V(32+2*r,2)}, v[4:5]")
    for r in range(4):
        e(f"v_cvt_pk_bf16_f32 v{40+r}, v{32+2*r}, v{33+2*r}")
    e("buffer_store_dwordx2 v[40:41], v2, s[16:19], s21 offen")
    e("buffer_store_dwordx2 v[42:43], v2, s[16:19], s21 offen offset:32")
    e.label("L3_end")
    e("s_endpgm")
    return e

def build(opt, fn):
    ks = [("p1_kernel", k1(opt), 256, 163840, 512, 256), ("p2_kernel", k2(opt), 240, 131072, 512, 256), ("p3_kernel", k3(opt), 480, 0, 48, 48)]
    launches = [(n, g, 256, lds) for n, _, g, lds, _, _ in ks]
    order = opt.get("order", [0, 1, 2])
    txt = header([launches[i] for i in order])
    for n, e, *_ in ks:
        txt += kstart(n) + e.text()
    txt += ".fill 8192, 4, 0xbf800000\n" if False else ""
    txt += RODATA
    for n, e, g, lds, vg, ao in ks:
        txt += kdesc(n, vg, 102, ao)
    open(fn, "w").write(txt)
    return ks

if __name__ == "__main__":
    ks = build({}, "v1.s")
    for n, e, *_ in ks: print(n, "nops", e.nops, "instrs", sum(e.count.values()))
```

```python
import sys, math, struct
from asmlib import *
from emit import *

def f2u(x): return struct.unpack("<I", struct.pack("<f", x))[0]
SCALE = math.log2(math.e) / math.sqrt(128.0)
WS_O = 0
WS_P = 16 << 20
WS_F1 = 32 << 20
WS_F2 = 33 << 20
WS_ST = 64 << 20
X_BYTES, KV_BYTES, W_BYTES, OUT_BYTES, WS_BYTES = 983040, 6291456, 5242880, 1966080, 268435456
L_W, L_E, L_X = 0, 49152, 90112
L_K = 24576
def k_unit(T): return 0 if T == 5 else 24576 + T * 8192
L_V = L_X + 24576
L_O = L_V
WO_SLOTS = [2, 0, 6, 1, 3, 4, 5]
SPIN = 1 << 18

def srd(e, r, lo, size):
    e(f"s_mov_b32 s{r}, s{lo}"); e(f"s_mov_b32 s{r+1}, s{lo+1}")
    e(f"s_mov_b32 s{r+2}, {size}"); e(f"s_mov_b32 s{r+3}, 0x20000")

class Fine:
    def __init__(self, e, opt): self.e, self.on, self.n = e, opt.get("fine"), 0
    def __call__(self):
        if not self.on: return
        assert self.n < 32
        self.e("s_memrealtime s[94:95]"); self.e.wait_lgkm(0)
        self.e(f"v_writelane_b32 v1, s94, {self.n}")
        self.n += 1
    def out(self, sws):
        if not self.on: return
        e = self.e
        e.wait_all(); self()
        e("s_lshl_b32 s97, s2, 3"); e("s_add_u32 s97, s97, s36"); e("s_lshl_b32 s97, s97, 8"); e(f"s_add_u32 s97, s97, {WS_ST}")
        e("v_lshlrev_b32 v4, 2, v0")
        e(f"buffer_store_dword v1, v4, {S(sws,4)}, s97 offen")

def merge(a, b):
    out = []; i = j = 0
    while i < len(a) or j < len(b):
        if i < len(a): out.append(a[i]); i += 1
        if j < len(b): out.append(b[j]); j += 1
    return out

SX, SK, SV, SW, SWS, SWO, SOUT, SDBG = 40, 44, 48, 52, 56, 60, 64, 68

def kernel(opt):
    e = E()
    g = opt.get
    nt_kv, nt_w, nt_x, nt_wo = g("nt_kv", "nt"), g("nt_w", ""), g("nt_x", ""), g("nt_wo", "")
    st_o, ld_o, st_p, ld_p, st_out = g("st_o", "sc1"), g("ld_o", "sc1"), g("st_p", "sc1"), g("ld_p", "sc1"), g("st_out", "")
    FS = g("fstride", 64)
    e("s_cmp_ge_u32 s2, 256"); e("s_cbranch_scc1 L_end")
    fs = Fine(e, opt); fs()
    e("s_load_dwordx16 s[8:23], s[0:1], 0")
    e("s_load_dwordx8 s[24:31], s[0:1], 64")
    e("s_load_dwordx2 s[32:33], s[0:1], 96")
    e("s_getpc_b64 s[34:35]")
    e.label("L_pc")
    e("v_lshlrev_b32 v5, 7, v0")
    e("v_min_u32 v5, L_end-L_pc, v5")
    e("global_load_dword v2, v5, s[34:35]", tag="code")
    e("s_and_b32 s3, s2, 7"); e("s_lshr_b32 s4, s2, 3")
    e("s_lshr_b32 s5, s3, 2")
    e("s_and_b32 s38, s3, 3"); e("s_lshl_b32 s6, s38, 3"); e("s_and_b32 s39, s4, 7"); e("s_add_u32 s6, s6, s39")
    e("s_lshr_b32 s7, s4, 3")
    e("v_lshrrev_b32 v3, 6, v0"); e("v_and_b32 v0, 63, v0"); e("v_readfirstlane_b32 s36, v3")
    e("v_lshrrev_b32 v3, 4, v0"); e("v_and_b32 v4, 15, v0")
    e("s_and_b32 s37, s36, 3")
    e("s_lshl_b32 s72, s7, 2"); e("s_add_u32 s72, s72, s37")
    e("s_mul_i32 s73, s4, 52"); e("s_lshr_b32 s73, s73, 8")
    e("s_mul_i32 s74, s73, 5"); e("s_sub_u32 s74, s4, s74")
    e("s_cmp_ge_u32 s36, 4"); e.settle(); e("s_cbranch_scc1 L_loader")
    st0 = (list(e.vm), e.smem_pending)

    WQRA, XRA, KRA, LO, VD = 8, 16, 18, 22, 23
    AF, BF, ACC, SP = 24, 88, 112, 208
    e("v_bfe_u32 v5, v0, 2, 2"); e("v_and_b32 v6, 1, v3"); e("v_lshl_or_b32 v6, v6, 2, v5")
    e("v_lshl_add_u32 v5, v3, 3, v5"); e("v_lshlrev_b32 v5, 8, v5")
    e("v_and_b32 v7, 3, v0"); e("v_lshl_add_u32 v5, v7, 3, v5")
    for t in range(8):
        e(f"v_xor_b32 v7, {t}, v6"); e(f"v_lshl_add_u32 v{WQRA+t}, v7, 5, v5")
    e(f"s_mul_i32 s75, s37, 6144"); e(f"s_add_u32 s75, s75, {L_X}")
    e("v_lshrrev_b32 v5, 1, v4"); e("v_xor_b32 v5, v5, v3"); e("v_lshlrev_b32 v5, 4, v5")
    e("v_lshl_add_u32 v5, v4, 7, v5"); e(f"v_add_u32 v{XRA}, s75, v5"); e(f"v_xor_b32 v5, 64, v5"); e(f"v_add_u32 v{XRA+1}, s75, v5")
    e("v_xor_b32 v5, v3, v4"); e("v_lshlrev_b32 v5, 4, v5"); e("v_lshl_add_u32 v5, v4, 8, v5")
    e("s_lshr_b32 s76, s37, 1"); e("s_lshl_b32 s77, s76, 12"); e(f"s_add_u32 s77, s77, {L_K}"); e("v_add_u32 v5, s77, v5")
    for s in range(4):
        e(f"v_xor_b32 v{KRA+s}, {s << 6}, v5")
    e("s_mul_i32 s77, s76, 24576"); e(f"s_add_u32 s77, s77, {L_V}")
    e("v_lshlrev_b32 v5, 10, v3"); e(f"v_sub_u32 v{VD}, s77, v5")
    e(f"v_lshlrev_b32 v{LO}, 4, v0")
    e("s_lshl_b32 s78, s5, 5"); e("s_add_u32 s78, s78, s6"); e("s_mul_i32 s78, s78, 192")
    e("s_mul_i32 s79, s72, 3"); e("s_add_u32 s78, s78, s79"); e("s_lshl_b32 s78, s78, 10")
    e(f"s_mov_b32 s80, {f2u(SCALE)}"); e("s_mov_b32 s81, s80")
    e("s_lshl_b32 s82, s3, 4"); e("s_add_u32 s82, s82, s72"); e("s_lshl_b32 s82, s82, 3"); e("s_add_u32 s82, s82, s39")
    e(f"s_mul_i32 s82, s82, {FS}"); e(f"s_add_u32 s82, s82, {WS_F1}")
    e("s_lshl_b32 s84, s5, 5"); e("s_add_u32 s84, s84, s4"); e("s_lshl_b32 s84, s84, 2"); e("s_add_u32 s84, s84, s37")
    e("s_lshl_b32 s85, s84, 2")
    e(f"s_mul_i32 s84, s85, {FS}"); e(f"s_add_u32 s84, s84, {WS_F2}")
    e(f"s_mul_i32 s83, s38, {FS}"); e("s_add_u32 s83, s83, s84")
    e.wait_lgkm(0)
    srd(e, SWS, 32, WS_BYTES); srd(e, SOUT, 28, OUT_BYTES); srd(e, SDBG, 30, 256)
    e("v_mov_b32 v5, 0"); e("v_mov_b32 v6, 1")
    e("s_mov_b64 exec, 1")
    e(f"buffer_store_dword v5, v5, {S(SWS,4)}, s82 offen sc1")
    e(f"buffer_store_dword v5, v5, {S(SWS,4)}, s83 offen sc1")
    e("s_mov_b64 exec, -1")
    e.wait_all()
    fs()
    e.barrier()
    e("s_cmp_lg_u32 s36, 0"); e("s_cbranch_scc1 L_noinc")
    e("s_lshl_b32 s86, s3, 5")
    e("s_mov_b64 exec, 1")
    e(f"buffer_atomic_add v6, v5, {S(SDBG,4)}, s86 offen sc1"); e.vm = []
    e("s_mov_b64 exec, -1")
    e.label("L_noinc")
    fs()
    def reads(c, kk, st):
        slot = c % 3
        rb = [f"ds_read_b128 {V(BF + st*12 + u*4, 4)}, v{XRA+kk} offset:{slot*24576 + u*2048}" for u in range(3)]
        ra = [f"ds_read_b64_tr_b16 {V(AF + st*32 + t*4 + j*2, 2)}, v{WQRA+t} offset:{slot*16384 + kk*8192 + j*1024}" for t in range(8) for j in range(2)]
        return ra[:2] + rb + ra[2:]
    def mfmas(st, first):
        out = []
        for t in range(8):
            for u in range(3):
                d = V(ACC + (t*3+u)*4, 4)
                out.append(f"v_mfma_f32_16x16x32_bf16 {d}, {V(AF + st*32 + t*4, 4)}, {V(BF + st*12 + u*4, 4)}, {'0' if first else d}")
        return out
    NKF = 12
    kreads = [f"ds_read_b128 {V(SP + ((T*4+s) % NKF)*4, 4)}, v{KRA+s} offset:{k_unit(T)}" for T in range(6) for s in range(4)]
    put(e, reads(0, 0, 0))
    for c in range(10):
        interleave(e, mfmas(0, c == 0), reads(c, 1, 1), per=1)
        e.wait_lgkm(0); e.barrier()
        if c in (4, 9): fs()
        interleave(e, mfmas(1, False), reads(c + 1, 0, 0) if c < 9 else kreads[:NKF], per=1)
    QB, SA, PB = AF, ACC, 72
    for t in range(8):
        e(f"v_add_u32 v{WQRA+t}, v{VD}, v{WQRA+t}")
    for s in range(4):
        for u in range(3):
            for jj in range(2):
                a0 = ACC + ((2*s+jj)*3+u)*4
                e(f"v_cvt_pk_bf16_f32 v{QB + (s*3+u)*4 + 2*jj}, v{a0}, v{a0+1}")
                e(f"v_cvt_pk_bf16_f32 v{QB + (s*3+u)*4 + 2*jj + 1}, v{a0+2}, v{a0+3}")
    for T in range(6):
        for s in range(4):
            n = T*4 + s
            for u in range(3):
                d = V(SA + (T*3+u)*4, 4)
                e(f"v_mfma_f32_16x16x32_bf16 {d}, {V(SP + (n % NKF)*4, 4)}, {V(QB + (s*3+u)*4, 4)}, {'0' if s == 0 else d}")
            if n + NKF < 24: e(kreads[n + NKF])
    fs()
    MX, TM = 184, 190
    def sreg(T, u, r): return SA + (T*3+u)*4 + r
    for u in range(3):
        vals = [sreg(T, u, r) for T in range(6) for r in range(4)]
        e(f"v_max3_f32 v{MX+2*u}, v{vals[0]}, v{vals[1]}, v{vals[2]}")
        for i in range(3, 23, 2):
            e(f"v_max3_f32 v{MX+2*u}, v{MX+2*u}, v{vals[i]}, v{vals[i+1]}")
        e(f"v_max_f32 v{MX+2*u}, v{MX+2*u}, v{vals[23]}")
    def xlane(op):
        for sw in ("v_permlane16_swap_b32", "v_permlane32_swap_b32"):
            for u in range(3): e(f"v_mov_b32 v{TM+2*u}, v{MX+2*u}")
            for u in range(3): e(f"{sw} v{TM+2*u}, v{MX+2*u}")
            for u in range(3): e(f"{op} v{MX+2*u}, v{MX+2*u}, v{TM+2*u}")
    xlane("v_max_f32")
    for u in range(3): e(f"v_mul_f32 v{MX+2*u}, s80, v{MX+2*u}")
    for u in range(3):
        for T in range(6):
            for r in (0, 2):
                x = sreg(T, u, r)
                e(f"v_pk_fma_f32 {V(x,2)}, {V(x,2)}, s[80:81], {V(MX+2*u,2)} op_sel_hi:[1,1,0] neg_lo:[0,0,1] neg_hi:[0,0,1]")
            for r in range(4):
                x = sreg(T, u, r)
                e(f"v_exp_f32 v{x}, v{x}")
    for u in range(3):
        prs = [sreg(T, u, r) for T in range(6) for r in (0, 2)]
        e(f"v_pk_add_f32 {V(TM+2*u,2)}, {V(prs[0],2)}, {V(prs[1],2)}")
        for x in prs[2:]:
            e(f"v_pk_add_f32 {V(TM+2*u,2)}, {V(TM+2*u,2)}, {V(x,2)}")
        e(f"v_add_f32 v{MX+2*u}, v{TM+2*u}, v{TM+2*u+1}")
    xlane("v_add_f32")
    for u in range(3): e(f"v_rcp_f32 v{MX+2*u}, v{MX+2*u}")
    for u in range(3):
        for T in range(6):
            for r in (0, 2):
                x = sreg(T, u, r)
                e(f"v_pk_mul_f32 {V(x,2)}, {V(x,2)}, {V(MX+2*u,2)} op_sel_hi:[1,0]")
            for r in (0, 2):
                x = sreg(T, u, r)
                e(f"v_cvt_pk_bf16_f32 v{PB + ((T>>1)*3+u)*4 + (T&1)*2 + (r>>1)}, v{x}, v{x+1}")
    fs()
    e.barrier()
    fs()
    def vreads(t):
        return [f"ds_read_b64_tr_b16 {V(SP + (t % 4)*12 + s*4 + 2*j, 2)}, v{WQRA+t} offset:{(2*s+j)*4096}" for s in range(3) for j in range(2)]
    put(e, vreads(0) + vreads(1))
    OB = 24
    def ostore(sp):
        out = []
        for u in range(3):
            for jj in range(2):
                a0 = ACC + ((2*sp+jj)*3+u)*4
                out.append(f"v_cvt_pk_bf16_f32 v{OB + (sp*3+u)*4 + 2*jj}, v{a0}, v{a0+1}")
                out.append(f"v_cvt_pk_bf16_f32 v{OB + (sp*3+u)*4 + 2*jj + 1}, v{a0+2}, v{a0+3}")
            out.append(f"buffer_store_dwordx4 {V(OB + (sp*3+u)*4, 4)}, v{LO}, {S(SWS,4)}, s78 offen offset:{u*1024} {st_o}")
        out.append(f"s_add_u32 s78, s78, {48*1024}")
        return out
    for sp in range(4):
        mf = []
        for t in (2*sp, 2*sp+1):
            for s in range(3):
                for u in range(3):
                    d = V(ACC + (t*3+u)*4, 4)
                    mf.append(f"v_mfma_f32_16x16x32_bf16 {d}, {V(SP + (t % 4)*12 + s*4, 4)}, {V(PB + (s*3+u)*4, 4)}, {'0' if s == 0 else d}")
        fill = (vreads(2*sp+2) + vreads(2*sp+3)) if sp < 3 else []
        if sp > 0: fill = fill[:4] + merge(ostore(sp - 1), fill[4:])
        if sp == 3:
            e.wait_lgkm(0); e.barrier()
        interleave(e, mf, fill)
    put(e, ostore(3))
    fs()
    RA, RA2, ORA = 8, 12, 16
    e("s_and_b32 s86, s37, 1"); e("s_lshl_b32 s86, s86, 2")
    e("v_bfe_u32 v5, v0, 2, 2"); e("v_and_b32 v6, 1, v3"); e("v_lshl_or_b32 v6, v6, 2, v5"); e("v_xor_b32 v6, s86, v6")
    e("v_lshl_add_u32 v5, v3, 2, v5"); e("v_lshlrev_b32 v5, 8, v5")
    e("v_and_b32 v7, 3, v0"); e("v_lshl_add_u32 v5, v7, 3, v5")
    for t in range(4):
        e(f"v_xor_b32 v7, {t}, v6"); e(f"v_lshl_add_u32 v{RA+t}, v7, 5, v5"); e(f"v_add_u32 v{RA2+t}, 0x10000, v{RA+t}")
    e("s_lshl_b32 s86, s76, 12"); e(f"s_add_u32 s86, s86, {L_O}"); e(f"v_add_u32 v{ORA}, s86, v{LO}")
    e("v_mov_b32 v5, 0"); e("v_mov_b32 v6, 1")
    e.wait_all()
    e("s_mov_b64 exec, 1")
    e(f"buffer_store_dword v6, v5, {S(SWS,4)}, s82 offen sc1")
    e("s_mov_b64 exec, -1")
    fs()
    e("s_cmp_ge_u32 s4, 30"); e.settle(); e("s_cbranch_scc1 L_cdone")
    AF2, BF2, AC2 = 24, 56, 112
    def reads2(c, kk, st):
        slot = WO_SLOTS[c % 7]
        base = RA if slot < 4 else RA2
        ra = [f"ds_read_b64_tr_b16 {V(AF2 + st*16 + t*4 + j*2, 2)}, v{base+t} offset:{(slot & 3)*16384 + kk*8192 + j*4096}" for t in range(4) for j in range(2)]
        rb = [f"ds_read_b128 {V(BF2 + st*16 + u*4, 4)}, v{ORA} offset:{(c % 3)*16384 + kk*8192 + u*1024}" for u in range(4)]
        return ra[:2] + rb + ra[2:]
    def mfmas2(st, first):
        out = []
        for t in range(4):
            for u in range(4):
                d = V(AC2 + (t*4+u)*4, 4)
                out.append(f"v_mfma_f32_16x16x32_bf16 {d}, {V(AF2 + st*16 + t*4, 4)}, {V(BF2 + st*16 + u*4, 4)}, {'0' if first else d}")
        return out
    e.barrier()
    fs()
    put(e, reads2(0, 0, 0))
    for c in range(16):
        interleave(e, mfmas2(0, c == 0), reads2(c, 1, 1), per=1)
        if c < 15:
            e.wait_lgkm(0); e.barrier()
        if c == 7: fs()
        interleave(e, mfmas2(1, False), reads2(c + 1, 0, 0) if c < 15 else [], per=1)
    fs()
    PK = 24
    e("s_lshl_b32 s86, s85, 13"); e(f"s_add_u32 s86, s86, {WS_P}")
    e("s_lshl_b32 s87, s38, 11"); e("s_add_u32 s87, s87, s86")
    for u in range(4):
        for tp in range(2):
            r = PK + (u*2+tp)*4
            for jj in range(2):
                a0 = AC2 + ((2*tp+jj)*4+u)*4
                e(f"v_cvt_pk_bf16_f32 v{r + 2*jj}, v{a0}, v{a0+1}")
                e(f"v_cvt_pk_bf16_f32 v{r + 2*jj + 1}, v{a0+2}, v{a0+3}")
        e(f"s_cmp_eq_u32 s38, {u}"); e.settle(); e(f"s_cbranch_scc1 L_own{u}")
        for tp in range(2):
            e(f"buffer_store_dwordx4 {V(PK + (u*2+tp)*4, 4)}, v{LO}, {S(SWS,4)}, s87 offen offset:{tp*1024} {st_p}")
        e(f"s_branch L_sent{u}")
        e.label(f"L_own{u}")
        for t in range(4):
            for r in range(0, 4, 2):
                e(f"v_pk_add_f32 {V(64 + t*4 + r, 2)}, {V(AC2 + (t*4+u)*4 + r, 2)}, 0")
        e.label(f"L_sent{u}")
        e("s_add_u32 s87, s87, 8192")
    e("s_lshl_b32 s88, s73, 3"); e("s_lshl_b32 s89, s76, 2"); e("s_add_u32 s88, s88, s89"); e("s_add_u32 s88, s88, s38")
    e(f"s_mul_i32 s88, s88, {16*2560}"); e("s_mul_i32 s89, s5, 1280"); e("s_add_u32 s88, s88, s89")
    e("s_lshl_b32 s89, s74, 8"); e("s_add_u32 s88, s88, s89"); e("s_and_b32 s89, s37, 1"); e("s_lshl_b32 s89, s89, 7"); e("s_add_u32 s88, s88, s89")
    e("v_mul_u32_u24 v17, 2560, v4"); e("v_lshl_add_u32 v17, v3, 3, v17")
    e("v_and_b32 v7, 3, v0"); e(f"v_mul_u32_u24 v7, {FS}, v7")
    e("s_lshl_b32 s87, s38, 13"); e("s_add_u32 s87, s87, s86")
    e.wait_all()
    e("s_mov_b64 exec, 1")
    e(f"buffer_store_dword v6, v5, {S(SWS,4)}, s83 offen sc1")
    e("s_mov_b64 exec, 15")
    fs()
    e(f"s_mov_b32 s90, {SPIN}")
    e.label("L_poll2")
    e(f"buffer_load_dword v18, v7, {S(SWS,4)}, s84 offen sc1")
    e.wait_all(lgkm=False)
    e("v_cmp_ne_u32 vcc, 1, v18")
    e("s_sub_u32 s90, s90, 1"); e("s_cbranch_scc1 L_got2")
    e("s_nop 1")
    e("s_cbranch_vccnz L_poll2")
    e.label("L_got2")
    e("s_mov_b64 exec, -1")
    fs()
    for i in range(1, 4):
        e(f"s_xor_b32 s89, s38, {i}"); e("s_lshl_b32 s89, s89, 11"); e("s_add_u32 s89, s89, s87")
        for tp in range(2):
            e(f"buffer_load_dwordx4 {V(PK + (i*2+tp)*4, 4)}, v{LO}, {S(SWS,4)}, s89 offen offset:{tp*1024} {ld_p}")
    for i in range(1, 4):
        for tp in range(2):
            for k in range(4):
                src = PK + (i*2+tp)*4 + k; d = 64 + (2*tp + (k >> 1))*4 + (k & 1)*2
                e(f"v_lshlrev_b32 v20, 16, v{src}"); e(f"v_and_b32 v21, 0xffff0000, v{src}")
                e(f"v_pk_add_f32 {V(d,2)}, {V(d,2)}, v[20:21]")
    for t in range(4):
        e(f"v_cvt_pk_bf16_f32 v{80+2*t}, v{64+t*4}, v{65+t*4}"); e(f"v_cvt_pk_bf16_f32 v{81+2*t}, v{66+t*4}, v{67+t*4}")
        e(f"buffer_store_dwordx2 {V(80+2*t,2)}, v17, {S(SOUT,4)}, s88 offen offset:{t*32} {st_out}")
    e.label("L_cdone")
    fs.out(SWS)
    e("s_endpgm")

    e.label("L_loader")
    e.vm, e.smem_pending = list(st0[0]), st0[1]
    e.lgkm = []
    fs.n = 1
    WQVO, XVO, KWA, LO, VVO, WVO, KS = 8, 12, 18, 22, 23, 25, 32
    e("s_lshl_b32 s75, s37, 4")
    e("v_add_u32 v5, s75, v3"); e("v_lshlrev_b32 v5, 13, v5")
    for k in range(4):
        e(f"v_or_b32 v6, {(k >> 1) << 2}, v3"); e("v_lshlrev_b32 v6, 1, v6"); e("v_xor_b32 v6, v6, v4")
        e(f"v_lshl_add_u32 v6, v6, 4, v5")
        e(f"v_add_u32 v{WQVO+k}, {4*k*8192 - k*1024}, v6")
    e("v_lshrrev_b32 v5, 3, v0"); e("v_and_b32 v6, 7, v0"); e("v_xor_b32 v6, v6, v3")
    e("v_mul_u32_u24 v5, 1280, v5"); e("v_lshl_add_u32 v5, v6, 4, v5"); e("v_xor_b32 v6, 64, v5")
    for m in range(6):
        e(f"v_add_u32 v{XVO+m}, {8*m*1280 - (m % 3)*1024}, v{5 + (m & 1)}")
    e(f"v_lshlrev_b32 v{LO}, 4, v0")
    e(f"s_mul_i32 s76, s72, {48*1280}")
    e("s_lshl_b32 s77, s6, 8")
    e("s_lshl_b32 s78, s37, 12")
    e("s_mul_i32 s79, s37, 6144"); e(f"s_add_u32 s79, s79, {L_X}")
    rot1 = g("rot1", 2)
    if rot1 == 2:
        e("s_xor_b32 s80, s39, s7"); e("s_and_b32 s80, s80, 1"); e("s_mul_i32 s80, s80, 5")
    elif rot1 == 3:
        e("s_add_u32 s80, s39, s7"); e("s_mul_i32 s81, s80, 86"); e("s_lshr_b32 s81, s81, 8"); e("s_mul_i32 s81, s81, 3"); e("s_sub_u32 s80, s80, s81")
        e("s_mul_i32 s80, s80, 7"); e("s_lshr_b32 s80, s80, 1")
    else:
        e("s_mov_b32 s80, 0")
    e.wait_lgkm(0)
    e("s_cmp_eq_u32 s5, 0")
    for i in range(5):
        e(f"s_cselect_b64 {S(8+2*i,2)}, {S(8+2*i,2)}, {S(18+2*i,2)}")
    srd(e, SW, 14, W_BYTES); srd(e, SX, 8, X_BYTES)
    def dma_chunk(c):
        slot = c % 3
        if c > 0:
            e("s_add_u32 s80, s80, 1"); e("s_cmp_eq_u32 s80, 10"); e("s_cselect_b32 s80, 0, s80")
        e("s_lshl_b32 s81, s80, 19"); e("s_add_u32 s82, s77, s81")
        e(f"s_add_u32 m0, s78, {L_W + slot*16384}")
        e("s_lshl_b32 s81, s80, 7"); e("s_add_u32 s83, s76, s81")
        for k in range(4):
            e(f"buffer_load_dwordx4 v{WQVO+k}, {S(SW,4)}, s82 offen offset:{k*1024} {nt_w} lds", tag=f"c{c}")
        for m in range(6):
            if m % 3 == 0:
                e(f"s_add_u32 m0, s79, {slot*24576 + (m//3)*3072}")
            e(f"buffer_load_dwordx4 v{XVO+m}, {S(SX,4)}, s83 offen offset:{(m%3)*1024} {nt_x} lds", tag=f"c{c}")
    fs()
    dma_chunk(0)
    srd(e, SK, 10, KV_BYTES); srd(e, SV, 12, KV_BYTES); srd(e, SWO, 16, W_BYTES); srd(e, SWS, 32, WS_BYTES); srd(e, SDBG, 30, 256)
    e("s_lshr_b32 s84, s72, 1"); e("s_lshl_b32 s84, s84, 5"); e("s_add_u32 s84, s84, s6"); e("s_mul_i32 s84, s84, 24576")
    e("s_and_b32 s85, s37, 1"); e("s_lshl_b32 s86, s85, 11"); e("s_add_u32 s84, s84, s86")
    e("s_lshl_b32 s87, s7, 6"); e("s_add_u32 s87, s87, s6"); e("s_mul_i32 s87, s87, 24576"); e("s_mul_i32 s86, s37, 6144"); e("s_add_u32 s87, s87, s86")
    kn = [0]
    def k_load(cnt):
        for _ in range(cnt):
            n = kn[0]; kn[0] += 1
            e(f"buffer_load_dwordx4 {V(KS + 4*n, 4)}, v{LO}, {S(SK,4)}, s84 offen offset:{(n&1)*1024} {nt_kv}", tag="k")
            if n & 1: e("s_add_u32 s84, s84, 4096")
    kplan = g("kplan", {0: 2, 1: 3, 2: 2, 3: 3, 4: 2})
    k_load(kplan.get(0, 0))
    dma_chunk(1); k_load(kplan.get(1, 0))
    e("v_and_b32 v5, 1, v4"); e("v_lshlrev_b32 v5, 1, v5"); e("v_xor_b32 v5, v5, v3")
    e("v_and_b32 v6, 12, v4"); e("v_or_b32 v5, v5, v6"); e("v_lshlrev_b32 v5, 4, v5")
    e("v_bfe_u32 v6, v4, 1, 1"); e("v_lshl_add_u32 v5, v6, 3, v5"); e("v_lshl_add_u32 v5, v3, 8, v5")
    e("s_lshl_b32 s86, s85, 7"); e("v_xor_b32 v5, s86, v5")
    e("s_lshl_b32 s86, s37, 11"); e(f"s_add_u32 s86, s86, {L_K}"); e("v_add_u32 v5, s86, v5")
    for nn in range(2):
        for hh in range(2):
            e(f"v_xor_b32 v6, {(nn << 6) | (hh << 4)}, v5"); e(f"v_add_u32 v{KWA + nn*2 + hh}, {nn*1024}, v6")
    e("v_lshlrev_b32 v5, 1, v3"); e("v_xor_b32 v5, v5, v4"); e("v_lshlrev_b32 v5, 4, v5"); e(f"v_lshl_add_u32 v{VVO}, v3, 8, v5")
    e(f"v_xor_b32 v{VVO+1}, 128, v{VVO}")
    e("v_add_u32 v5, s75, v3"); e("v_mul_u32_u24 v5, 1280, v5")
    for k in range(4):
        e(f"v_or_b32 v6, {(k & 1) << 2}, v3"); e("v_lshlrev_b32 v6, 1, v6"); e("v_xor_b32 v6, v6, v4")
        e(f"v_lshl_add_u32 v6, v6, 4, v5")
        e(f"v_add_u32 v{WVO+k}, {4*k*1280 - k*1024}, v6")
    e(f"s_mul_i32 s88, s38, {1024*1280}"); e("s_lshl_b32 s86, s74, 8"); e("s_add_u32 s88, s88, s86")
    e(f"s_mul_i32 s89, s3, {32*49152}"); e("s_lshl_b32 s86, s73, 13"); e("s_add_u32 s89, s89, s86")
    e("s_lshr_b32 s86, s37, 1"); e("s_mul_i32 s86, s86, 49152"); e("s_add_u32 s89, s89, s86")
    e("s_lshl_b32 s86, s85, 12"); e("s_add_u32 s89, s89, s86")
    rot2 = g("rot2", 2)
    if rot2 == 2:
        e("s_xor_b32 s90, s73, s74"); e("s_and_b32 s90, s90, 1"); e("s_lshl_b32 s90, s90, 3")
    elif rot2 == 3:
        e("s_add_u32 s90, s73, s74"); e("s_mul_i32 s91, s90, 86"); e("s_lshr_b32 s91, s91, 8"); e("s_mul_i32 s91, s91, 3"); e("s_sub_u32 s90, s90, s91")
        e("s_mul_i32 s90, s90, 11"); e("s_lshr_b32 s90, s90, 1")
    else:
        e("s_mov_b32 s90, 0")
    e("s_mov_b32 s91, s90")
    def k_write(T):
        for nn in range(2):
            for hh in range(2):
                e(f"ds_write_b64 v{KWA + nn*2 + hh}, {V(KS + 4*(2*T+nn) + 2*hh, 2)} offset:{k_unit(T)}")
    def v_dma(i, lo, hi):
        for n in range(lo, hi):
            if n == lo or n % 4 == 0:
                e(f"s_add_u32 m0, s79, {24576*(1+i) + (n>>2)*4096}")
                e(f"s_add_u32 s86, s87, {i*32*24576 + (n>>2)*4096}")
            e(f"buffer_load_dwordx4 v{VVO + (n&1)}, {S(SV,4)}, s86 offen offset:{(n&3)*1024} {nt_kv} lds", tag="v")
    def wo_dma(c):
        e(f"s_mul_i32 s86, s90, {64*1280}"); e("s_add_u32 s86, s86, s88")
        e(f"s_add_u32 m0, s78, {WO_SLOTS[c % 7]*16384}")
        e("s_add_u32 s90, s90, 1"); e("s_and_b32 s90, s90, 15")
        for k in range(4):
            e(f"buffer_load_dwordx4 v{WVO+k}, {S(SWO,4)}, s86 offen offset:{k*1024} {nt_wo} lds", tag=f"w{c}")
    def o_dma(c):
        e(f"s_mul_i32 s86, s91, {2*49152}"); e("s_add_u32 s86, s86, s89")
        e(f"s_add_u32 m0, s78, {L_O + (c % 3)*16384}")
        e("s_add_u32 s91, s91, 1"); e("s_and_b32 s91, s91, 15")
        for k in range(4):
            e(f"buffer_load_dwordx4 v{LO}, {S(SWS,4)}, s86 offen offset:{k*1024} {ld_o} lds", tag=f"o{c}")
    e.wait_vm_tag("c0"); fs(); e.barrier()
    dma_chunk(2); k_load(kplan.get(2, 0))
    for c in range(10):
        if c < 9: e.wait_vm_tag(f"c{c+1}", lgkm=0)
        e.barrier()
        if c in (4, 9): fs()
        if c + 3 < 10:
            dma_chunk(c + 3); k_load(kplan.get(c + 3, 0))
        if c == 6:
            assert kn[0] == 12
            for T in range(5): k_write(T)
        if c == 7:
            v_dma(0, 0, 6); k_write(5)
        if c == 8:
            v_dma(1, 0, 4)
    v_dma(1, 4, 6)
    e("s_cmp_ge_u32 s4, 30"); e("s_cbranch_scc1 L_lshort")
    stv = list(e.vm)
    for c in range(3): wo_dma(c)
    e.wait_vm_tag("v"); fs(); e.barrier()
    for c in range(3, 7): wo_dma(c)
    e("s_lshl_b32 s92, s73, 3"); e("s_mul_i32 s93, s92, 86"); e("s_lshr_b32 s93, s93, 8")
    e("s_add_u32 s92, s92, 7"); e("s_mul_i32 s92, s92, 86"); e("s_lshr_b32 s92, s92, 8")
    e("v_bfe_u32 v5, v0, 3, 2"); e("v_add_u32 v5, s93, v5"); e("v_min_u32 v5, s92, v5")
    e("v_and_b32 v6, 7, v0"); e("v_lshl_add_u32 v5, v5, 3, v6"); e(f"v_mul_u32_u24 v5, {FS}, v5")
    e(f"s_mul_i32 s93, s3, {128*FS}"); e(f"s_add_u32 s93, s93, {WS_F1}")
    e("v_lshlrev_b32 v6, 5, v6")
    fs(); e.barrier()
    e(f"s_mov_b32 s92, {SPIN}")
    e("s_mov_b64 exec, 0xff")
    e.label("L_poll0")
    e(f"buffer_load_dword v7, v6, {S(SDBG,4)}, 0 offen sc1")
    e.wait_all(lgkm=False)
    e("v_cmp_ne_u32 vcc, 32, v7")
    e("s_sub_u32 s92, s92, 1"); e("s_cbranch_scc1 L_got0")
    e("s_nop 1")
    e("s_cbranch_vccnz L_poll0")
    e.label("L_got0")
    e("s_mov_b64 exec, 0xffffffff")
    fs()
    e(f"s_mov_b32 s92, {SPIN}")
    e.label("L_poll1")
    e(f"buffer_load_dword v7, v5, {S(SWS,4)}, s93 offen sc1")
    e.wait_all(lgkm=False)
    e("v_cmp_ne_u32 vcc, 1, v7")
    e("s_sub_u32 s92, s92, 1"); e("s_cbranch_scc1 L_got1")
    e("s_nop 1")
    e("s_cbranch_vccnz L_poll1")
    e.label("L_got1")
    e("s_mov_b64 exec, -1")
    fs()
    for c in range(3): o_dma(c)
    e.wait_vm_tag("o0"); e.barrier()
    for c in range(15):
        e.wait_vm_tag([f"o{c+1}", f"w{c+1}"]); e.barrier()
        if c + 3 < 16: o_dma(c + 3)
        if c + 7 < 16: wo_dma(c + 7)
    e("s_branch L_ldone")
    e.label("L_lshort")
    e.vm = stv
    e.wait_vm_tag("v"); e.barrier(); e.barrier()
    e.label("L_ldone")
    fs.out(SWS)
    e.label("L_end")
    e("s_endpgm")
    return e

def build(opt, fn):
    K = NAME + "_kernel"
    e = kernel(opt)
    txt = header([(None, 256, 512, 163840)]) + kstart(K) + e.text() + RODATA + kdesc(K, 256, 102, 256)
    open(fn, "w").write(txt)
    return e

if __name__ == "__main__":
    e = build({}, "v2.s")
    print("nops", e.nops, "instrs", sum(e.count.values()))
    build({"fine": 1}, "g0.s")
```

```python
import re

_REG = re.compile(r'^(-|abs\()?([vas])(\d+)\)?$')
_RNG = re.compile(r'^(-)?([vas])\[(\d+):(\d+)\]$')

def regs_of(op):
    op = op.strip()
    m = _REG.match(op)
    if m:
        return [(m.group(2), int(m.group(3)))]
    m = _RNG.match(op)
    if m:
        return [(m.group(2), i) for i in range(int(m.group(3)), int(m.group(4)) + 1)]
    if op == 'vcc':
        return [('s', 'vcc')]
    if op == 'm0':
        return [('s', 'm0')]
    if op == 'exec':
        return [('s', 'exec')]
    return []

def R(kind, lo, n=1):
    return f"{kind}{lo}" if n == 1 else f"{kind}[{lo}:{lo+n-1}]"
def V(lo, n=1): return R('v', lo, n)
def A(lo, n=1): return R('a', lo, n)
def S(lo, n=1): return R('s', lo, n)

TRANS = ('v_exp_f32', 'v_log_f32', 'v_rcp_f32', 'v_rsq_f32', 'v_sqrt_f32')

class E:
    def __init__(self):
        self.lines = []
        self.pos = 0
        self.valu_w = {}
        self.trans_w = {}
        self.mfma_w = {}
        self.mfma_c = {}
        self.store_r = {}
        self.sgpr_valu_w = {}
        self.m0_w = -100
        self.exec_valu_w = -100
        self.lgkm = []
        self.vm = []
        self.smem_pending = False
        self.nops = 0
        self.merge_age = 14
        self.count = {}
    def raw(self, s):
        self.lines.append(s)
    def comment(self, s):
        self.lines.append("; " + s)
    def label(self, s):
        self.lines.append(s + ":")
    def _nop(self, n):
        while n > 0:
            k = min(n, 16)
            self.lines.append(f"    s_nop {k-1}")
            self.pos += k; self.nops += k
            n -= k
    def _wait(self, vm=None, lgkm=None):
        parts = []
        if vm is not None:
            assert vm <= 63
            parts.append(f"vmcnt({vm})")
            self.vm = self.vm[len(self.vm) - vm:] if vm > 0 else []
        if lgkm is not None:
            lg = min(lgkm, 14)
            parts.append(f"lgkmcnt({lg})")
            self.lgkm = self.lgkm[len(self.lgkm) - lg:] if lg > 0 else []
            if lg == 0:
                self.smem_pending = False
        self.lines.append("    s_waitcnt " + " ".join(parts))
        self.pos += 1
    def _need_vm(self, pred):
        idx = -1
        for i, (tag, rs) in enumerate(self.vm):
            if pred(tag, rs):
                idx = i
        return None if idx < 0 else len(self.vm) - 1 - idx
    def _need_lgkm(self, regs):
        idx = -1
        for i, (rs, p) in enumerate(self.lgkm):
            if rs & regs:
                idx = i
        if idx < 0: return None
        while idx + 1 < len(self.lgkm) and self.pos - self.lgkm[idx + 1][1] >= self.merge_age: idx += 1
        return len(self.lgkm) - 1 - idx
    def wait_ds_writes(self):
        idx = max([i for i, (rs, p) in enumerate(self.lgkm) if not rs], default=-1)
        if idx >= 0: self._wait(lgkm=0 if self.smem_pending else len(self.lgkm) - 1 - idx)
    def wait_vm_tag(self, tags, lgkm=None):
        if not isinstance(tags, (list, tuple, set)):
            tags = [tags]
        n = self._need_vm(lambda t, rs: t in tags)
        if lgkm is not None and len(self.lgkm) <= lgkm and not self.smem_pending:
            lgkm = None
        if n is not None or lgkm is not None:
            self._wait(vm=n, lgkm=lgkm)
    def wait_all(self, vm=True, lgkm=True):
        self._wait(vm=0 if vm else None, lgkm=0 if lgkm else None)
    def wait_lgkm(self, n=0):
        if len(self.lgkm) > n or self.smem_pending:
            self._wait(lgkm=n)
    def settle(self):
        need = 0
        for r, p in self.valu_w.items(): need = max(need, 2 - (self.pos - p - 1))
        for r, (p, ps, k) in self.mfma_w.items(): need = max(need, (8 if ps == 4 else 12) - (self.pos - p - 1))
        for r, p in self.sgpr_valu_w.items(): need = max(need, 5 - (self.pos - p - 1))
        for r, p in self.store_r.items(): need = max(need, 2 - (self.pos - p - 1))
        need = max(need, 1 - (self.pos - self.m0_w - 1))
        if need > 0: self._nop(need)
    def __call__(self, text, tag=None):
        t = text.strip()
        mn, _, rest = t.partition(' ')
        self.count[mn] = self.count.get(mn, 0) + 1
        ops = [o.strip() for o in rest.split(',')] if rest else []
        mods = ''
        if ops:
            newops = []
            for o in ops:
                first, _, m = o.partition(' ')
                newops.append(first); mods += ' ' + m
            ops = newops
        dst, src = [], []
        kind = None
        if mn.startswith('v_mfma'):
            kind = 'mfma'
            dst = regs_of(ops[0]); sa = regs_of(ops[1]); sb = regs_of(ops[2]); sc = regs_of(ops[3])
            src = sa + sb + sc
            passes = 4 if '16x16' in mn else 8
        elif mn.startswith('ds_read'):
            kind = 'dsr'; dst = regs_of(ops[0]); src = regs_of(ops[1])
        elif mn.startswith('ds_write'):
            kind = 'dsw'
            for o in ops: src += regs_of(o)
        elif mn.startswith('buffer_load') or mn.startswith('global_load'):
            kind = 'vml'
            if ' lds' in mods or 'load_lds' in mn:
                for o in ops: src += regs_of(o)
                kind = 'dma'
            else:
                dst = regs_of(ops[0])
                for o in ops[1:]: src += regs_of(o)
        elif mn.startswith('buffer_store') or mn.startswith('global_store'):
            kind = 'vms'
            for o in ops: src += regs_of(o)
            data = regs_of(ops[0]) if mn.startswith('buffer') else regs_of(ops[1])
        elif mn.startswith('buffer_atomic'):
            kind = 'vma'
            for o in ops: src += regs_of(o)
            if 'sc0' in mods: dst = regs_of(ops[0])
        elif mn.startswith('buffer_wbl2') or mn.startswith('buffer_inv'):
            kind = 'vmx'
        elif mn.startswith('v_'):
            kind = 'valu'
            dst = regs_of(ops[0])
            for o in ops[1:]: src += regs_of(o)
            if 'permlane' in mn and 'swap' in mn:
                dst = regs_of(ops[0]) + regs_of(ops[1]); src = list(dst)
            if mn.startswith('v_fmac') or mn.startswith('v_pk_fmac') or mn.startswith('v_writelane'):
                src += dst
            if mn.startswith('v_cndmask') and len(ops) == 3:
                src += regs_of('vcc')
            if '_co_' in mn:
                dst += regs_of(ops[1])
        elif mn.startswith('s_'):
            kind = 'salu'
            if mn.startswith('s_load') or mn.startswith('s_memtime') or mn.startswith('s_memrealtime') or mn.startswith('s_buffer_load'):
                kind = 'smem'
            if mn in ('s_nop',):
                n = int(ops[0]) + 1
                self.lines.append("    " + t); self.pos += n
                return
            if mn == 's_waitcnt':
                raise ValueError("use wait_* helpers")
            if ops and not mn.startswith('s_cmp') and not mn.startswith('s_cbranch') and not mn.startswith('s_branch') and mn not in ('s_setprio', 's_sleep', 's_barrier'):
                dst = regs_of(ops[0])
                for o in ops[1:]: src += regs_of(o)
            else:
                for o in ops: src += regs_of(o)
        else:
            raise ValueError("unknown instr " + t)
        vsrc = set(r for r in src if r[0] in 'va'); vdst = set(r for r in dst if r[0] in 'va')
        ssrc = set(r for r in src if r[0] == 's'); sdst = set(r for r in dst if r[0] == 's')
        touch = vsrc | vdst
        nv = self._need_vm(lambda tg, rs: rs & touch)
        nl = self._need_lgkm(touch)
        if nl is not None and self.smem_pending: nl = 0
        if nv is not None or nl is not None:
            self._wait(vm=nv, lgkm=nl)
        if kind in ('vml', 'dma', 'vms', 'vma', 'vmx') and len(self.vm) >= 63:
            raise ValueError("vmcnt overflow")
        need = 0
        def dist(p): return self.pos - p - 1
        if kind == 'mfma':
            for r in vsrc:
                if r in self.valu_w: need = max(need, 2 - dist(self.valu_w[r]))
            key = (dst[0], len(dst))
            for r in set(sa + sb):
                if r in self.mfma_w:
                    p, ps, k = self.mfma_w[r]; need = max(need, (8 if ps == 4 else 12) - dist(p))
            for r in set(sc):
                if r in self.mfma_w:
                    p, ps, k = self.mfma_w[r]
                    if not (k == (sc[0], len(sc)) and ps == passes):
                        need = max(need, (6 if ps == 4 else 10) - dist(p))
            for r in vdst:
                if r in self.mfma_w and r not in set(sc):
                    p, ps, k = self.mfma_w[r]; need = max(need, (6 if ps == 4 else 10) - dist(p))
            need = max(need, 4 - dist(self.exec_valu_w))
        else:
            for r in touch:
                if r in self.mfma_w:
                    p, ps, k = self.mfma_w[r]; need = max(need, (8 if ps == 4 else 12) - dist(p))
        if kind == 'valu':
            for r in vdst:
                if r in self.mfma_c:
                    p, ps = self.mfma_c[r]; need = max(need, (3 if ps == 4 else 7) - dist(p))
                if r in self.store_r: need = max(need, 2 - dist(self.store_r[r]))
            if mn.split('_e')[0] not in TRANS or True:
                for r in vsrc:
                    if r in self.trans_w and not any(mn.startswith(x) for x in TRANS): need = max(need, 1 - dist(self.trans_w[r]))
            if 'permlane' in mn or 'dpp' in mn or 'row_' in mods or 'quad_perm' in mods:
                for r in vsrc:
                    if r in self.valu_w: need = max(need, 2 - dist(self.valu_w[r]))
            if mn.startswith('v_readfirstlane') or mn.startswith('v_readlane'):
                for r in vsrc:
                    if r in self.valu_w: need = max(need, 1 - dist(self.valu_w[r]))
            for r in ssrc:
                if r in self.sgpr_valu_w: need = max(need, 2 - dist(self.sgpr_valu_w[r]))
        if kind in ('dsr', 'vml'):
            for r in vdst:
                if r in self.store_r: need = max(need, 1 - dist(self.store_r[r]))
                if r in self.mfma_c:
                    p, ps = self.mfma_c[r]; need = max(need, (3 if ps == 4 else 7) - dist(p))
        if kind in ('vml', 'dma', 'vms', 'vma'):
            for r in ssrc:
                if r in self.sgpr_valu_w: need = max(need, 5 - dist(self.sgpr_valu_w[r]))
        if kind in ('salu', 'smem'):
            for r in ssrc:
                if r in self.sgpr_valu_w: need = max(need, 2 - dist(self.sgpr_valu_w[r]))
        if kind == 'dma':
            need = max(need, 1 - dist(self.m0_w))
        if need > 0: self._nop(need)
        self.lines.append("    " + t)
        p = self.pos
        for r in vdst:
            self.valu_w.pop(r, None); self.trans_w.pop(r, None); self.mfma_w.pop(r, None)
        if kind == 'mfma':
            for r in dst: self.mfma_w[r] = (p, passes, (dst[0], len(dst)))
            for r in sc: self.mfma_c[r] = (p, passes)
        elif kind == 'valu':
            for r in vdst:
                self.valu_w[r] = p
                if any(mn.startswith(x) for x in TRANS): self.trans_w[r] = p
            for r in sdst: self.sgpr_valu_w[r] = p
            if mn.startswith('v_cmpx'): self.exec_valu_w = p
        elif kind == 'dsr':
            self.lgkm.append((set(vdst), p))
        elif kind == 'dsw':
            self.lgkm.append((set(), p))
        elif kind == 'vml':
            self.vm.append((tag, set(vdst)))
        elif kind in ('dma', 'vmx'):
            self.vm.append((tag, set()))
        elif kind == 'vma':
            self.vm.append((tag, set(vdst)))
        elif kind == 'vms':
            self.vm.append((tag, set()))
            if len(data) >= 3:
                for r in data: self.store_r[r] = p
        elif kind == 'smem':
            self.smem_pending = True
        elif kind == 'salu':
            for r in sdst:
                self.sgpr_valu_w.pop(r, None)
                if r == ('s', 'm0'): self.m0_w = p
        self.pos += 1
    def barrier(self):
        self("s_barrier")
    def text(self):
        return "\n".join(self.lines) + "\n"

def interleave(e, mf, fill, per=None, start=0):
    n = len(mf); m = len(fill); done = 0
    for i, s in enumerate(mf):
        e(s)
        if i < start: continue
        if per is None:
            tgt = (m * (i - start + 1) + (n - start) - 1) // (n - start)
        else:
            tgt = min(m, per * (i - start + 1))
        while done < tgt:
            put(e, fill[done]); done += 1
    while done < m:
        put(e, fill[done]); done += 1

def put(e, f):
    if callable(f): f()
    elif isinstance(f, tuple): e(f[0], tag=f[1])
    elif isinstance(f, list):
        for x in f: put(e, x)
    else: e(f)
```

```python
import sys, math, struct
from asmlib import *
from emit import *

def f2u(x): return struct.unpack("<I", struct.pack("<f", x))[0]
SCALE = math.log2(math.e) / math.sqrt(128.0)
WS_O = 0
WS_P = 16 << 20
WS_F1 = 32 << 20
WS_F2 = 33 << 20
WS_ST = 64 << 20
X_BYTES, KV_BYTES, W_BYTES, OUT_BYTES, WS_BYTES = 983040, 6291456, 5242880, 1966080, 268435456
L_W, L_E, L_X = 0, 49152, 90112
L_K = 24576
def k_unit(T): return 0 if T == 5 else 24576 + T * 8192
L_V = L_X + 24576
L_O = L_V
WO_SLOTS = [2, 0, 6, 1, 3, 4, 5]
SPIN = 1 << 18

def srd(e, r, lo, size):
    e(f"s_mov_b32 s{r}, s{lo}"); e(f"s_mov_b32 s{r+1}, s{lo+1}")
    e(f"s_mov_b32 s{r+2}, {size}"); e(f"s_mov_b32 s{r+3}, 0x20000")

class Fine:
    def __init__(self, e, opt): self.e, self.on, self.n = e, opt.get("fine"), 0
    def __call__(self):
        if not self.on: return
        assert self.n < 32
        self.e("s_memrealtime s[94:95]"); self.e("s_memtime s[98:99]"); self.e.wait_lgkm(0)
        self.e(f"v_writelane_b32 v1, s94, {self.n}")
        self.e(f"v_writelane_b32 v1, s98, {self.n + 32}")
        self.n += 1
    def out(self, sws, ld=0):
        if not self.on: return
        e = self.e
        e.wait_all(); self()
        e("s_lshl_b32 s97, s2, 3"); e("s_add_u32 s97, s97, s37"); e(f"s_add_u32 s97, s97, {4*ld}"); e("s_lshl_b32 s97, s97, 8"); e(f"s_add_u32 s97, s97, {WS_ST}")
        e("v_lshlrev_b32 v4, 2, v0")
        e(f"buffer_store_dword v1, v4, {S(sws,4)}, s97 offen")

def merge(a, b):
    out = []; i = j = 0
    while i < len(a) or j < len(b):
        if i < len(a): out.append(a[i]); i += 1
        if j < len(b): out.append(b[j]); j += 1
    return out

SX, SK, SV, SW, SWS, SWO, SOUT, SDBG = 40, 44, 48, 52, 56, 60, 44, 64

def kernel(opt):
    e = E()
    g = opt.get
    nt_kv, nt_w, nt_x, nt_wo = g("nt_kv", "nt"), g("nt_w", ""), g("nt_x", ""), g("nt_wo", "")
    st_o, ld_o, st_p, ld_p, st_out = g("st_o", "sc1"), g("ld_o", "sc1"), g("st_p", "sc1"), g("ld_p", "sc1"), g("st_out", "")
    FS = g("fstride", 64)
    e("s_cmp_ge_u32 s2, 256"); e("s_cbranch_scc1 L_end")
    fs = Fine(e, opt); fs()
    e("s_load_dwordx16 s[8:23], s[0:1], 0")
    e("s_load_dwordx8 s[24:31], s[0:1], 64")
    e("s_load_dwordx2 s[32:33], s[0:1], 96")
    e("v_lshrrev_b32 v3, 6, v0"); e("v_and_b32 v0, 63, v0"); e("v_readfirstlane_b32 s36, v3")
    e("s_and_b32 s3, s2, 7"); e("s_lshr_b32 s4, s2, 3")
    e("s_lshr_b32 s5, s3, 2")
    e("s_and_b32 s38, s3, 3"); e("s_lshl_b32 s6, s38, 3"); e("s_and_b32 s39, s4, 7"); e("s_add_u32 s6, s6, s39")
    e("s_lshr_b32 s7, s4, 3")
    e("v_lshrrev_b32 v3, 4, v0"); e("v_and_b32 v4, 15, v0")
    e("s_and_b32 s37, s36, 3")
    e("s_lshl_b32 s72, s7, 2"); e("s_add_u32 s72, s72, s37")
    e("s_cmp_lt_u32 s36, 4" if g("lfirst", 1) else "s_cmp_ge_u32 s36, 4"); e("s_cbranch_scc1 L_loader")
    e("s_getpc_b64 s[34:35]")
    e.label("L_pc")
    e("s_lshl_b32 s73, s39, 2"); e("s_add_u32 s73, s73, s37"); e("s_mul_i32 s73, s73, 1280")
    e("v_min_u32 v5, 9, v0"); e("v_lshl_add_u32 v5, v5, 7, s73")
    e("v_min_u32 v5, L_end-L_pc, v5")
    e("global_load_dword v2, v5, s[34:35]", tag="code")
    e("s_branch L_compute")
    st0 = (list(e.vm), e.smem_pending)
    def mn0():
        e("s_mul_i32 s73, s4, 52"); e("s_lshr_b32 s73, s73, 8")
        e("s_mul_i32 s74, s73, 5"); e("s_sub_u32 s74, s4, s74")

    e.label("L_loader")
    e.vm = []
    WQVO, XVO, KWA, LO, VVO, WVO, KS = 8, 12, 18, 22, 23, 25, 32
    e("s_lshl_b32 s75, s37, 4")
    e("v_add_u32 v5, s75, v3"); e("v_lshlrev_b32 v5, 13, v5")
    e("v_lshlrev_b32 v6, 1, v3"); e("v_xor_b32 v6, v6, v4"); e(f"v_lshl_add_u32 v{WQVO}, v6, 4, v5")
    e(f"v_add_u32 v{WQVO+1}, {4*8192 - 1024}, v{WQVO}"); e(f"v_xor_b32 v6, 128, v{WQVO}")
    e(f"v_add_u32 v{WQVO+2}, {8*8192 - 2048}, v6"); e(f"v_add_u32 v{WQVO+3}, {12*8192 - 3072}, v6")
    e("v_lshrrev_b32 v5, 3, v0"); e("v_and_b32 v6, 7, v0"); e("v_xor_b32 v6, v6, v3")
    e("v_mul_u32_u24 v5, 1280, v5"); e("v_lshl_add_u32 v5, v6, 4, v5"); e("v_xor_b32 v6, 64, v5")
    for m in range(6):
        e(f"v_add_u32 v{XVO+m}, {8*m*1280 - (m % 3)*1024}, v{5 + (m & 1)}")
    e(f"v_lshlrev_b32 v{LO}, 4, v0")
    e(f"s_mul_i32 s76, s72, {48*1280}")
    e("s_lshl_b32 s77, s6, 8")
    e("s_lshl_b32 s78, s37, 12")
    e("s_mul_i32 s79, s37, 6144"); e(f"s_add_u32 s79, s79, {L_X}")
    rot1 = g("rot1", 0)
    orders = g("orders")
    if orders:
        e("s_sub_u32 s70, s7, s39"); e("s_and_b32 s70, s70, 3")
        pk = [sum(c << (4*i) for i, c in enumerate(o)) for o in orders]
        for o in orders: assert sorted(o) == list(range(10))
        e(f"s_mov_b32 s68, {pk[0] & 0xffffffff}"); e(f"s_mov_b32 s69, {pk[0] >> 32}")
        for i in range(1, 4):
            e(f"s_cmp_eq_u32 s70, {i}"); e(f"s_cselect_b32 s68, {pk[i] & 0xffffffff}, s68"); e(f"s_cselect_b32 s69, {pk[i] >> 32}, s69")
    elif rot1 == 2:
        e("s_xor_b32 s80, s39, s7"); e("s_and_b32 s80, s80, 1"); e("s_mul_i32 s80, s80, 5")
    elif rot1 == 3:
        e("s_add_u32 s80, s39, s7"); e("s_mul_i32 s81, s80, 86"); e("s_lshr_b32 s81, s81, 8"); e("s_mul_i32 s81, s81, 3"); e("s_sub_u32 s80, s80, s81")
        e("s_mul_i32 s80, s80, 7"); e("s_lshr_b32 s80, s80, 1")
    elif rot1 == 8:
        e("s_mul_i32 s80, s39, 5"); e("s_lshr_b32 s80, s80, 2"); e("s_mul_i32 s81, s7, 5"); e("s_lshr_b32 s81, s81, 1"); e("s_add_u32 s80, s80, s81")
        e("s_cmp_ge_u32 s80, 10"); e("s_cselect_b32 s81, 10, 0"); e("s_sub_u32 s80, s80, s81")
    else:
        e("s_mov_b32 s80, 0")
    for r, sz in ((SW, W_BYTES), (SX, X_BYTES), (SK, KV_BYTES), (SV, KV_BYTES), (SWO, W_BYTES)):
        e(f"s_mov_b32 s{r+2}, {sz}"); e(f"s_mov_b32 s{r+3}, 0x20000")
    e.wait_lgkm(0)
    e("s_cmp_eq_u32 s5, 0")
    e(f"s_cselect_b64 {S(SW,2)}, s[14:15], s[24:25]"); e(f"s_cselect_b64 {S(SX,2)}, s[8:9], s[18:19]")
    e(f"s_cselect_b64 {S(SK,2)}, s[10:11], s[20:21]"); e(f"s_cselect_b64 {S(SV,2)}, s[12:13], s[22:23]"); e(f"s_cselect_b64 {S(SWO,2)}, s[16:17], s[26:27]")
    def dma_chunk(c):
        slot = c % 3
        if orders:
            e(f"s_bfe_u32 s80, s{68 + c // 8}, {(4 << 16) | (4 * (c % 8))}")
        elif c > 0:
            e("s_add_u32 s80, s80, 1"); e("s_cmp_eq_u32 s80, 10"); e("s_cselect_b32 s80, 0, s80")
        e("s_lshl_b32 s81, s80, 19"); e("s_add_u32 s82, s77, s81")
        e(f"s_add_u32 m0, s78, {L_W + slot*16384}")
        e("s_lshl_b32 s81, s80, 7"); e("s_add_u32 s83, s76, s81")
        for k in range(4):
            e(f"buffer_load_dwordx4 v{WQVO+k}, {S(SW,4)}, s82 offen offset:{k*1024} {nt_w} lds", tag=f"c{c}")
        for m in range(6):
            if m % 3 == 0:
                e(f"s_add_u32 m0, s79, {slot*24576 + (m//3)*3072}")
            e(f"buffer_load_dwordx4 v{XVO+m}, {S(SX,4)}, s83 offen offset:{(m%3)*1024} {nt_x} lds", tag=f"c{c}")
    fs()
    dma_chunk(0)
    srd(e, SWS, 32, WS_BYTES); srd(e, SDBG, 30, 256)
    mn0()
    e("s_lshr_b32 s84, s72, 1"); e("s_lshl_b32 s84, s84, 5"); e("s_add_u32 s84, s84, s6"); e("s_mul_i32 s84, s84, 24576")
    e("s_and_b32 s85, s37, 1"); e("s_lshl_b32 s86, s85, 11"); e("s_add_u32 s84, s84, s86")
    e("s_lshl_b32 s87, s7, 6"); e("s_add_u32 s87, s87, s6"); e("s_mul_i32 s87, s87, 24576"); e("s_mul_i32 s86, s37, 6144"); e("s_add_u32 s87, s87, s86")
    kn = [0]
    def k_load(cnt):
        n0_ = kn[0]
        for _ in range(cnt):
            n = kn[0]; kn[0] += 1
            if n >= 10:
                e(f"buffer_load_dwordx4 {V(KS + 4*(n-10), 4)}, v{KWA + (n&1)}, {S(SK,4)}, s84 offen offset:{(n&1)*1024} {nt_kv}", tag="k")
                continue
            if n & 1 == 0 or cnt & 1 or kn[0] - 1 == n0_: e(f"s_add_u32 m0, s71, {k_unit(n >> 1)}")
            e(f"buffer_load_dwordx4 v{KWA + (n&1)}, {S(SK,4)}, s84 offen offset:{(n&1)*1024} {nt_kv} lds", tag="k")
            if n & 1: e("s_add_u32 s84, s84, 4096")
    vearly = g("vearly", 0)
    VS = KS + 48
    vn = [0]
    def v_load(cnt):
        for _ in range(cnt):
            n = vn[0]; vn[0] += 1
            i, m = divmod(n, 6)
            e(f"s_add_u32 s86, s87, {i*32*24576 + (m>>2)*4096}")
            e(f"buffer_load_dwordx4 {V(VS + 4*n, 4)}, v{LO}, {S(SV,4)}, s86 offen offset:{(m&3)*1024} {nt_kv}", tag="v")
    kplan = g("kplan", {1: 1, 2: 2, 3: 1, 4: 2, 5: 2, 6: 1, 7: 2, 8: 1})
    vplan = g("vplan", {})
    def kv_load(c):
        k_load(kplan.get(c, 0)); v_load(vplan.get(c, 0))
    e("v_xor_b32 v5, v3, v4"); e("v_lshlrev_b32 v5, 4, v5"); e("v_lshl_add_u32 v5, v3, 8, v5")
    e("s_lshl_b32 s86, s85, 7"); e(f"v_xor_b32 v{KWA}, s86, v5"); e(f"v_xor_b32 v{KWA+1}, 64, v{KWA}")
    e("s_lshl_b32 s71, s37, 11"); e(f"s_add_u32 s71, s71, {L_K}")
    e("v_lshlrev_b32 v5, 1, v3"); e("v_xor_b32 v5, v5, v4"); e("v_lshlrev_b32 v5, 4, v5"); e(f"v_lshl_add_u32 v{VVO}, v3, 8, v5")
    e(f"v_xor_b32 v{VVO+1}, 128, v{VVO}")
    e("v_add_u32 v5, s75, v3"); e("v_mul_u32_u24 v5, 1280, v5")
    for k in range(4):
        e(f"v_or_b32 v6, {(k & 1) << 2}, v3"); e("v_lshlrev_b32 v6, 1, v6"); e("v_xor_b32 v6, v6, v4")
        e(f"v_lshl_add_u32 v6, v6, 4, v5")
        e(f"v_add_u32 v{WVO+k}, {4*k*1280 - k*1024}, v6")
    e(f"s_mul_i32 s88, s38, {1024*1280}"); e("s_lshl_b32 s86, s74, 8"); e("s_add_u32 s88, s88, s86")
    e(f"s_mul_i32 s89, s3, {32*49152}"); e("s_lshl_b32 s86, s73, 13"); e("s_add_u32 s89, s89, s86")
    e("s_lshr_b32 s86, s37, 1"); e("s_mul_i32 s86, s86, 49152"); e("s_add_u32 s89, s89, s86")
    e("s_lshl_b32 s86, s85, 12"); e("s_add_u32 s89, s89, s86")
    rot2 = g("rot2", 2)
    if rot2 == 2:
        e("s_xor_b32 s90, s73, s74"); e("s_and_b32 s90, s90, 1"); e("s_lshl_b32 s90, s90, 3")
    elif rot2 == 3:
        e("s_add_u32 s90, s73, s74"); e("s_mul_i32 s91, s90, 86"); e("s_lshr_b32 s91, s91, 8"); e("s_mul_i32 s91, s91, 3"); e("s_sub_u32 s90, s90, s91")
        e("s_mul_i32 s90, s90, 11"); e("s_lshr_b32 s90, s90, 1")
    elif rot2 in (6, 62):
        e("s_mul_i32 s90, s73, 171"); e("s_lshr_b32 s90, s90, 6")
        if rot2 == 62:
            e("s_and_b32 s91, s74, 1"); e("s_lshl_b32 s91, s91, 3"); e("s_add_u32 s90, s90, s91"); e("s_and_b32 s90, s90, 15")
    else:
        e("s_mov_b32 s90, 0")
    e("s_mov_b32 s91, s90")
    def k_write(T):
        for nn in range(2):
            for hh in range(2):
                e(f"ds_write_b64 v{KWA + nn*2 + hh}, {V(KS + 4*(2*T+nn) + 2*hh, 2)} offset:{k_unit(T)}")
    def v_dma(i, lo, hi):
        for n in range(lo, hi):
            if n == lo or n % 4 == 0:
                e(f"s_add_u32 m0, s79, {24576*(1+i) + (n>>2)*4096}")
                e(f"s_add_u32 s86, s87, {i*32*24576 + (n>>2)*4096}")
            e(f"buffer_load_dwordx4 v{VVO + (n&1)}, {S(SV,4)}, s86 offen offset:{(n&3)*1024} {nt_kv} lds", tag="v")
    def wo_dma(c):
        e(f"s_mul_i32 s86, s90, {64*1280}"); e("s_add_u32 s86, s86, s88")
        e(f"s_add_u32 m0, s78, {WO_SLOTS[c % 7]*16384}")
        e("s_add_u32 s90, s90, 1"); e("s_and_b32 s90, s90, 15")
        for k in range(4):
            e(f"buffer_load_dwordx4 v{WVO+k}, {S(SWO,4)}, s86 offen offset:{k*1024} {nt_wo} lds", tag=f"w{c}")
    def o_dma(c):
        e(f"s_mul_i32 s86, s91, {2*49152}"); e("s_add_u32 s86, s86, s89")
        e(f"s_add_u32 m0, s78, {L_O + (c % 3)*16384}")
        e("s_add_u32 s91, s91, 1"); e("s_and_b32 s91, s91, 15")
        for k in range(4):
            e(f"buffer_load_dwordx4 v{LO}, {S(SWS,4)}, s86 offen offset:{k*1024} {ld_o} lds", tag=f"o{c}")
    def v_write(i):
        for m in range(6):
            e(f"ds_write_b128 v{VVO + (m&1)}, {V(VS + 4*(6*i+m), 4)} offset:{i*24576 + m*1024}")
    if vearly:
        e(f"s_add_u32 s86, s79, 24576")
        e(f"v_add_u32 v{VVO}, s86, v{VVO}"); e(f"v_add_u32 v{VVO+1}, s86, v{VVO+1}")
    e("v_and_b32 v30, 7, v0"); e("v_lshlrev_b32 v30, 5, v30")
    woplan = g("woplan", {"b9": 3, "bv": 4})
    wn = [0]
    def wo(cnt):
        for _ in range(cnt):
            wo_dma(wn[0]); wn[0] += 1
    kcls = g("kcls")
    def front(kc):
        plan = kc if isinstance(kc, dict) else {}
        k_load(plan.get(0, 0))
        dma_chunk(1)
        e.wait_vm_tag("c0"); fs(); e.barrier()
        k_load(plan.get(1, 0))
        dma_chunk(2)
        nxt = 3
        for c in range(9):
            e.wait_vm_tag(f"c{c+1}", lgkm=0)
            if g("fine") == 2: fs()
            e.barrier()
            if c == 4 or g("fine") == 2: fs()
            k_load(plan.get(c + 2, 0))
            if c == kc: k_load(12)
            else:
                while nxt <= min(c + 3, 9):
                    dma_chunk(nxt); nxt += 1
            if c == 7:
                assert kn[0] == 12
                v_dma(0, 0, 6)
                e(f"v_add_u32 v5, s71, v{LO}")
                for n in range(2): e(f"ds_write_b128 v5, {V(KS + 4*n, 4)} offset:{k_unit(5) + n*1024}")
            if c == 8:
                v_dma(1, 0, 4)
    st = (list(e.vm), fs.n)
    uniq = []
    for kc in kcls:
        if kc not in uniq: uniq.append(kc)
    for i, kc in enumerate(kcls):
        if uniq.index(kc) > 0:
            e(f"s_cmp_eq_u32 s70, {i}"); e(f"s_cbranch_scc1 L_kc{uniq.index(kc)}")
    ends = []
    for i, kc in enumerate(uniq):
        e.label(f"L_kc{i}")
        e.vm, fs.n = list(st[0]), st[1]; kn[0] = 0
        front(kc)
        ends.append([t for t, _ in e.vm])
        if i + 1 < len(uniq): e("s_branch L_kj")
    assert all(x == ends[0] for x in ends) and set(ends[0]) == {"v"}, ends
    e.label("L_kj")
    if g("fine") == 2: fs()
    e.barrier()
    fs()
    v_dma(1, 4, 6)
    e("s_cmp_ge_u32 s4, 30"); e("s_cbranch_scc1 L_lshort")
    stv = list(e.vm)
    e(f"buffer_load_dword v31, v30, {S(SDBG,4)}, 0 offen sc1", tag="cnt")
    wo(woplan.get("b9", 0))
    e.wait_vm_tag("v"); fs(); e.barrier()
    e("v_cmp_gt_u32 vcc, 32, v31")
    e(f"s_mov_b32 s92, {SPIN}")
    e("s_nop 1")
    e("s_cbranch_vccz L_got0")
    stw = list(e.vm)
    e.label("L_poll0")
    e(f"buffer_load_dword v7, v30, {S(SDBG,4)}, 0 offen sc1")
    e.wait_all(lgkm=False)
    e("v_cmp_gt_u32 vcc, 32, v7")
    e("s_sub_u32 s92, s92, 1"); e("s_cbranch_scc1 L_got0")
    e("s_nop 1")
    e("s_cbranch_vccnz L_poll0")
    e.label("L_got0")
    e.vm = stw
    wo(woplan.get("bv", 0))
    fs(); e.barrier()
    wo(woplan.get("bpv", 0))
    fs(); e.barrier()
    fs()
    for c in range(3):
        o_dma(c)
        if wn[0] <= c: wo(1)
        if c == 1: e.wait_vm_tag(["o0", "w0"]); e.barrier()
    for c in range(15):
        e.wait_vm_tag([f"o{c+1}", f"w{c+1}"]); e.barrier()
        if c + 3 < 16: o_dma(c + 3)
        for _ in range(g("wo_rate", 1)):
            if wn[0] < 16 and wn[0] <= c + 7: wo(1)
    e("s_branch L_ldone")
    e.label("L_lshort")
    e.vm = stv
    e.wait_vm_tag("v"); e.barrier(); e.barrier()
    e.label("L_ldone")
    fs.out(SWS, 1)
    e("s_endpgm")

    e.label("L_compute")
    e.vm, e.smem_pending = list(st0[0]), st0[1]
    e.lgkm = []
    fs.n = 1
    mn0()
    WQRA, XRA, KRA, LO, VD = 8, 16, 18, 22, 23
    AF, BF, ACC, SP = 24, 88, 112, 208
    e("v_bfe_u32 v5, v0, 2, 2"); e("v_and_b32 v6, 1, v3"); e("v_lshl_or_b32 v6, v6, 2, v5")
    e("v_lshl_add_u32 v5, v3, 3, v5"); e("v_lshlrev_b32 v5, 8, v5")
    e("v_and_b32 v7, 3, v0"); e("v_lshl_add_u32 v5, v7, 3, v5")
    for t in range(8):
        e(f"v_xor_b32 v7, {t}, v6"); e(f"v_lshl_add_u32 v{WQRA+t}, v7, 5, v5")
    e(f"s_mul_i32 s75, s37, 6144"); e(f"s_add_u32 s75, s75, {L_X}")
    e("v_lshrrev_b32 v5, 1, v4"); e("v_xor_b32 v5, v5, v3"); e("v_lshlrev_b32 v5, 4, v5")
    e("v_lshl_add_u32 v5, v4, 7, v5"); e(f"v_add_u32 v{XRA}, s75, v5"); e(f"v_xor_b32 v5, 64, v5"); e(f"v_add_u32 v{XRA+1}, s75, v5")
    e("v_lshrrev_b32 v5, 1, v3"); e("v_xor_b32 v5, v5, v4"); e("v_lshlrev_b32 v5, 4, v5"); e("v_lshl_add_u32 v5, v4, 8, v5")
    e("v_and_b32 v6, 1, v3"); e("v_lshl_add_u32 v5, v6, 3, v5")
    e("s_lshr_b32 s76, s37, 1"); e("s_lshl_b32 s77, s76, 12"); e(f"s_add_u32 s77, s77, {L_K}"); e(f"v_add_u32 v{KRA}, s77, v5")
    e("s_mul_i32 s77, s76, 24576"); e(f"s_add_u32 s77, s77, {L_V}")
    e("v_lshlrev_b32 v5, 10, v3"); e(f"v_sub_u32 v{VD}, s77, v5")
    e(f"v_lshlrev_b32 v{LO}, 4, v0")
    e("s_lshl_b32 s78, s5, 5"); e("s_add_u32 s78, s78, s6"); e("s_mul_i32 s78, s78, 192")
    e("s_mul_i32 s79, s72, 3"); e("s_add_u32 s78, s78, s79"); e("s_lshl_b32 s68, s78, 10")
    for sp in range(1, 4): e(f"s_add_u32 s{68+sp}, s68, {sp*48*1024}")
    e(f"s_mov_b32 s80, {f2u(SCALE)}"); e("s_mov_b32 s81, s80")
    e("s_lshl_b32 s82, s3, 4"); e("s_add_u32 s82, s82, s72"); e("s_lshl_b32 s82, s82, 3"); e("s_add_u32 s82, s82, s39")
    e(f"s_mul_i32 s82, s82, {FS}"); e(f"s_add_u32 s82, s82, {WS_F1}")
    e("s_lshl_b32 s84, s5, 5"); e("s_add_u32 s84, s84, s4"); e("s_lshl_b32 s84, s84, 2"); e("s_add_u32 s84, s84, s37")
    e("s_lshl_b32 s85, s84, 2")
    e(f"s_mul_i32 s84, s85, {FS}"); e(f"s_add_u32 s84, s84, {WS_F2}")
    e(f"s_mul_i32 s83, s38, {FS}"); e("s_add_u32 s83, s83, s84")
    e("s_lshl_b32 s92, s73, 3"); e("s_mul_i32 s93, s92, 86"); e("s_lshr_b32 s93, s93, 8")
    e("s_add_u32 s92, s92, 7"); e("s_mul_i32 s92, s92, 86"); e("s_lshr_b32 s92, s92, 8")
    e("v_bfe_u32 v5, v0, 3, 2"); e("v_add_u32 v5, s93, v5"); e("v_min_u32 v5, s92, v5")
    e("v_and_b32 v6, 7, v0"); e("v_lshl_add_u32 v5, v5, 3, v6"); e(f"v_mul_u32_u24 v19, {FS}, v5")
    e(f"s_mul_i32 s93, s3, {128*FS}"); e(f"s_add_u32 s93, s93, {WS_F1}")
    e.wait_lgkm(0)
    srd(e, SWS, 32, WS_BYTES); srd(e, SOUT, 28, OUT_BYTES); srd(e, SDBG, 30, 256)
    if g("tlb"):
        e("s_cmp_eq_u32 s5, 0")
        for i in range(5):
            e(f"s_cselect_b64 {S(8+2*i,2)}, {S(8+2*i,2)}, {S(18+2*i,2)}")
        for p, n in ((14, 3), (10, 3), (12, 3), (16, 3), (28, 1), (32, 6)):
            for k in range(n):
                e(f"s_mov_b32 s87, {k << 21}"); e(f"s_load_dword s88, {S(p,2)}, s87")
        for off in (WS_P, WS_P + (2 << 20), WS_P + (4 << 20), WS_P + (6 << 20)):
            e(f"s_mov_b32 s87, {off}"); e(f"s_load_dword s88, s[32:33], s87")
    e("v_mov_b32 v5, 0"); e("v_mov_b32 v6, 1")
    e("s_mov_b64 exec, 1")
    e(f"buffer_store_dword v5, v5, {S(SWS,4)}, s82 offen sc1")
    e(f"buffer_store_dword v5, v5, {S(SWS,4)}, s83 offen sc1")
    e("s_mov_b64 exec, -1")
    e("s_lshl_b32 s86, s3, 5")
    fs()
    e.barrier()
    def bump():
        e("s_cmp_lg_u32 s37, 0"); e("s_cbranch_scc1 L_noinc")
        e("s_mov_b64 exec, 1")
        e(f"buffer_atomic_add v6, v5, {S(SDBG,4)}, s86 offen sc1"); e.vm = []
        e("s_mov_b64 exec, -1")
        e.label("L_noinc")
    fs()
    def reads(c, kk, st):
        slot = c % 3
        rb = [f"ds_read_b128 {V(BF + st*12 + u*4, 4)}, v{XRA+kk} offset:{slot*24576 + u*2048}" for u in range(3)]
        ra = [f"ds_read_b64_tr_b16 {V(AF + st*32 + t*4 + j*2, 2)}, v{WQRA+t} offset:{slot*16384 + kk*8192 + j*1024}" for t in range(8) for j in range(2)]
        return ra[:2] + rb + ra[2:]
    def mfmas(st, first):
        out = []
        for t in range(8):
            for u in range(3):
                d = V(ACC + (t*3+u)*4, 4)
                out.append(f"v_mfma_f32_16x16x32_bf16 {d}, {V(AF + st*32 + t*4, 4)}, {V(BF + st*12 + u*4, 4)}, {'0' if first else d}")
        return out
    KA = BF
    QB = AF
    def kf(n): return SP + 4*n if n < 12 else ACC + 4*(n - 12)
    kaddr = [f"v_xor_b32 v{KA + x}, {x << 5}, v{KRA}" for x in range(8)]
    kreads = [f"ds_read_b64 {V(kf(T*4+s) + 2*u, 2)}, v{KA + 2*s + u} offset:{k_unit(T)}" for T in range(6) for s in range(4) for u in range(2)]
    def qcvt(s, u):
        out = []
        for jj in range(2):
            a0 = ACC + ((2*s+jj)*3+u)*4
            out.append(f"v_cvt_pk_bf16_f32 v{QB + (s*3+u)*4 + 2*jj}, v{a0}, v{a0+1}")
            out.append(f"v_cvt_pk_bf16_f32 v{QB + (s*3+u)*4 + 2*jj + 1}, v{a0+2}, v{a0+3}")
        return out
    put(e, reads(0, 0, 0))
    for c in range(10):
        interleave(e, mfmas(0, c == 0), reads(c, 1, 1), per=1)
        if c == 2: e.wait_all()
        e.wait_lgkm(0); e.barrier()
        if c == 2: bump()
        if c in (4, 9): fs()
        if c < 9:
            interleave(e, mfmas(1, False), reads(c + 1, 0, 0), per=1)
    cv = sum([qcvt(s, u) for s in range(2) for u in range(3)], [])
    second = kaddr + [None, None] + cv[:14]
    interleave(e, mfmas(1, False), [[b, a] if b else [a] for a, b in zip(kreads[:24], second)], per=1)
    put(e, merge(cv[14:] + qcvt(2, 0) + qcvt(3, 0), kreads[24:36]))
    ST = [[72, 76, 80, 84, 96, 100], [160 + 4*T for T in range(6)], [184 + 4*T for T in range(6)]]
    OT = [ST[0] + [104, 108], ST[1] + [88, 92], ST[2] + [104, 108]]
    def s_mfma(u):
        return [f"v_mfma_f32_16x16x32_bf16 {V(ST[u][T],4)}, {V(kf(T*4+s),4)}, {V(QB + (s*3+u)*4, 4)}, {'0' if s == 0 else V(ST[u][T],4)}" for T in range(6) for s in range(4)]
    def pv_mfma(u):
        return [f"v_mfma_f32_16x16x32_bf16 {V(OT[u][t],4)}, {V(kf(t*3+s),4)}, {V(QB + (s*3+u)*4, 4)}, {'0' if s == 0 else V(OT[u][t],4)}" for t in range(8) for s in range(3)]
    vreads = [f"ds_read_b64_tr_b16 {V(kf(t*3+s) + 2*j, 2)}, v{WQRA+t} offset:{(2*s+j)*4096}" for t in range(8) for s in range(3) for j in range(2)]
    def softmax(u):
        MX = QB + (9+u)*4; TM = MX + 2
        o = []
        vals = [ST[u][T] + r for T in range(6) for r in range(4)]
        o.append(f"v_max3_f32 v{MX}, v{vals[0]}, v{vals[1]}, v{vals[2]}")
        o.append(f"v_max3_f32 v{TM}, v{vals[3]}, v{vals[4]}, v{vals[5]}")
        for i in range(6, 22, 4):
            o.append(f"v_max3_f32 v{MX}, v{MX}, v{vals[i]}, v{vals[i+1]}")
            o.append(f"v_max3_f32 v{TM}, v{TM}, v{vals[i+2]}, v{vals[i+3]}")
        o.append(f"v_max3_f32 v{MX}, v{MX}, v{vals[22]}, v{vals[23]}")
        o.append(f"v_max_f32 v{MX}, v{MX}, v{TM}")
        def xl(op):
            for sw in ("v_permlane16_swap_b32", "v_permlane32_swap_b32"):
                o.append(f"v_mov_b32 v{TM}, v{MX}"); o.append(f"{sw} v{TM}, v{MX}"); o.append(f"{op} v{MX}, v{MX}, v{TM}")
        xl("v_max_f32")
        o.append(f"v_mul_f32 v{MX}, s80, v{MX}")
        for T in range(6):
            x = ST[u][T]
            if g("pk", 1):
                for r in (0, 2):
                    o.append(f"v_pk_fma_f32 {V(x+r,2)}, {V(x+r,2)}, s[80:81], {V(MX,2)} op_sel_hi:[1,1,0] neg_lo:[0,0,1] neg_hi:[0,0,1]")
            else:
                for r in range(4): o.append(f"v_fma_f32 v{x+r}, v{x+r}, s80, -v{MX}")
            for r in range(4): o.append(f"v_exp_f32 v{x+r}, v{x+r}")
            if T > 0:
                y = ST[u][T-1]
                if g("pk", 1):
                    o.append(f"v_pk_add_f32 {V(TM,2)}, {V(y,2)}, {V(y+2,2) if T == 1 else V(TM,2)}")
                    if T > 1: o.append(f"v_pk_add_f32 {V(TM,2)}, {V(y+2,2)}, {V(TM,2)}")
                else:
                    for r in range(2): o.append(f"v_add_f32 v{TM+r}, v{y+r}, v{y+2+r if T == 1 else TM+r}")
                    if T > 1:
                        for r in range(2): o.append(f"v_add_f32 v{TM+r}, v{y+2+r}, v{TM+r}")
        y = ST[u][5]
        o.append(f"v_pk_add_f32 {V(TM,2)}, {V(y,2)}, {V(TM,2)}"); o.append(f"v_pk_add_f32 {V(TM,2)}, {V(y+2,2)}, {V(TM,2)}")
        o.append(f"v_add_f32 v{MX}, v{TM}, v{TM+1}")
        xl("v_add_f32")
        o.append(f"v_rcp_f32 v{MX}, v{MX}")
        for T in range(6):
            x = ST[u][T]
            if g("pk", 1):
                for r in (0, 2): o.append(f"v_pk_mul_f32 {V(x+r,2)}, {V(x+r,2)}, {V(MX,2)} op_sel_hi:[1,0]")
            else:
                for r in range(4): o.append(f"v_mul_f32 v{x+r}, v{x+r}, v{MX}")
            for r in (0, 2):
                o.append(f"v_cvt_pk_bf16_f32 v{QB + ((T>>1)*3+u)*4 + (T&1)*2 + (r>>1)}, v{x+r}, v{x+r+1}")
        return o
    def ostore(u, sp):
        a, b = OT[u][2*sp], OT[u][2*sp+1]
        return [f"v_cvt_pk_bf16_f32 v{a}, v{a}, v{a+1}", f"v_cvt_pk_bf16_f32 v{a+1}, v{a+2}, v{a+3}",
                f"v_cvt_pk_bf16_f32 v{a+2}, v{b}, v{b+1}", f"v_cvt_pk_bf16_f32 v{a+3}, v{b+2}, v{b+3}",
                f"buffer_store_dwordx4 {V(a,4)}, v{LO}, {S(SWS,4)}, s{68+sp} offen offset:{u*1024} {st_o}"][:4 if st_o == "skip" else 5]
    def cost(x): return 2 if x.startswith("v_exp") or x.startswith("v_rcp") else 1
    def weave(mf, fill, budget):
        def ops(x):
            return [set(regs_of(o.strip().split(' ')[0])) for o in x.partition(' ')[2].split(',')]
        fill = list(fill); acc = 0.0
        for i, m in enumerate(mf):
            o = ops(m); need = o[1] | o[2]
            last = max([k for k, x in enumerate(fill) if x.startswith("ds_read") and ops(x)[0] & need], default=-1)
            for _ in range(last + 1):
                acc -= cost(fill[0]); e(fill.pop(0))
            e(m); acc += budget
            pend = set().union(*[ops(x)[0] for x in mf[i+1:]]) if i + 1 < len(mf) else set()
            while fill and acc >= cost(fill[0]):
                assert not (fill[0].startswith("v_cvt") and set().union(*ops(fill[0])[1:]) & pend), fill[0]
                acc -= cost(fill[0]); e(fill.pop(0))
        return fill
    vadd = [f"v_add_u32 v{WQRA+t}, v{VD}, v{WQRA+t}" for t in range(8)]
    rest = weave(s_mfma(0), merge(kreads[36:], qcvt(2, 1) + qcvt(2, 2) + qcvt(3, 1) + qcvt(3, 2) + vadd), 2)
    put(e, rest)
    fs()
    sm = softmax(0)
    m12 = s_mfma(1) + s_mfma(2)
    put(e, m12[:4])
    rest = weave(m12[4:], sm, sum(cost(x) for x in sm) / 44.0)
    put(e, rest)
    fs()
    e.barrier()
    fs()
    sm = softmax(1)
    NV = g("nv_pre", 18)
    put(e, merge(vreads[:NV], sm[:NV]))
    pv = pv_mfma(0)
    f = merge(vreads[NV:], sm[NV:NV + 48 - NV]); sm = sm[48:]
    rest = weave(pv[:15], f, 4)
    rest = weave(pv[15:], rest + ostore(0, 0) + ostore(0, 1), 2)
    if not g("bpv_late"):
        e.wait_lgkm(0); e.barrier()
    put(e, rest + ostore(0, 2) + sm[:6] + ostore(0, 3) + sm[6:])
    sm = softmax(2)
    pv = pv_mfma(1)
    rest = weave(pv[:12], sm, 2)
    rest = weave(pv[12:], ostore(1, 0) + rest[:6] + ostore(1, 1) + rest[6:], 2)
    put(e, ostore(1, 2) + rest[:6] + ostore(1, 3) + rest[6:])
    pv = pv_mfma(2)
    put(e, pv[:12])
    rest = weave(pv[12:], ostore(2, 0) + ostore(2, 1), 1)
    put(e, rest + ostore(2, 2) + ostore(2, 3))
    if g("bpv_late") == 1: e.barrier()
    fs()
    RA, RA2, ORA = 8, 12, 16
    e("s_and_b32 s86, s37, 1"); e("s_lshl_b32 s86, s86, 2")
    e("v_bfe_u32 v5, v0, 2, 2"); e("v_and_b32 v6, 1, v3"); e("v_lshl_or_b32 v6, v6, 2, v5"); e("v_xor_b32 v6, s86, v6")
    e("v_lshl_add_u32 v5, v3, 2, v5"); e("v_lshlrev_b32 v5, 8, v5")
    e("v_and_b32 v7, 3, v0"); e("v_lshl_add_u32 v5, v7, 3, v5")
    for t in range(4):
        e(f"v_xor_b32 v7, {t}, v6"); e(f"v_lshl_add_u32 v{RA+t}, v7, 5, v5"); e(f"v_add_u32 v{RA2+t}, 0x10000, v{RA+t}")
    e("s_lshl_b32 s86, s76, 12"); e(f"s_add_u32 s86, s86, {L_O}"); e(f"v_add_u32 v{ORA}, s86, v{LO}")
    e("v_mov_b32 v5, 0"); e("v_mov_b32 v6, 1")
    e.wait_all()
    e("s_mov_b64 exec, 1")
    e(f"buffer_store_dword v6, v5, {S(SWS,4)}, s82 offen {g('st_f1', 'sc1')}")
    e("s_mov_b64 exec, -1")
    if g("bpv_late") == 2: e.barrier()
    fs()
    e("s_cmp_ge_u32 s4, 30"); e.settle(); e("s_cbranch_scc1 L_cdone")
    e("s_cmp_lg_u32 s37, 0"); e("s_cbranch_scc1 L_got1")
    e("s_mov_b64 exec, 0xffffffff")
    e(f"s_mov_b32 s92, {SPIN}")
    e.label("L_poll1")
    if g("psleep", 0): e(f"s_sleep {g('psleep')}")
    e(f"buffer_load_dword v7, v19, {S(SWS,4)}, s93 offen sc1")
    e.wait_all(lgkm=False)
    e("v_cmp_ne_u32 vcc, 1, v7")
    e("s_sub_u32 s92, s92, 1"); e("s_cbranch_scc1 L_to1")
    e("s_nop 1")
    e("s_cbranch_vccnz L_poll1")
    e.label("L_to1")
    e("s_mov_b64 exec, -1")
    e.label("L_got1")
    e.barrier()
    AF2, BF2, AC2 = 24, 56, 112
    def reads2(c, kk, st):
        slot = WO_SLOTS[c % 7]
        base = RA if slot < 4 else RA2
        ra = [f"ds_read_b64_tr_b16 {V(AF2 + st*16 + t*4 + j*2, 2)}, v{base+t} offset:{(slot & 3)*16384 + kk*8192 + j*4096}" for t in range(4) for j in range(2)]
        rb = [f"ds_read_b128 {V(BF2 + st*16 + u*4, 4)}, v{ORA} offset:{(c % 3)*16384 + kk*8192 + u*1024}" for u in range(4)]
        return ra[:2] + rb + ra[2:]
    def mfmas2(st, first):
        out = []
        for t in range(4):
            for u in range(4):
                d = V(AC2 + (t*4+u)*4, 4)
                out.append(f"v_mfma_f32_16x16x32_bf16 {d}, {V(AF2 + st*16 + t*4, 4)}, {V(BF2 + st*16 + u*4, 4)}, {'0' if first else d}")
        return out
    e.barrier()
    fs()
    put(e, reads2(0, 0, 0))
    for c in range(16):
        interleave(e, mfmas2(0, c == 0), reads2(c, 1, 1), per=1)
        if c < 15:
            e.wait_lgkm(0); e.barrier()
        if c == 7: fs()
        interleave(e, mfmas2(1, False), reads2(c + 1, 0, 0) if c < 15 else [], per=1)
    fs()
    PK = 24
    e("s_lshl_b32 s86, s85, 13"); e(f"s_add_u32 s86, s86, {WS_P}")
    e("s_lshl_b32 s87, s38, 11"); e("s_add_u32 s87, s87, s86")
    for u in range(4):
        for tp in range(2):
            r = PK + (u*2+tp)*4
            for jj in range(2):
                a0 = AC2 + ((2*tp+jj)*4+u)*4
                e(f"v_cvt_pk_bf16_f32 v{r + 2*jj}, v{a0}, v{a0+1}")
                e(f"v_cvt_pk_bf16_f32 v{r + 2*jj + 1}, v{a0+2}, v{a0+3}")
        e(f"s_cmp_eq_u32 s38, {u}"); e.settle(); e(f"s_cbranch_scc1 L_own{u}")
        for tp in range(2):
            e(f"buffer_store_dwordx4 {V(PK + (u*2+tp)*4, 4)}, v{LO}, {S(SWS,4)}, s87 offen offset:{tp*1024} {st_p}")
        e(f"s_branch L_sent{u}")
        e.label(f"L_own{u}")
        for t in range(4):
            for r in range(0, 4, 2):
                e(f"v_pk_add_f32 {V(64 + t*4 + r, 2)}, {V(AC2 + (t*4+u)*4 + r, 2)}, 0")
        e.label(f"L_sent{u}")
        e("s_add_u32 s87, s87, 8192")
    e("s_lshl_b32 s88, s73, 3"); e("s_lshl_b32 s89, s76, 2"); e("s_add_u32 s88, s88, s89"); e("s_add_u32 s88, s88, s38")
    e(f"s_mul_i32 s88, s88, {16*2560}"); e("s_mul_i32 s89, s5, 1280"); e("s_add_u32 s88, s88, s89")
    e("s_lshl_b32 s89, s74, 8"); e("s_add_u32 s88, s88, s89"); e("s_and_b32 s89, s37, 1"); e("s_lshl_b32 s89, s89, 7"); e("s_add_u32 s88, s88, s89")
    e("v_mul_u32_u24 v17, 2560, v4"); e("v_lshl_add_u32 v17, v3, 3, v17")
    e("v_and_b32 v7, 3, v0"); e(f"v_mul_u32_u24 v7, {FS}, v7")
    e("s_lshl_b32 s87, s38, 13"); e("s_add_u32 s87, s87, s86")
    e.wait_all()
    e("s_mov_b64 exec, 1")
    e(f"buffer_store_dword v6, v5, {S(SWS,4)}, s83 offen sc1")
    e("s_mov_b64 exec, 15")
    fs()
    e(f"s_mov_b32 s90, {SPIN}")
    e.label("L_poll2")
    if g("psleep2", 0): e(f"s_sleep {g('psleep2')}")
    e(f"buffer_load_dword v18, v7, {S(SWS,4)}, s84 offen sc1")
    e.wait_all(lgkm=False)
    e("v_cmp_ne_u32 vcc, 1, v18")
    e("s_sub_u32 s90, s90, 1"); e("s_cbranch_scc1 L_got2")
    e("s_nop 1")
    e("s_cbranch_vccnz L_poll2")
    e.label("L_got2")
    e("s_mov_b64 exec, -1")
    fs()
    for i in range(1, 4):
        e(f"s_xor_b32 s89, s38, {i}"); e("s_lshl_b32 s89, s89, 11"); e("s_add_u32 s89, s89, s87")
        for tp in range(2):
            e(f"buffer_load_dwordx4 {V(PK + (i*2+tp)*4, 4)}, v{LO}, {S(SWS,4)}, s89 offen offset:{tp*1024} {ld_p}")
    for i in range(1, 4):
        for tp in range(2):
            for k in range(4):
                src = PK + (i*2+tp)*4 + k; d = 64 + (2*tp + (k >> 1))*4 + (k & 1)*2
                e(f"v_lshlrev_b32 v20, 16, v{src}"); e(f"v_and_b32 v21, 0xffff0000, v{src}")
                e(f"v_pk_add_f32 {V(d,2)}, {V(d,2)}, v[20:21]")
    for t in range(4):
        e(f"v_cvt_pk_bf16_f32 v{80+2*t}, v{64+t*4}, v{65+t*4}"); e(f"v_cvt_pk_bf16_f32 v{81+2*t}, v{66+t*4}, v{67+t*4}")
        e(f"buffer_store_dwordx2 {V(80+2*t,2)}, v17, {S(SOUT,4)}, s88 offen offset:{t*32} {st_out}")
    e.label("L_cdone")
    fs.out(SWS)

    e.label("L_end")
    e("s_endpgm")
    return e

def kdiag(opt):
    e = E()
    e("s_cmp_ge_u32 s2, 1"); e("s_cbranch_scc1 L9_end")
    e("s_load_dwordx2 s[10:11], s[0:1], 96")
    e.wait_lgkm(0)
    srd(e, 12, 10, WS_BYTES)
    e("v_lshrrev_b32 v1, 2, v0"); e("v_lshlrev_b32 v1, 11, v1"); e("v_and_b32 v2, 3, v0"); e("v_lshl_add_u32 v1, v2, 8, v1")
    for i, (field, op) in enumerate(opt["diag"]):
        for k in range(15):
            e(f"s_mov_b32 s4, {WS_ST + k*16*2048 + field*4}")
            e(f"buffer_load_dword v{8+k}, v1, s[12:15], s4 offen")
        for k in range(1, 15):
            e(f"v_{op}_u32 v8, v8, v{8+k}")
        e("v_readlane_b32 s20, v8, 0")
        for l in range(1, 64):
            e(f"v_readlane_b32 s21, v8, {l}"); e(f"s_{op}_u32 s20, s20, s21")
        e(f"s_mov_b32 s{22+i}, s20")
    e("s_sub_u32 s24, s23, s22"); e("s_min_u32 s24, s24, 10000"); e("s_lshl_b32 s24, s24, 6")
    e("s_memrealtime s[26:27]"); e.wait_lgkm(0)
    e.label("L9_spin")
    e("s_memrealtime s[28:29]"); e.wait_lgkm(0)
    e("s_sub_u32 s28, s28, s26"); e("s_cmp_lt_u32 s28, s24"); e("s_cbranch_scc1 L9_spin")
    e.label("L9_end")
    e("s_endpgm")
    return e

def build(opt, fn):
    K = NAME + "_kernel"
    e = kernel(opt)
    txt = header([(None, 256, 512, 163840)]) + kstart(K) + e.text() + RODATA + kdesc(K, 256, 102, 256)
    if opt.get("diag"):
        txt = header([("m_kernel", 256, 512, 163840), ("d_kernel", 1, 64, 0)]) + kstart("m_kernel") + e.text() + kstart("d_kernel") + kdiag(opt).text() + RODATA + kdesc("m_kernel", 256, 102, 256) + kdesc("d_kernel", 64)
    if opt.get("aslist"):
        L = {"m": ("m_kernel", 256, 512, 163840), "t": ("t_kernel", 1, 64, 0), "T": ("t_kernel", 256, 512, 163840)}
        txt = header([L[c] for c in opt["aslist"]]) + kstart("m_kernel") + e.text() + kstart("t_kernel") + "s_endpgm\n" + RODATA + kdesc("m_kernel", 256, 102, 256) + kdesc("t_kernel", 256, 102, 256)
    open(fn, "w").write(txt)
    return e

if __name__ == "__main__":
    e = build({}, "v4.s")
    print("nops", e.nops, "instrs", sum(e.count.values()))
    build({"fine": 1}, "g0.s")
```

```python
import sys, math, struct
from asmlib import *
from emit import *
from sched import schedule

def f2u(x): return struct.unpack("<I", struct.pack("<f", x))[0]
SCALE = math.log2(math.e) / math.sqrt(128.0)
WS_O = 0
WS_P = 16 << 20
WS_F1 = 32 << 20
WS_F2 = 33 << 20
WS_ST = 64 << 20
X_BYTES, KV_BYTES, W_BYTES, OUT_BYTES, WS_BYTES = 983040, 6291456, 5242880, 1966080, 268435456
L_W, L_E, L_X = 0, 49152, 90112
L_K = 24576
def k_unit(T): return 0 if T == 5 else 24576 + T * 8192
L_V = L_X + 24576
L_O = L_V
L_Q = 0
WO_SLOTS = [2, 6, 0, 1, 3, 4, 5]
SPIN = 1 << 18
O5 = [[0,1,2,4,3,8,5,6,7,9],[0,2,1,3,6,4,5,7,8,9],[1,0,3,5,2,9,4,6,7,8],[1,3,0,2,7,4,5,6,8,9]]
DEFAULTS = dict(orders=O5, kcls=[5, 3, 4, 2], woplan={"pre": 1, "ba": 3}, rot2=6, psleep=2, fstride=64,
                nt_kv="nt", nt_w="", nt_x="", nt_wo="", st_o="sc1", ld_o="sc1", st_p="sc1", ld_p="sc1", st_out="")

def srd(e, r, lo, size):
    e(f"s_mov_b32 s{r}, s{lo}"); e(f"s_mov_b32 s{r+1}, s{lo+1}")
    e(f"s_mov_b32 s{r+2}, {size}"); e(f"s_mov_b32 s{r+3}, 0x20000")

class Fine:
    def __init__(self, e, opt): self.e, self.on, self.n = e, opt.get("fine"), 0
    def __call__(self):
        if not self.on: return
        assert self.n < 32
        self.e("s_memrealtime s[94:95]"); self.e("s_memtime s[98:99]"); self.e.wait_lgkm(0)
        self.e(f"v_writelane_b32 v1, s94, {self.n}")
        self.e(f"v_writelane_b32 v1, s98, {self.n + 32}")
        self.n += 1
    def out(self, sws, ld=0):
        if not self.on: return
        e = self.e
        e.wait_all(); self()
        e("s_lshl_b32 s97, s2, 3"); e("s_add_u32 s97, s97, s37"); e(f"s_add_u32 s97, s97, {4*ld}"); e("s_lshl_b32 s97, s97, 8"); e(f"s_add_u32 s97, s97, {WS_ST}")
        e("v_lshlrev_b32 v4, 2, v0")
        e(f"buffer_store_dword v1, v4, {S(sws,4)}, s97 offen")

def merge(a, b):
    out = []; i = j = 0
    while i < len(a) or j < len(b):
        if i < len(a): out.append(a[i]); i += 1
        if j < len(b): out.append(b[j]); j += 1
    return out

def ops_of(x):
    return [set(regs_of(o.strip().split(' ')[0])) for o in x.partition(' ')[2].split(',')]
def cost(x): return 2 if x.startswith("v_exp") or x.startswith("v_rcp") else 1
def weave(e, mf, fill, budget, ds=None, dsrate=1):
    fill = list(fill); acc = 0.0
    for i, m in enumerate(mf):
        o = ops_of(m); need = o[1] | o[2]
        last = max([k for k, x in enumerate(fill) if (x.startswith("ds_read") or x.startswith("v_mov")) and ops_of(x)[0] & need], default=-1)
        for _ in range(last + 1):
            acc -= cost(fill[0]); e(fill.pop(0))
        if ds:
            last = max([k for k, x in enumerate(ds) if ops_of(x)[0] & need], default=-1)
            for _ in range(last + 1): e(ds.pop(0))
        e(m); acc += budget
        if ds:
            e(ds.pop(0))
            if dsrate > 1 and ds: e(ds.pop(0))
        pend = set().union(*[ops_of(x)[0] for x in mf[max(0, i-2):]])
        while fill and acc >= cost(fill[0]):
            if fill[0].startswith("v_") and set().union(*ops_of(fill[0])[1:]) & pend:
                acc = min(acc, budget); break
            acc -= cost(fill[0]); e(fill.pop(0))
    return fill

MF = "v_mfma_f32_16x16x32_bf16"
SX, SK, SV, SW, SWS, SWO, SOUT, SDBG = 40, 44, 48, 52, 56, 60, 44, 64
SC = 96
SO = 68

class Tile:
    def __init__(self, u, q, st, ot, lt, kf, ones, LO, st_o):
        self.__dict__.update(locals())
    def s(self):
        return [f"{MF} {V(self.st[T],4)}, {V(self.kf(T*4+s),4)}, {V(self.q[s],4)}, {'0' if s == 0 else V(self.st[T],4)}" for T in range(6) for s in range(4)]
    def pv(self):
        o = [f"{MF} {V(self.lt,4)}, {V(self.ones,4)}, {V(self.q[s],4)}, {'0' if s == 0 else V(self.lt,4)}" for s in range(3)]
        return o + [f"{MF} {V(self.ot[t],4)}, {V(self.kf(t*3+s),4)}, {V(self.q[s],4)}, {'0' if s == 0 else V(self.ot[t],4)}" for t in range(8) for s in range(3)]
    def softmax(self):
        MX = self.q[3]; TM = MX + 2
        o = []
        vals = [self.st[T] + r for T in range(6) for r in range(4)]
        o.append(f"v_max3_f32 v{MX}, v{vals[0]}, v{vals[1]}, v{vals[2]}")
        o.append(f"v_max3_f32 v{TM}, v{vals[3]}, v{vals[4]}, v{vals[5]}")
        for i in range(6, 22, 4):
            o.append(f"v_max3_f32 v{MX}, v{MX}, v{vals[i]}, v{vals[i+1]}")
            o.append(f"v_max3_f32 v{TM}, v{TM}, v{vals[i+2]}, v{vals[i+3]}")
        o.append(f"v_max3_f32 v{MX}, v{MX}, v{vals[22]}, v{vals[23]}")
        o.append(f"v_max_f32 v{TM+1}, v{MX}, v{TM}"); o.append(f"v_max_f32 v{MX}, v{MX}, v{TM}")
        o.append(f"v_permlane16_swap_b32 v{TM+1}, v{MX}")
        o.append(f"v_max_f32 v{TM}, v{MX}, v{TM+1}"); o.append(f"v_max_f32 v{MX}, v{MX}, v{TM+1}")
        o.append(f"v_permlane32_swap_b32 v{TM}, v{MX}")
        o.append(f"v_max_f32 v{MX}, v{MX}, v{TM}")
        o.append(f"v_mul_f32 v{MX}, s{SC}, v{MX}")
        def cv(T): return [f"v_cvt_pk_bf16_f32 v{self.q[T>>1] + (T&1)*2 + (r>>1)}, v{self.st[T]+r}, v{self.st[T]+r+1}" for r in (0, 2)]
        for T in range(6):
            x = self.st[T]
            for r in range(4): o.append(f"v_fmamk_f32 v{x+r}, v{x+r}, {hex(f2u(SCALE))}, v{MX}")
            if T > 0: o += cv(T - 1)
            for r in range(4): o.append(f"v_exp_f32 v{x+r}, v{x+r}")
        return o + cv(5)
    def rcp(self): return [f"v_rcp_f32 v{self.lt}, v{self.lt}"]
    def out(self, sp):
        a, b = self.ot[2*sp], self.ot[2*sp+1]
        o = [f"v_mul_f32 v{a+r}, v{self.lt}, v{a+r}" for r in range(4)]
        o += [f"v_cvt_pk_bf16_f32 v{a}, v{a}, v{a+1}", f"v_cvt_pk_bf16_f32 v{a+1}, v{a+2}, v{a+3}"]
        o += [f"v_mul_f32 v{b+r}, v{self.lt}, v{b+r}" for r in range(4)]
        o += [f"v_cvt_pk_bf16_f32 v{a+2}, v{b}, v{b+1}", f"v_cvt_pk_bf16_f32 v{a+3}, v{b+2}, v{b+3}",
              f"buffer_store_dwordx4 {V(a,4)}, v{self.LO}, {S(SWS,4)}, s{SO+sp} offen offset:{self.u*1024} {self.st_o}"]
        if self.st_o == "skip": o.pop()
        return o
    def outs(self): return self.rcp() + sum([self.out(sp) for sp in range(4)], [])

def kernel(opt):
    opt = dict(DEFAULTS, **opt)
    e = E()
    g = opt.get
    nt_kv, nt_w, nt_x, nt_wo = g("nt_kv"), g("nt_w"), g("nt_x"), g("nt_wo")
    st_o, ld_o, st_p, ld_p, st_out = g("st_o"), g("ld_o"), g("st_p"), g("ld_p"), g("st_out")
    FS = g("fstride")
    F2 = g("f2stride", 128)
    e("s_load_dwordx16 s[8:23], s[0:1], 0")
    e("s_load_dwordx8 s[24:31], s[0:1], 64")
    e("s_load_dwordx2 s[32:33], s[0:1], 96")
    e("s_cmp_ge_u32 s2, 256"); e("s_cbranch_scc1 L_end")
    fs = Fine(e, opt)
    if g("fine"): e("s_memrealtime s[94:95]"); e("s_memtime s[98:99]")
    e("v_lshrrev_b32 v3, 6, v0"); e("v_and_b32 v0, 63, v0"); e("v_readfirstlane_b32 s36, v3")
    e("s_and_b32 s3, s2, 7"); e("s_lshr_b32 s4, s2, 3")
    e("s_lshr_b32 s5, s3, 2")
    e("s_and_b32 s38, s3, 3"); e("s_lshl_b32 s6, s38, 3"); e("s_and_b32 s39, s4, 7"); e("s_add_u32 s6, s6, s39")
    e("s_lshr_b32 s7, s4, 3")
    e("v_lshrrev_b32 v3, 4, v0"); e("v_and_b32 v4, 15, v0")
    e("s_and_b32 s37, s36, 3")
    e("s_lshl_b32 s72, s7, 2"); e("s_add_u32 s72, s72, s37")
    e("s_cmp_lt_u32 s36, 4"); e("s_cbranch_scc1 L_loader")
    e("s_getpc_b64 s[34:35]")
    e.label("L_pc")
    e("s_lshl_b32 s73, s39, 2"); e("s_add_u32 s73, s73, s37"); e("s_mul_i32 s73, s73, 1280")
    e("v_min_u32 v5, 9, v0"); e("v_lshl_add_u32 v5, v5, 7, s73")
    e("v_min_u32 v5, L_end-L_pc, v5")
    e("global_load_dword v2, v5, s[34:35]", tag="code")
    e("s_branch L_compute")
    st0 = (list(e.vm), e.smem_pending)
    def stamp0():
        if g("fine"):
            e("v_writelane_b32 v1, s94, 0"); e("v_writelane_b32 v1, s98, 32"); fs.n = 1
    def common():
        e("s_mul_i32 s73, s4, 52"); e("s_lshr_b32 s73, s73, 8")
        e("s_mul_i32 s74, s73, 5"); e("s_sub_u32 s74, s4, s74")
        e(f"s_mov_b32 s{SC}, {f2u(-SCALE)}")
    def o_offsets():
        e(f"s_lshl_b32 s{SO}, s5, 5"); e(f"s_add_u32 s{SO}, s{SO}, s6"); e(f"s_mul_i32 s{SO}, s{SO}, 192")
        e(f"s_mul_i32 s{SO+1}, s72, 3"); e(f"s_add_u32 s{SO}, s{SO}, s{SO+1}"); e(f"s_lshl_b32 s{SO}, s{SO}, 10")
        for sp in range(1, 4): e(f"s_add_u32 s{SO+sp}, s{SO}, {sp*48*1024}")
    def flag_offsets():
        e(f"s_mul_i32 s10, s3, {32*FS}"); e(f"s_add_u32 s10, s10, {WS_F1}")
        e(f"s_mul_i32 s8, s4, {FS}"); e("s_add_u32 s8, s8, s10")
        e("s_lshl_b32 s12, s5, 5"); e("s_add_u32 s12, s12, s4"); e("s_lshl_b32 s12, s12, 2"); e("s_add_u32 s12, s12, s37")
        e("s_lshl_b32 s12, s12, 2")
        e(f"s_mul_i32 s11, s12, {4*F2}"); e(f"s_add_u32 s11, s11, {WS_F2}")
        e(f"s_mul_i32 s9, s38, {F2}"); e("s_add_u32 s9, s9, s11")
        e(f"s_mul_i32 s13, s38, {4*F2}"); e("s_add_u32 s11, s11, s13")
    def tr_addr(dst, n, rowshift, xor=None, base=None):
        e("v_bfe_u32 v5, v0, 2, 2"); e("v_and_b32 v6, 1, v3"); e("v_lshl_or_b32 v6, v6, 2, v5")
        if xor: e(f"v_xor_b32 v6, {xor}, v6")
        e(f"v_lshl_add_u32 v5, v3, {rowshift}, v5"); e("v_lshlrev_b32 v5, 8, v5")
        e("v_and_b32 v7, 3, v0"); e("v_lshl_add_u32 v5, v7, 3, v5")
        if base: e(f"v_add_u32 v5, {base}, v5")
        for t in range(n):
            e(f"v_xor_b32 v7, {t}, v6"); e(f"v_lshl_add_u32 v{dst+t}, v7, 5, v5")
    def k_addr(dst, item):
        e("v_lshrrev_b32 v5, 1, v3"); e("v_xor_b32 v5, v5, v4"); e("v_lshlrev_b32 v5, 4, v5"); e("v_lshl_add_u32 v5, v4, 8, v5")
        e("v_and_b32 v6, 1, v3"); e("v_lshl_add_u32 v5, v6, 3, v5")
        e(f"s_lshl_b32 s86, {item}, 12"); e(f"s_add_u32 s86, s86, {L_K}"); e(f"v_add_u32 v{dst}, s86, v5")
    def k_reads(kf, KA):
        return [f"ds_read_b64 {V(kf(T*4+s) + 2*u, 2)}, v{KA + 2*s + u} offset:{k_unit(T)}" for T in range(6) for s in range(4) for u in range(2)]
    def v_reads(kf, VA):
        return [f"ds_read_b64_tr_b16 {V(kf(t*3+s) + 2*j, 2)}, v{VA+t} offset:{(2*s+j)*4096}" for t in range(8) for s in range(3) for j in range(2)]

    e.label("L_loader")
    e.vm = []
    WQVO, XVO, KVO, LO, VVO, WVO, KS = 8, 12, 18, 22, 23, 25, 32
    e("s_lshl_b32 s75, s37, 4")
    e("v_add_u32 v5, s75, v3"); e("v_lshlrev_b32 v5, 13, v5")
    e("v_lshlrev_b32 v6, 1, v3"); e("v_xor_b32 v6, v6, v4"); e(f"v_lshl_add_u32 v{WQVO}, v6, 4, v5")
    e(f"v_add_u32 v{WQVO+1}, {4*8192 - 1024}, v{WQVO}"); e(f"v_xor_b32 v6, 128, v{WQVO}")
    e(f"v_add_u32 v{WQVO+2}, {8*8192 - 2048}, v6"); e(f"v_add_u32 v{WQVO+3}, {12*8192 - 3072}, v6")
    e("v_lshrrev_b32 v5, 3, v0"); e("v_and_b32 v6, 7, v0"); e("v_xor_b32 v6, v6, v3")
    e("v_mul_u32_u24 v5, 1280, v5"); e(f"v_lshl_add_u32 v{XVO}, v6, 4, v5"); e(f"v_xor_b32 v6, 64, v{XVO}")
    for m in range(1, 6):
        e(f"v_add_u32 v{XVO+m}, {8*m*1280 - (m % 3)*1024}, v{6 if m & 1 else XVO}")
    e(f"s_mul_i32 s76, s72, {48*1280}")
    e("s_lshl_b32 s77, s6, 8")
    e("s_lshl_b32 s78, s37, 12")
    e("s_mul_i32 s79, s37, 6144"); e(f"s_add_u32 s79, s79, {L_X}")
    orders = g("orders")
    e("s_sub_u32 s100, s7, s39"); e("s_and_b32 s100, s100, 3")
    pk = [sum(c << (4*i) for i, c in enumerate(o)) for o in orders]
    for o in orders: assert sorted(o) == list(range(10))
    e(f"s_mov_b32 s92, {pk[0] & 0xffffffff}"); e(f"s_mov_b32 s93, {pk[0] >> 32}")
    for i in range(1, 4):
        e(f"s_cmp_eq_u32 s100, {i}"); e(f"s_cselect_b32 s92, {pk[i] & 0xffffffff}, s92"); e(f"s_cselect_b32 s93, {pk[i] >> 32}, s93")
    for r, sz in ((SW, W_BYTES), (SX, X_BYTES), (SK, KV_BYTES), (SV, KV_BYTES), (SWO, W_BYTES)):
        e(f"s_mov_b32 s{r+2}, {sz}"); e(f"s_mov_b32 s{r+3}, 0x20000")
    def chunk_pre(c):
        e(f"s_bfe_u32 s80, s{92 + c // 8}, {(4 << 16) | (4 * (c % 8))}")
        e("s_lshl_b32 s81, s80, 19"); e("s_add_u32 s82, s77, s81")
        e(f"s_add_u32 m0, s78, {L_W + (c % 3)*16384}")
        e("s_lshl_b32 s81, s80, 7"); e("s_add_u32 s83, s76, s81")
    def chunk_go(c):
        for k in range(4):
            e(f"buffer_load_dwordx4 v{WQVO+k}, {S(SW,4)}, s82 offen offset:{k*1024} {nt_w} lds", tag=f"c{c}")
        for m in range(6):
            if m % 3 == 0:
                e(f"s_add_u32 m0, s79, {(c % 3)*24576 + (m//3)*3072}")
            e(f"buffer_load_dwordx4 v{XVO+m}, {S(SX,4)}, s83 offen offset:{(m%3)*1024} {nt_x} lds", tag=f"c{c}")
    chunk_pre(0)
    e.wait_lgkm(0)
    e("s_cmp_eq_u32 s5, 0")
    e(f"s_cselect_b64 {S(SW,2)}, s[14:15], s[24:25]"); e(f"s_cselect_b64 {S(SX,2)}, s[8:9], s[18:19]")
    e(f"s_cselect_b64 {S(SK,2)}, s[10:11], s[20:21]"); e(f"s_cselect_b64 {S(SV,2)}, s[12:13], s[22:23]"); e(f"s_cselect_b64 {S(SWO,2)}, s[16:17], s[26:27]")
    chunk_go(0)
    stamp0(); fs()
    srd(e, SWS, 32, WS_BYTES); srd(e, SDBG, 30, 256)
    common()
    e(f"v_lshlrev_b32 v{LO}, 4, v0")
    e("s_lshr_b32 s84, s72, 1"); e("s_lshl_b32 s84, s84, 5"); e("s_add_u32 s84, s84, s6"); e("s_mul_i32 s84, s84, 24576")
    e("s_and_b32 s85, s37, 1"); e("s_lshl_b32 s86, s85, 11"); e("s_add_u32 s84, s84, s86")
    e("v_xor_b32 v5, v3, v4"); e("v_lshlrev_b32 v5, 4, v5"); e("v_lshl_add_u32 v5, v3, 8, v5")
    e("s_lshl_b32 s86, s85, 7"); e(f"v_xor_b32 v{KVO}, s86, v5"); e(f"v_xor_b32 v{KVO+1}, 64, v{KVO}")
    e("s_lshl_b32 s101, s37, 11"); e(f"s_add_u32 s101, s101, {L_K}")
    e("s_lshl_b32 s87, s7, 6"); e("s_add_u32 s87, s87, s6"); e("s_mul_i32 s87, s87, 24576"); e("s_mul_i32 s86, s37, 6144"); e("s_add_u32 s87, s87, s86")
    e("v_lshlrev_b32 v5, 1, v3"); e("v_xor_b32 v5, v5, v4"); e("v_lshlrev_b32 v5, 4, v5"); e(f"v_lshl_add_u32 v{VVO}, v3, 8, v5")
    e(f"v_xor_b32 v{VVO+1}, 128, v{VVO}")
    e("v_add_u32 v5, s75, v3"); e("v_mul_u32_u24 v5, 1280, v5")
    for k in range(4):
        e(f"v_or_b32 v6, {(k & 1) << 2}, v3"); e("v_lshlrev_b32 v6, 1, v6"); e("v_xor_b32 v6, v6, v4")
        e(f"v_lshl_add_u32 v6, v6, 4, v5")
        e(f"v_add_u32 v{WVO+k}, {4*k*1280 - k*1024}, v6")
    e(f"s_mul_i32 s88, s38, {1024*1280}"); e("s_lshl_b32 s86, s74, 8"); e("s_add_u32 s88, s88, s86")
    e(f"s_mul_i32 s89, s3, {32*49152}"); e("s_lshl_b32 s86, s73, 13"); e("s_add_u32 s89, s89, s86")
    e("s_lshr_b32 s34, s37, 1"); e("s_mul_i32 s86, s34, 49152"); e("s_add_u32 s89, s89, s86")
    e("s_lshl_b32 s86, s85, 12"); e("s_add_u32 s89, s89, s86")
    rot2 = g("rot2")
    e("s_mul_i32 s90, s73, 171"); e("s_lshr_b32 s90, s90, 6")
    if rot2 == 62:
        e("s_and_b32 s91, s74, 1"); e("s_lshl_b32 s91, s91, 3"); e("s_add_u32 s90, s90, s91")
    e("s_and_b32 s90, s90, 15"); e("s_mov_b32 s91, s90")
    e("v_and_b32 v30, 7, v0"); e("v_lshlrev_b32 v30, 5, v30")
    flag_offsets()
    e("v_mov_b32 v5, 0"); e(f"v_mul_u32_u24 v6, {4*F2}, v0")
    e("s_mov_b64 exec, 15")
    e(f"buffer_store_dword v5, v6, {S(SWS,4)}, s9 offen sc1", tag="clr")
    e("s_mov_b64 exec, 1")
    e(f"buffer_store_dword v5, v5, {S(SWS,4)}, s8 offen sc1", tag="clr")
    e("s_mov_b64 exec, -1")
    kn = [0]
    def k_load(cnt):
        first = kn[0]
        for _ in range(cnt):
            n = kn[0]; kn[0] += 1
            if n >= 10:
                e(f"buffer_load_dwordx4 {V(KS + 4*(n-10), 4)}, v{KVO + (n&1)}, {S(SK,4)}, s84 offen offset:{(n&1)*1024} {nt_kv}", tag="k")
                continue
            if n & 1 == 0 or n == first: e(f"s_add_u32 m0, s101, {k_unit(n >> 1)}")
            e(f"buffer_load_dwordx4 v{KVO + (n&1)}, {S(SK,4)}, s84 offen offset:{(n&1)*1024} {nt_kv} lds", tag="k")
            if n & 1: e("s_add_u32 s84, s84, 4096")
    def v_dma(i, lo, hi):
        for n in range(lo, hi):
            if n == lo or n % 4 == 0:
                e(f"s_add_u32 m0, s79, {24576*(1+i) + (n>>2)*4096}")
                e(f"s_add_u32 s86, s87, {i*32*24576 + (n>>2)*4096}")
            e(f"buffer_load_dwordx4 v{VVO + (n&1)}, {S(SV,4)}, s86 offen offset:{(n&3)*1024} {nt_kv} lds", tag="v")
    wn = [0]
    def wo(cnt):
        for _ in range(cnt):
            c = wn[0]; wn[0] += 1
            e(f"s_mul_i32 s86, s90, {64*1280}"); e("s_add_u32 s86, s86, s88")
            e(f"s_add_u32 m0, s78, {WO_SLOTS[c % 7]*16384}")
            e("s_add_u32 s90, s90, 1"); e("s_and_b32 s90, s90, 15")
            for k in range(4):
                e(f"buffer_load_dwordx4 v{WVO+k}, {S(SWO,4)}, s86 offen offset:{k*1024} {nt_wo} lds", tag=f"w{c}")
    def o_pre(c):
        e(f"s_mul_i32 s81, s91, {2*49152}"); e("s_add_u32 s81, s81, s89")
        e(f"s_add_u32 m0, s78, {L_O + (c % 3)*16384}")
        e("s_add_u32 s91, s91, 1"); e("s_and_b32 s91, s91, 15")
    def o_go(c):
        for k in range(4):
            e(f"buffer_load_dwordx4 v{LO}, {S(SWS,4)}, s81 offen offset:{k*1024} {ld_o} lds", tag=f"o{c}")
    woplan = g("woplan")
    spf = list(g("spf") or [])
    if spf:
        e("s_lshl_b32 s14, s4, 2"); e("s_add_u32 s14, s14, s37"); e("s_mul_i32 s14, s14, 640")
        e(f"s_mul_i32 s15, s38, {1024*1280}"); e("s_add_u32 s14, s14, s15")
        e(f"s_add_u32 s14, s14, s{SWO}"); e(f"s_addc_u32 s15, s{SWO+1}, 0")
        e(f"s_add_u32 s16, s14, {8*81920}"); e("s_addc_u32 s17, s15, 0")
    def prefetch(slot):
        if slot < len(spf):
            for ch in spf[slot]:
                for i in range(10):
                    e(f"s_load_dword s18, {S(14 + 2*(ch >> 3), 2)}, {(ch & 7)*81920 + (i*128) % 640 + 64*(i // 5)}")
    kcls = g("kcls")
    chunk_pre(1); chunk_go(1); chunk_pre(2)
    e.wait_vm_tag("c0"); fs(); e.barrier()
    chunk_go(2)
    prefetch(0)
    def front(kc, c0, c1, nxt):
        for c in range(c0, c1):
            pre = c != kc and nxt <= min(c + 3, 9)
            if pre: chunk_pre(nxt)
            e.wait_vm_tag(f"c{c+1}", lgkm=0 if c == 8 else None)
            if g("fine") == 2: fs()
            e.barrier()
            if c == 4 or g("fine") == 2: fs()
            if c == kc: k_load(12)
            else:
                while nxt <= min(c + 3, 9):
                    if not pre: chunk_pre(nxt)
                    chunk_go(nxt); nxt += 1; pre = False
            if c == 7:
                assert kn[0] == 12
                v_dma(0, 0, 6)
                e(f"v_add_u32 v5, s101, v{LO}")
                for n in range(2): e(f"ds_write_b128 v5, {V(KS + 4*n, 4)} offset:{k_unit(5) + n*1024}")
            if c == 8:
                v_dma(1, 0, 4)
            prefetch(c + 1)
        return nxt
    c0 = min(kcls)
    nxt = front(-1, 0, c0, 3)
    st = (list(e.vm), fs.n)
    uniq = sorted(set(kcls))
    for i, kc in enumerate(kcls):
        if uniq.index(kc) > 0:
            e(f"s_cmp_eq_u32 s100, {i}"); e(f"s_cbranch_scc1 L_kc{uniq.index(kc)}")
    ends = []
    for i, kc in enumerate(uniq):
        e.label(f"L_kc{i}")
        e.vm, fs.n = list(st[0]), st[1]; kn[0] = 0
        front(kc, c0, 9, nxt)
        ends.append([t for t, _ in e.vm])
        if i + 1 < len(uniq): e("s_branch L_kj")
    assert all(x == ends[0] for x in ends) and set(ends[0]) == {"v"}, ends
    e.label("L_kj")
    if g("fine") == 2: fs()
    e.barrier()
    fs()
    v_dma(1, 4, 6)
    e(f"buffer_load_dword v31, v30, {S(SDBG,4)}, 0 offen sc1", tag="cnt")
    wo(woplan.get("pre", 0))
    prefetch(10)
    e.wait_vm_tag("v"); fs(); e.barrier()
    prefetch(11)
    e("v_cmp_gt_u32 vcc, 32, v31")
    e(f"s_mov_b32 s92, {SPIN}")
    e("s_nop 1")
    e("s_cbranch_vccz L_got0")
    stw = list(e.vm)
    e.label("L_poll0")
    e(f"buffer_load_dword v7, v30, {S(SDBG,4)}, 0 offen sc1")
    e.wait_all(lgkm=False)
    e("v_cmp_gt_u32 vcc, 32, v7")
    e("s_sub_u32 s92, s92, 1"); e("s_cbranch_scc1 L_got0")
    e("s_nop 1")
    e("s_cbranch_vccnz L_poll0")
    e.label("L_got0")
    e.vm = stw
    fs()
    wo(woplan.get("post", 0))
    assert wn[0] <= 3
    fs(); e.barrier()
    e("s_cmp_ge_u32 s4, 30"); e("s_cbranch_scc1 L_ldone")
    wo(woplan.get("ba", 0))
    o_pre(0)
    fs(); e.barrier()
    fs()
    o_go(0)
    if wn[0] <= 0: wo(1)
    o_pre(1); o_go(1)
    if wn[0] <= 1: wo(1)
    o_pre(2)
    e.wait_vm_tag(["o0", "w0"]); e.barrier()
    o_go(2)
    if wn[0] <= 2: wo(1)
    for c in range(15):
        if c + 3 < 16: o_pre(c + 3)
        e.wait_vm_tag([f"o{c+1}", f"w{c+1}"]); e.barrier()
        if c + 3 < 16: o_go(c + 3)
        if wn[0] < 16 and wn[0] <= c + 7: wo(1)
    e.label("L_ldone")
    fs.out(SWS, 1)
    e("s_endpgm")

    e.label("L_compute")
    e.vm, e.smem_pending = list(st0[0]), st0[1]
    e.lgkm = []
    common(); o_offsets()
    WQRA, XRA, PA, LO, VD, KA = 8, 16, 20, 22, 23, 248
    AF, BF, ACC, SP = 24, 88, 112, 208
    tr_addr(WQRA, 8, 3)
    e(f"s_mul_i32 s75, s37, 6144"); e(f"s_add_u32 s75, s75, {L_X}")
    e("v_lshrrev_b32 v5, 1, v4"); e("v_xor_b32 v5, v5, v3"); e("v_lshlrev_b32 v5, 4, v5")
    e("v_lshl_add_u32 v5, v4, 7, v5"); e(f"v_add_u32 v{XRA}, s75, v5"); e(f"v_xor_b32 v5, 64, v5"); e(f"v_add_u32 v{XRA+1}, s75, v5")
    e("s_lshr_b32 s76, s37, 1")
    k_addr(KA, "s76")
    for x in range(1, 8): e(f"v_xor_b32 v{KA + x}, {x << 5}, v{KA}")
    e("s_mul_i32 s77, s76, 24576"); e(f"s_add_u32 s77, s77, {L_V}")
    e("v_lshlrev_b32 v5, 10, v3"); e(f"v_sub_u32 v{VD}, s77, v5")
    e(f"v_lshlrev_b32 v{LO}, 4, v0")
    e(f"s_mul_i32 s92, s4, {FS}")
    e("s_lshl_b32 s86, s73, 3"); e("s_mul_i32 s87, s86, 43"); e("s_lshr_b32 s87, s87, 9")
    e("s_add_u32 s86, s86, 7"); e("s_mul_i32 s86, s86, 43"); e("s_lshr_b32 s86, s86, 9")
    e("v_bfe_u32 v5, v0, 3, 1"); e("v_add_u32 v5, s87, v5"); e("v_min_u32 v5, s86, v5")
    e("v_and_b32 v6, 7, v0"); e("v_lshl_add_u32 v5, v5, 3, v6"); e(f"v_mul_u32_u24 v{PA}, {FS}, v5")
    e(f"v_cmp_ne_u32 s[90:91], s92, v{PA}"); e("s_and_b64 s[90:91], s[90:91], 0xffff")
    e.wait_lgkm(0)
    stamp0()
    srd(e, SWS, 32, WS_BYTES); srd(e, SOUT, 28, OUT_BYTES); srd(e, SDBG, 30, 256)
    flag_offsets()
    e("v_mov_b32 v5, 0"); e("v_mov_b32 v6, 1")
    e("s_lshl_b32 s86, s3, 5")
    fs()
    e.barrier()
    fs()
    def bump():
        e("s_cmp_lg_u32 s37, 0"); e("s_cbranch_scc1 L_noinc")
        e("s_mov_b64 exec, 1")
        e(f"buffer_atomic_add v6, v5, {S(SDBG,4)}, s86 offen sc1"); e.vm = []
        e("s_mov_b64 exec, -1")
        e.label("L_noinc")
    def reads(c, kk, st):
        slot = c % 3
        rb = [f"ds_read_b128 {V(BF + st*12 + u*4, 4)}, v{XRA+kk} offset:{slot*24576 + u*2048}" for u in range(3)]
        ra = [f"ds_read_b64_tr_b16 {V(AF + st*32 + t*4 + j*2, 2)}, v{WQRA+t} offset:{slot*16384 + kk*8192 + j*1024}" for t in range(8) for j in range(2)]
        return ra[:2] + rb + ra[2:]
    def acc(t, u): return ACC + (t*3+u)*4
    def mfmas(st, first, prs=None):
        prs = prs or [(t, u) for t in range(8) for u in range(3)]
        return [f"{MF} {V(acc(t,u),4)}, {V(AF + st*32 + t*4, 4)}, {V(BF + st*12 + u*4, 4)}, {'0' if first else V(acc(t,u),4)}" for t, u in prs]
    def kf(n): return SP + 4*n if n < 10 else AF + 4*(n - 10)
    kr = k_reads(kf, KA)
    def tail(rd, extra):
        return rd + [extra[i:i+2] for i in range(0, len(extra), 2)]
    put(e, reads(0, 0, 0))
    for c in range(10):
        interleave(e, mfmas(0, c == 0), tail(reads(c, 1, 1), kr[10:20] if c == 9 else []), per=1)
        if c == 2: e.settle(); bump()
        e.wait_lgkm(10 if c == 9 else 0); e.barrier()
        if c in (4, 9): fs()
        if c < 9:
            interleave(e, mfmas(1, False), tail(reads(c + 1, 0, 0), kr[:10] if c == 8 else []), per=1)
    def qcvt(u):
        o = []
        for s in range(4):
            a, b = acc(2*s, u), acc(2*s+1, u)
            o += [f"v_cvt_pk_bf16_f32 v{a}, v{a}, v{a+1}", f"v_cvt_pk_bf16_f32 v{a+1}, v{a+2}, v{a+3}",
                  f"v_cvt_pk_bf16_f32 v{a+2}, v{b}, v{b+1}", f"v_cvt_pk_bf16_f32 v{a+3}, v{b+2}, v{b+3}"]
        return o
    ONE = 16
    odd = [acc(t, u) for u in range(3) for t in (1, 3, 5, 7)]
    sts = [[80, 84, 88, 92, 96, 100], odd[:6], odd[6:]]
    xtra = [[104, 108], [KA, KA + 4], [acc(0, 0), acc(2, 0)]]
    T = [Tile(u, [acc(2*s, u) for s in range(4)], sts[u], sts[u] + xtra[u], acc(6, u), kf, ONE, LO, st_o) for u in range(3)]
    prog = mfmas(1, False, [(t, u) for u in range(3) for t in range(8)]) + kr[20:] + qcvt(0) + qcvt(1) + qcvt(2)
    prog += [f"v_add_u32 v{WQRA+t}, v{VD}, v{WQRA+t}" for t in range(8)] + [f"v_mov_b32 v{ONE + r}, 0x3f803f80" for r in range(4)]
    prog += T[0].s() + T[0].softmax() + T[1].s() + T[2].s()
    ib = len(prog); prog.append("BAR V")
    vr = v_reads(kf, WQRA)
    extra = [(ib, ib + 1 + k) for k in range(len(vr))]
    prog += vr
    bonus = {}
    for u in range(3):
        if u: prog += T[u].softmax()
        prog += T[u].pv()
        n0 = len(prog); prog += T[u].outs()
        for k in range(n0, len(prog)):
            if prog[k].startswith("buffer_store"): bonus[k] = g("obonus", (1500, 700, 0))[u]
    order, tm = schedule(prog, extra, {ib: g("bv_t", 1500)}, None, verbose=g("verbose"))
    if g("verbose"): print("model cycles", tm)
    for x in order:
        if x == "BAR V":
            fs(); e.barrier(); fs()
        else: e(x)
    fs()
    RA, RA2, ORA = 8, 12, 16
    e("s_and_b32 s86, s37, 1"); e("s_lshl_b32 s86, s86, 2")
    tr_addr(RA, 4, 2, xor="s86")
    for t in range(4): e(f"v_add_u32 v{RA2+t}, 0x10000, v{RA+t}")
    e("s_lshl_b32 s87, s76, 12"); e(f"s_add_u32 s87, s87, {L_O}")
    e("s_lshl_b32 s13, s12, 13"); e(f"s_add_u32 s13, s13, {WS_P}")
    for u in range(4):
        e(f"s_add_u32 s86, s38, {u + 1}"); e("s_and_b32 s86, s86, 3")
        if u < 3:
            e(f"s_lshl_b32 s{14+u}, s86, 13"); e(f"s_lshl_b32 s{17+u}, s86, 11")
        e("s_lshl_b32 s86, s86, 10"); e("s_add_u32 s86, s86, s87"); e(f"v_add_u32 v{ORA+u}, s86, v{LO}")
    e("s_lshl_b32 s86, s38, 11"); e("s_add_u32 s86, s86, s13"); e("s_lshl_b32 s87, s38, 13"); e("s_add_u32 s87, s87, s13")
    for u in range(3):
        e(f"s_add_u32 s{14+u}, s{14+u}, s86"); e(f"s_add_u32 s{17+u}, s{17+u}, s87")
    e("s_lshl_b32 s88, s73, 3"); e("s_lshl_b32 s89, s76, 2"); e("s_add_u32 s88, s88, s89"); e("s_add_u32 s88, s88, s38")
    e(f"s_mul_i32 s88, s88, {16*2560}"); e("s_mul_i32 s89, s5, 1280"); e("s_add_u32 s88, s88, s89")
    e("s_lshl_b32 s89, s74, 8"); e("s_add_u32 s88, s88, s89"); e("s_and_b32 s89, s37, 1"); e("s_lshl_b32 s89, s89, 7"); e("s_add_u32 s88, s88, s89")
    e("v_mul_u32_u24 v21, 2560, v4"); e("v_lshl_add_u32 v21, v3, 3, v21")
    e(f"v_mul_u32_u24 v2, {F2}, v0"); e(f"v_mul_u32_u24 v23, {4*F2}, v0")
    e("s_lshl_b32 s20, 1, s38"); e("s_xor_b32 s20, s20, 15"); e("s_mov_b32 s21, 0")
    e("v_mov_b32 v5, 0"); e("v_mov_b32 v6, 1")
    e.wait_all()
    fs()
    e.barrier()
    e("s_cmp_lg_u32 s37, 0"); e("s_cbranch_scc1 L_noflag")
    e("s_mov_b64 exec, 1")
    e(f"buffer_store_dword v6, v5, {S(SWS,4)}, s8 offen sc1")
    e("s_mov_b64 exec, -1")
    e.label("L_noflag")
    e("s_cmp_ge_u32 s4, 30"); e("s_cbranch_scc1 L_cdone")
    e("s_cmp_lg_u32 s37, 1"); e("s_cbranch_scc1 L_got1")
    e("s_mov_b64 exec, s[90:91]")
    e(f"s_mov_b32 s92, {SPIN}")
    e.label("L_poll1")
    e(f"buffer_load_dword v7, v{PA}, {S(SWS,4)}, s10 offen sc1")
    e.wait_all(lgkm=False)
    e("v_cmp_ne_u32 vcc, 1, v7")
    e("s_sub_u32 s92, s92, 1"); e("s_cbranch_scc1 L_to1")
    e("s_nop 1")
    e("s_cbranch_vccz L_to1")
    if g("psleep"): e(f"s_sleep {g('psleep')}")
    e("s_branch L_poll1")
    e.label("L_to1")
    e("s_mov_b64 exec, -1")
    e.label("L_got1")
    e.barrier()
    AF2, BF2, AC2 = 24, 56, 112
    def reads2(c, kk, st):
        slot = WO_SLOTS[c % 7]
        base = RA if slot < 4 else RA2
        ra = [f"ds_read_b64_tr_b16 {V(AF2 + st*16 + t*4 + j*2, 2)}, v{base+t} offset:{(slot & 3)*16384 + kk*8192 + j*4096}" for t in range(4) for j in range(2)]
        rb = [f"ds_read_b128 {V(BF2 + st*16 + u*4, 4)}, v{ORA+u} offset:{(c % 3)*16384 + kk*8192}" for u in range(4)]
        return ra[:2] + rb + ra[2:]
    def mfmas2(st, first):
        out = []
        for t in range(4):
            for u in range(4):
                d = V(AC2 + (t*4+u)*4, 4)
                out.append(f"{MF} {d}, {V(AF2 + st*16 + t*4, 4)}, {V(BF2 + st*16 + u*4, 4)}, {'0' if first else d}")
        return out
    e.barrier()
    fs()
    put(e, reads2(0, 0, 0))
    for c in range(15):
        interleave(e, mfmas2(0, c == 0), reads2(c, 1, 1), per=1)
        e.wait_lgkm(0); e.barrier()
        if c == 7: fs()
        interleave(e, mfmas2(1, False), reads2(c + 1, 0, 0), per=1)
    def ac2(t, u): return AC2 + (t*4+u)*4
    prog = reads2(15, 1, 1)
    m0, m1 = mfmas2(0, False), mfmas2(1, False)
    prog += [m0[t*4+u] for u in range(2) for t in range(4)]
    for u in range(4):
        if u >= 2: prog += [m0[t*4+u] for t in range(4)]
        prog += [m1[t*4+u] for t in range(4)]
        if u < 3:
            for tp in range(2):
                a, b = ac2(2*tp, u), ac2(2*tp+1, u)
                prog += [f"v_cvt_pk_bf16_f32 v{a}, v{a}, v{a+1}", f"v_cvt_pk_bf16_f32 v{a+1}, v{a+2}, v{a+3}",
                         f"v_cvt_pk_bf16_f32 v{a+2}, v{b}, v{b+1}", f"v_cvt_pk_bf16_f32 v{a+3}, v{b+2}, v{b+3}",
                         f"buffer_store_dwordx4 {V(a,4)}, v{LO}, {S(SWS,4)}, s{14+u} offen offset:{tp*1024} {st_p}"]
    order, tm = schedule(prog, verbose=g("verbose"))
    put(e, order)
    fs()
    e("s_mov_b64 exec, s[20:21]")
    e(f"buffer_load_dword v7, v2, {S(SWS,4)}, s11 offen sc1")
    e(f"s_mov_b32 s92, {SPIN}")
    e.wait_all(lgkm=False)
    e(f"buffer_store_dword v6, v23, {S(SWS,4)}, s9 offen sc1")
    fs()
    e.label("L_poll2")
    e("v_cmp_ne_u32 vcc, 1, v7")
    e("s_sub_u32 s92, s92, 1"); e("s_cbranch_scc1 L_got2")
    e("s_nop 1")
    e("s_cbranch_vccz L_got2")
    if g("psleep2"): e(f"s_sleep {g('psleep2')}")
    e(f"buffer_load_dword v7, v2, {S(SWS,4)}, s11 offen sc1")
    e.wait_all(lgkm=False)
    e("s_branch L_poll2")
    e.label("L_got2")
    e("s_mov_b64 exec, -1")
    fs()
    PK = 24
    for i in range(3):
        for tp in range(2):
            e(f"buffer_load_dwordx4 {V(PK + (i*2+tp)*4, 4)}, v{LO}, {S(SWS,4)}, s{17+i} offen offset:{tp*1024} {ld_p}")
    for i in range(3):
        for tp in range(2):
            for k in range(4):
                src = PK + (i*2+tp)*4 + k; d = ac2(2*tp + (k >> 1), 3) + (k & 1)*2
                e(f"v_lshlrev_b32 v{56 + 2*(k&1)}, 16, v{src}"); e(f"v_and_b32 v{57 + 2*(k&1)}, 0xffff0000, v{src}")
                e(f"v_pk_add_f32 {V(d,2)}, {V(d,2)}, {V(56 + 2*(k&1), 2)}")
                if i == 2 and k & 1:
                    t = 2*tp + (k >> 1); a = ac2(t, 3)
                    e(f"v_cvt_pk_bf16_f32 v{80+2*t}, v{a}, v{a+1}"); e(f"v_cvt_pk_bf16_f32 v{81+2*t}, v{a+2}, v{a+3}")
                    e(f"buffer_store_dwordx2 {V(80+2*t,2)}, v21, {S(SOUT,4)}, s88 offen offset:{t*32} {st_out}")
    e.label("L_cdone")
    fs.out(SWS)
    e.label("L_end")
    e("s_endpgm")
    return e

def build(opt, fn):
    K = NAME + "_kernel"
    e = kernel(opt)
    txt = header([(None, 256, 512, 163840)]) + kstart(K) + e.text() + RODATA + kdesc(K, 256, 102, 256)
    open(fn, "w").write(txt)
    return e

if __name__ == "__main__":
    e = build({"verbose": len(sys.argv) > 1}, "v6.s")
    print("nops", e.nops, "instrs", sum(e.count.values()))
```

```python
from emit import regs_of

def parse(x):
    mn, _, rest = x.partition(' ')
    ops = [set(regs_of(o.strip().split(' ')[0])) for o in rest.split(',')] if rest else []
    ops = [set(r for r in o if r[0] in 'va') for o in ops]
    allr = lambda l: set().union(*l) if l else set()
    if mn.startswith('v_mfma'): return 'm', ops[0], allr(ops[1:]), 8
    if mn.startswith('ds_read'): return 'd', ops[0], ops[1], 8
    if mn.startswith('ds_write'): return 'w', set(), allr(ops), 8
    if mn.startswith('buffer_store'): return 's', set(), allr(ops), 8
    if mn.startswith('buffer_load'): return 'l', ops[0], allr(ops[1:]), 8
    if mn == 'BAR': return 'b', set(), set(), 8
    if mn.startswith('s_'): return 'x', set(), set(), 4
    if 'permlane' in mn: return 'v', allr(ops), allr(ops), 4
    big = any(mn.startswith(p) for p in ('v_cvt_pk', 'v_max3', 'v_fma', 'v_pk', 'v_lshl_add', 'v_lshl_or', 'v_bfe')) or '0x' in rest
    if mn.startswith('v_exp') or mn.startswith('v_rcp'): return 't', ops[0], allr(ops[1:]), 4
    return 'v', ops[0], allr(ops[1:]), 8 if big else 4

LAT = {'m': 44, 'd': 130, 'v': 6, 't': 14, 'w': 4, 's': 4, 'b': 20, 'x': 4, 'l': 600}

def schedule(prog, extra=(), earliest=None, bonus=None, verbose=False):
    n = len(prog); P = [parse(x) for x in prog]
    succ = [[] for _ in range(n)]; npred = [0] * n
    def edge(i, j, lat):
        succ[i].append((j, lat)); npred[j] += 1
    lastw = {}; readers = {}
    for j, (k, d, s, b) in enumerate(P):
        deps = {}
        for r in s:
            if r in lastw:
                i = lastw[r]; lat = LAT[P[i][0]]
                if P[i][0] == 'm' and k == 'm' and r in d: lat = 16
                if P[i][0] in 'vt' and k == 'm': lat = max(lat, 12)
                if P[i][0] == 'v' and 'permlane' in prog[j]: lat = 12
                deps[i] = max(deps.get(i, 0), lat)
        for r in d:
            if r in lastw and lastw[r] not in deps:
                i = lastw[r]; deps[i] = max(deps.get(i, 0), LAT[P[i][0]] if P[i][0] in 'md' else 4)
            for i in readers.get(r, ()):
                if i != j: deps[i] = max(deps.get(i, 0), 12 if P[i][0] == 's' else 4)
        for i, lat in deps.items(): edge(i, j, lat)
        for r in s: readers.setdefault(r, []).append(j)
        for r in d: lastw[r] = j; readers[r] = []
    for i, j in extra: edge(i, j, LAT[P[i][0]] if P[i][0] in 'dwb' else 4)
    occ = {'m': 16, 'd': 8, 'v': 4, 't': 8, 'w': 8, 's': 16, 'b': 4, 'x': 4, 'l': 16}
    prio = [0] * n
    for i in range(n - 1, -1, -1):
        prio[i] = max([prio[j] + lat for j, lat in succ[i]], default=0) + (bonus or {}).get(i, 0)
    if bonus is None: prio = [-i for i in range(n)]
    ready_t = [(earliest or {}).get(i, 0) for i in range(n)]
    avail = [i for i in range(n) if npred[i] == 0]
    t = 0; valu = 0; mpipe = 0; lds = 0; fetch = 0.0; order = []
    while avail:
        best = None
        for i in avail:
            k = P[i][0]; st = max(t, ready_t[i])
            if k == 'm': st = max(st, mpipe, valu)
            elif k in 'vt': st = max(st, valu)
            elif k in 'dw': st = max(st, lds - 16)
            key = (st, 0 if k == 'm' else 1, -prio[i], i)
            if best is None or key < best[0]: best = (key, i, st)
        _, i, st = best
        k = P[i][0]
        if k in 'vt':
            ms = [j for j in avail if P[j][0] == 'm' and max(ready_t[j], mpipe) <= st + 1 ]
            if ms:
                i = max(ms, key=lambda j: (prio[j], -j)); k = 'm'; st = max(t, ready_t[i], mpipe, valu)
        fetch = max(fetch, st - 24) + P[i][3] / 1.5
        st = max(st, int(fetch) - 24)
        order.append(i); avail.remove(i)
        t = st + (occ[k] if k in 'sl' else 4)
        if k == 'm': mpipe = st + 16; valu = st + 8
        elif k in 'vt': valu = st + occ[k]
        elif k in 'dw': lds = max(lds, st) + (16 if 'b128' in prog[i] else 8)
        for j, lat in succ[i]:
            ready_t[j] = max(ready_t[j], st + lat); npred[j] -= 1
            if npred[j] == 0: avail.append(j)
        if verbose: print(st, prog[i][:70])
    assert len(order) == n
    return [prog[i] for i in order], t
```

```python
import gen6, gen4, sys
b4 = {"woplan": {"b9": 1, "bpv": 3}, "bpv_late": 2, "rot2": 6, "psleep": 2, "orders": gen6.O5, "kcls": [5, 3, 4, 2], "pk": 0}
gen4.build(b4, "../cdna_kernels/h0.s")
b = {"woplan": {"pre": 1}, "bv_t": 1700}
rest = [1,3,6,9,11,14,4,7,12,15]
one = [[c] for c in rest]
V = {
 "h1": {},
 "h2": {"woplan": {"pre": 1, "ba": 3}},
 "h3": {"spf": one, "woplan": {"pre": 1, "post": 2, "ba": 2}},
 "h4": {"spf": one, "woplan": {"pre": 1, "post": 2}},
 "h5": {"woplan": {"pre": 2}},
}
for k, v in V.items():
    e = gen6.build(dict(b, **v), "../cdna_kernels/" + k + ".s")
```

```python
import sys, math, struct
from asmlib import *
from emit import *
from sched import schedule

def f2u(x): return struct.unpack("<I", struct.pack("<f", x))[0]
SCALE = math.log2(math.e) / math.sqrt(128.0)
WS_O = 0
WS_P = 16 << 20
WS_F1 = 32 << 20
WS_F2 = 33 << 20
WS_ST = 64 << 20
X_BYTES, KV_BYTES, W_BYTES, OUT_BYTES, WS_BYTES = 983040, 6291456, 5242880, 1966080, 268435456
L_W, L_E, L_X = 0, 49152, 90112
L_K = 24576
def k_unit(T): return 0 if T == 5 else 24576 + T * 8192
L_V = L_X + 24576
L_O = L_V
L_Q = 0
WO_SLOTS = [2, 6, 0, 1, 3, 4, 5]
SPIN = 1 << 18
O5 = [[0,1,2,4,3,8,5,6,7,9],[0,2,1,3,6,4,5,7,8,9],[1,0,3,5,2,9,4,6,7,8],[1,3,0,2,7,4,5,6,8,9]]
DEFAULTS = dict(orders=O5, kcls=[5, 3, 4, 2], woplan={"pre": 1, "ba": 3}, rot2=6, psleep=2, fstride=64,
                nt_kv="nt", nt_w="", nt_x="", nt_wo="", st_o="sc1", ld_o="sc1", st_p="sc1", ld_p="sc1", st_out="")

def srd(e, r, lo, size):
    e(f"s_mov_b32 s{r}, s{lo}"); e(f"s_mov_b32 s{r+1}, s{lo+1}")
    e(f"s_mov_b32 s{r+2}, {size}"); e(f"s_mov_b32 s{r+3}, 0x20000")

class Fine:
    def __init__(self, e, opt): self.e, self.on, self.n = e, opt.get("fine"), 0
    def __call__(self):
        if not self.on: return
        assert self.n < 32
        self.e("s_memrealtime s[94:95]"); self.e("s_memtime s[98:99]"); self.e.wait_lgkm(0)
        self.e(f"v_writelane_b32 v1, s94, {self.n}")
        self.e(f"v_writelane_b32 v1, s98, {self.n + 32}")
        self.n += 1
    def out(self, sws, ld=0):
        if not self.on: return
        e = self.e
        e.wait_all(); self()
        e("s_lshl_b32 s97, s2, 3"); e("s_add_u32 s97, s97, s37"); e(f"s_add_u32 s97, s97, {4*ld}"); e("s_lshl_b32 s97, s97, 8"); e(f"s_add_u32 s97, s97, {WS_ST}")
        e("v_lshlrev_b32 v4, 2, v0")
        e(f"buffer_store_dword v1, v4, {S(sws,4)}, s97 offen")

def merge(a, b):
    out = []; i = j = 0
    while i < len(a) or j < len(b):
        if i < len(a): out.append(a[i]); i += 1
        if j < len(b): out.append(b[j]); j += 1
    return out

def ops_of(x):
    return [set(regs_of(o.strip().split(' ')[0])) for o in x.partition(' ')[2].split(',')]
def cost(x): return 2 if x.startswith("v_exp") or x.startswith("v_rcp") else 1
def weave(e, mf, fill, budget, ds=None, dsrate=1):
    fill = list(fill); acc = 0.0
    for i, m in enumerate(mf):
        o = ops_of(m); need = o[1] | o[2]
        last = max([k for k, x in enumerate(fill) if (x.startswith("ds_read") or x.startswith("v_mov")) and ops_of(x)[0] & need], default=-1)
        for _ in range(last + 1):
            acc -= cost(fill[0]); e(fill.pop(0))
        if ds:
            last = max([k for k, x in enumerate(ds) if ops_of(x)[0] & need], default=-1)
            for _ in range(last + 1): e(ds.pop(0))
        e(m); acc += budget
        if ds:
            e(ds.pop(0))
            if dsrate > 1 and ds: e(ds.pop(0))
        pend = set().union(*[ops_of(x)[0] for x in mf[max(0, i-2):]])
        while fill and acc >= cost(fill[0]):
            if fill[0].startswith("v_") and set().union(*ops_of(fill[0])[1:]) & pend:
                acc = min(acc, budget); break
            acc -= cost(fill[0]); e(fill.pop(0))
    return fill

MF = "v_mfma_f32_16x16x32_bf16"
SX, SK, SV, SW, SWS, SWO, SOUT, SDBG = 40, 44, 48, 52, 56, 60, 44, 64
SC = 96
SO = 68

class Tile:
    def __init__(self, u, q, st, ot, lt, kf, ones, LO, st_o):
        self.__dict__.update(locals())
    def s(self):
        return [f"{MF} {V(self.st[T],4)}, {V(self.kf(T*4+s),4)}, {V(self.q[s],4)}, {'0' if s == 0 else V(self.st[T],4)}" for T in range(6) for s in range(4)]
    def pv(self):
        o = [f"{MF} {V(self.lt,4)}, {V(self.ones,4)}, {V(self.q[s],4)}, {'0' if s == 0 else V(self.lt,4)}" for s in range(3)]
        return o + [f"{MF} {V(self.ot[t],4)}, {V(self.kf(t*3+s),4)}, {V(self.q[s],4)}, {'0' if s == 0 else V(self.ot[t],4)}" for t in range(8) for s in range(3)]
    def softmax(self):
        MX = self.q[3]; TM = MX + 2
        o = []
        vals = [self.st[T] + r for T in range(6) for r in range(4)]
        o.append(f"v_max3_f32 v{MX}, v{vals[0]}, v{vals[1]}, v{vals[2]}")
        o.append(f"v_max3_f32 v{TM}, v{vals[3]}, v{vals[4]}, v{vals[5]}")
        for i in range(6, 22, 4):
            o.append(f"v_max3_f32 v{MX}, v{MX}, v{vals[i]}, v{vals[i+1]}")
            o.append(f"v_max3_f32 v{TM}, v{TM}, v{vals[i+2]}, v{vals[i+3]}")
        o.append(f"v_max3_f32 v{MX}, v{MX}, v{vals[22]}, v{vals[23]}")
        o.append(f"v_max_f32 v{TM+1}, v{MX}, v{TM}"); o.append(f"v_max_f32 v{MX}, v{MX}, v{TM}")
        o.append(f"v_permlane16_swap_b32 v{TM+1}, v{MX}")
        o.append(f"v_max_f32 v{TM}, v{MX}, v{TM+1}"); o.append(f"v_max_f32 v{MX}, v{MX}, v{TM+1}")
        o.append(f"v_permlane32_swap_b32 v{TM}, v{MX}")
        o.append(f"v_max_f32 v{MX}, v{MX}, v{TM}")
        o.append(f"v_mul_f32 v{MX}, s{SC}, v{MX}")
        def cv(T): return [f"v_cvt_pk_bf16_f32 v{self.q[T>>1] + (T&1)*2 + (r>>1)}, v{self.st[T]+r}, v{self.st[T]+r+1}" for r in (0, 2)]
        for T in range(6):
            x = self.st[T]
            for r in range(4): o.append(f"v_fmamk_f32 v{x+r}, v{x+r}, {hex(f2u(SCALE))}, v{MX}")
            if T > 0: o += cv(T - 1)
            for r in range(4): o.append(f"v_exp_f32 v{x+r}, v{x+r}")
        return o + cv(5)
    def rcp(self): return [f"v_rcp_f32 v{self.lt}, v{self.lt}"]
    def out(self, sp):
        a, b = self.ot[2*sp], self.ot[2*sp+1]
        o = [f"v_mul_f32 v{a+r}, v{self.lt}, v{a+r}" for r in range(4)]
        o += [f"v_cvt_pk_bf16_f32 v{a}, v{a}, v{a+1}", f"v_cvt_pk_bf16_f32 v{a+1}, v{a+2}, v{a+3}"]
        o += [f"v_mul_f32 v{b+r}, v{self.lt}, v{b+r}" for r in range(4)]
        o += [f"v_cvt_pk_bf16_f32 v{a+2}, v{b}, v{b+1}", f"v_cvt_pk_bf16_f32 v{a+3}, v{b+2}, v{b+3}",
              f"buffer_store_dwordx4 {V(a,4)}, v{self.LO}, {S(SWS,4)}, s{SO+sp} offen offset:{self.u*1024} {self.st_o}"]
        if self.st_o == "skip": o.pop()
        return o
    def outs(self): return self.rcp() + sum([self.out(sp) for sp in range(4)], [])

def kernel(opt):
    opt = dict(DEFAULTS, **opt)
    e = E()
    g = opt.get
    nt_kv, nt_w, nt_x, nt_wo = g("nt_kv"), g("nt_w"), g("nt_x"), g("nt_wo")
    st_o, ld_o, st_p, ld_p, st_out = g("st_o"), g("ld_o"), g("st_p"), g("ld_p"), g("st_out")
    FS = g("fstride")
    F2 = g("f2stride", 128)
    e("s_load_dwordx16 s[8:23], s[0:1], 0")
    e("s_load_dwordx8 s[24:31], s[0:1], 64")
    e("s_load_dwordx2 s[32:33], s[0:1], 96")
    e("s_cmp_ge_u32 s2, 256"); e("s_cbranch_scc1 L_end")
    fs = Fine(e, opt)
    if g("fine"): e("s_memrealtime s[94:95]"); e("s_memtime s[98:99]")
    e("v_lshrrev_b32 v3, 6, v0"); e("v_and_b32 v0, 63, v0"); e("v_readfirstlane_b32 s36, v3")
    e("s_and_b32 s3, s2, 7"); e("s_lshr_b32 s4, s2, 3")
    e("s_lshr_b32 s5, s3, 2")
    e("s_and_b32 s38, s3, 3"); e("s_lshl_b32 s6, s38, 3"); e("s_and_b32 s39, s4, 7"); e("s_add_u32 s6, s6, s39")
    e("s_lshr_b32 s7, s4, 3")
    e("v_lshrrev_b32 v3, 4, v0"); e("v_and_b32 v4, 15, v0")
    e("s_and_b32 s37, s36, 3")
    e("s_lshl_b32 s72, s7, 2"); e("s_add_u32 s72, s72, s37")
    e("s_cmp_lt_u32 s36, 4"); e("s_cbranch_scc1 L_loader")
    e("s_getpc_b64 s[34:35]")
    e.label("L_pc")
    e("s_lshl_b32 s73, s39, 2"); e("s_add_u32 s73, s73, s37"); e("s_mul_i32 s73, s73, 1280")
    e("v_min_u32 v5, 9, v0"); e("v_lshl_add_u32 v5, v5, 7, s73")
    e("v_min_u32 v5, L_end-L_pc, v5")
    e("global_load_dword v2, v5, s[34:35]", tag="code")
    e("s_branch L_compute")
    st0 = (list(e.vm), e.smem_pending)
    def stamp0():
        if g("fine"):
            e("v_writelane_b32 v1, s94, 0"); e("v_writelane_b32 v1, s98, 32"); fs.n = 1
    def common():
        e("s_mul_i32 s73, s4, 52"); e("s_lshr_b32 s73, s73, 8")
        e("s_mul_i32 s74, s73, 5"); e("s_sub_u32 s74, s4, s74")
        e(f"s_mov_b32 s{SC}, {f2u(-SCALE)}")
    def o_offsets():
        e(f"s_lshl_b32 s{SO}, s5, 5"); e(f"s_add_u32 s{SO}, s{SO}, s6"); e(f"s_mul_i32 s{SO}, s{SO}, 192")
        e(f"s_mul_i32 s{SO+1}, s72, 3"); e(f"s_add_u32 s{SO}, s{SO}, s{SO+1}"); e(f"s_lshl_b32 s{SO}, s{SO}, 10")
        for sp in range(1, 4): e(f"s_add_u32 s{SO+sp}, s{SO}, {sp*48*1024}")
    def flag_offsets():
        e(f"s_mul_i32 s10, s3, {32*FS}"); e(f"s_add_u32 s10, s10, {WS_F1}")
        e(f"s_mul_i32 s8, s4, {FS}"); e("s_add_u32 s8, s8, s10")
        e("s_lshl_b32 s12, s5, 5"); e("s_add_u32 s12, s12, s4"); e("s_lshl_b32 s12, s12, 2"); e("s_add_u32 s12, s12, s37")
        e("s_lshl_b32 s12, s12, 2")
        e(f"s_mul_i32 s11, s12, {4*F2}"); e(f"s_add_u32 s11, s11, {WS_F2}")
        e(f"s_mul_i32 s9, s38, {F2}"); e("s_add_u32 s9, s9, s11")
        e(f"s_mul_i32 s13, s38, {4*F2}"); e("s_add_u32 s11, s11, s13")
    def tr_addr(dst, n, rowshift, xor=None, base=None):
        e("v_bfe_u32 v5, v0, 2, 2"); e("v_and_b32 v6, 1, v3"); e("v_lshl_or_b32 v6, v6, 2, v5")
        if xor: e(f"v_xor_b32 v6, {xor}, v6")
        e(f"v_lshl_add_u32 v5, v3, {rowshift}, v5"); e("v_lshlrev_b32 v5, 8, v5")
        e("v_and_b32 v7, 3, v0"); e("v_lshl_add_u32 v5, v7, 3, v5")
        if base: e(f"v_add_u32 v5, {base}, v5")
        for t in range(n):
            e(f"v_xor_b32 v7, {t}, v6"); e(f"v_lshl_add_u32 v{dst+t}, v7, 5, v5")
    def k_addr(dst, item):
        e("v_lshrrev_b32 v5, 1, v3"); e("v_xor_b32 v5, v5, v4"); e("v_lshlrev_b32 v5, 4, v5"); e("v_lshl_add_u32 v5, v4, 8, v5")
        e("v_and_b32 v6, 1, v3"); e("v_lshl_add_u32 v5, v6, 3, v5")
        e(f"s_lshl_b32 s86, {item}, 12"); e(f"s_add_u32 s86, s86, {L_K}"); e(f"v_add_u32 v{dst}, s86, v5")
    def k_reads(kf, KA):
        return [f"ds_read_b64 {V(kf(T*4+s) + 2*u, 2)}, v{KA + 2*s + u} offset:{k_unit(T)}" for T in range(6) for s in range(4) for u in range(2)]
    def v_reads(kf, VA):
        return [f"ds_read_b64_tr_b16 {V(kf(t*3+s) + 2*j, 2)}, v{VA+t} offset:{(2*s+j)*4096}" for t in range(8) for s in range(3) for j in range(2)]

    e.label("L_loader")
    e.vm = []
    WQVO, XVO, KVO, LO, VVO, WVO, KS = 8, 12, 18, 22, 23, 25, 32
    e("s_lshl_b32 s75, s37, 4")
    e("v_add_u32 v5, s75, v3"); e("v_lshlrev_b32 v5, 13, v5")
    e("v_lshlrev_b32 v6, 1, v3"); e("v_xor_b32 v6, v6, v4"); e(f"v_lshl_add_u32 v{WQVO}, v6, 4, v5")
    e(f"v_add_u32 v{WQVO+1}, {4*8192 - 1024}, v{WQVO}"); e(f"v_xor_b32 v6, 128, v{WQVO}")
    e(f"v_add_u32 v{WQVO+2}, {8*8192 - 2048}, v6"); e(f"v_add_u32 v{WQVO+3}, {12*8192 - 3072}, v6")
    e("v_lshrrev_b32 v5, 3, v0"); e("v_and_b32 v6, 7, v0"); e("v_xor_b32 v6, v6, v3")
    e("v_mul_u32_u24 v5, 1280, v5"); e(f"v_lshl_add_u32 v{XVO}, v6, 4, v5"); e(f"v_xor_b32 v6, 64, v{XVO}")
    for m in range(1, 6):
        e(f"v_add_u32 v{XVO+m}, {8*m*1280 - (m % 3)*1024}, v{6 if m & 1 else XVO}")
    e(f"s_mul_i32 s76, s72, {48*1280}")
    e("s_lshl_b32 s77, s6, 8")
    e("s_lshl_b32 s78, s37, 12")
    e("s_mul_i32 s79, s37, 6144"); e(f"s_add_u32 s79, s79, {L_X}")
    orders = g("orders")
    e("s_sub_u32 s100, s7, s39"); e("s_and_b32 s100, s100, 3")
    pk = [sum(c << (4*i) for i, c in enumerate(o)) for o in orders]
    for o in orders: assert sorted(o) == list(range(10))
    e(f"s_mov_b32 s92, {pk[0] & 0xffffffff}"); e(f"s_mov_b32 s93, {pk[0] >> 32}")
    for i in range(1, 4):
        e(f"s_cmp_eq_u32 s100, {i}"); e(f"s_cselect_b32 s92, {pk[i] & 0xffffffff}, s92"); e(f"s_cselect_b32 s93, {pk[i] >> 32}, s93")
    for r, sz in ((SW, W_BYTES), (SX, X_BYTES), (SK, KV_BYTES), (SV, KV_BYTES), (SWO, W_BYTES)):
        e(f"s_mov_b32 s{r+2}, {sz}"); e(f"s_mov_b32 s{r+3}, 0x20000")
    def chunk_pre(c):
        e(f"s_bfe_u32 s80, s{92 + c // 8}, {(4 << 16) | (4 * (c % 8))}")
        e("s_lshl_b32 s81, s80, 19"); e("s_add_u32 s82, s77, s81")
        e(f"s_add_u32 m0, s78, {L_W + (c % 3)*16384}")
        e("s_lshl_b32 s81, s80, 7"); e("s_add_u32 s83, s76, s81")
    def chunk_go(c):
        for k in range(4):
            e(f"buffer_load_dwordx4 v{WQVO+k}, {S(SW,4)}, s82 offen offset:{k*1024} {nt_w} lds", tag=f"c{c}")
        for m in range(6):
            if m % 3 == 0:
                e(f"s_add_u32 m0, s79, {(c % 3)*24576 + (m//3)*3072}")
            e(f"buffer_load_dwordx4 v{XVO+m}, {S(SX,4)}, s83 offen offset:{(m%3)*1024} {nt_x} lds", tag=f"c{c}")
    chunk_pre(0)
    e.wait_lgkm(0)
    e("s_cmp_eq_u32 s5, 0")
    e(f"s_cselect_b64 {S(SW,2)}, s[14:15], s[24:25]"); e(f"s_cselect_b64 {S(SX,2)}, s[8:9], s[18:19]")
    e(f"s_cselect_b64 {S(SK,2)}, s[10:11], s[20:21]"); e(f"s_cselect_b64 {S(SV,2)}, s[12:13], s[22:23]"); e(f"s_cselect_b64 {S(SWO,2)}, s[16:17], s[26:27]")
    chunk_go(0)
    stamp0(); fs()
    srd(e, SWS, 32, WS_BYTES); srd(e, SDBG, 30, 256)
    common()
    e(f"v_lshlrev_b32 v{LO}, 4, v0")
    e("s_lshr_b32 s84, s72, 1"); e("s_lshl_b32 s84, s84, 5"); e("s_add_u32 s84, s84, s6"); e("s_mul_i32 s84, s84, 24576")
    e("s_and_b32 s85, s37, 1"); e("s_lshl_b32 s86, s85, 11"); e("s_add_u32 s84, s84, s86")
    e("v_xor_b32 v5, v3, v4"); e("v_lshlrev_b32 v5, 4, v5"); e("v_lshl_add_u32 v5, v3, 8, v5")
    e("s_lshl_b32 s86, s85, 7"); e(f"v_xor_b32 v{KVO}, s86, v5"); e(f"v_xor_b32 v{KVO+1}, 64, v{KVO}")
    e("s_lshl_b32 s101, s37, 11"); e(f"s_add_u32 s101, s101, {L_K}")
    e("s_lshl_b32 s87, s7, 6"); e("s_add_u32 s87, s87, s6"); e("s_mul_i32 s87, s87, 24576"); e("s_mul_i32 s86, s37, 6144"); e("s_add_u32 s87, s87, s86")
    e("v_lshlrev_b32 v5, 1, v3"); e("v_xor_b32 v5, v5, v4"); e("v_lshlrev_b32 v5, 4, v5"); e(f"v_lshl_add_u32 v{VVO}, v3, 8, v5")
    e(f"v_xor_b32 v{VVO+1}, 128, v{VVO}")
    e("v_add_u32 v5, s75, v3"); e("v_mul_u32_u24 v5, 1280, v5")
    for k in range(4):
        e(f"v_or_b32 v6, {(k & 1) << 2}, v3"); e("v_lshlrev_b32 v6, 1, v6"); e("v_xor_b32 v6, v6, v4")
        e(f"v_lshl_add_u32 v6, v6, 4, v5")
        e(f"v_add_u32 v{WVO+k}, {4*k*1280 - k*1024}, v6")
    e(f"s_mul_i32 s88, s38, {1024*1280}"); e("s_lshl_b32 s86, s74, 8"); e("s_add_u32 s88, s88, s86")
    e(f"s_mul_i32 s89, s3, {32*49152}"); e("s_lshl_b32 s86, s73, 13"); e("s_add_u32 s89, s89, s86")
    e("s_lshr_b32 s34, s37, 1"); e("s_mul_i32 s86, s34, 49152"); e("s_add_u32 s89, s89, s86")
    e("s_lshl_b32 s86, s85, 12"); e("s_add_u32 s89, s89, s86")
    rot2 = g("rot2")
    e("s_mul_i32 s90, s73, 171"); e("s_lshr_b32 s90, s90, 6")
    if rot2 == 62:
        e("s_and_b32 s91, s74, 1"); e("s_lshl_b32 s91, s91, 3"); e("s_add_u32 s90, s90, s91")
    e("s_and_b32 s90, s90, 15"); e("s_mov_b32 s91, s90")
    e("v_and_b32 v30, 7, v0"); e("v_lshlrev_b32 v30, 5, v30")
    flag_offsets()
    e("v_mov_b32 v5, 0"); e(f"v_mul_u32_u24 v6, {4*F2}, v0")
    e("s_mov_b64 exec, 15")
    e(f"buffer_store_dword v5, v6, {S(SWS,4)}, s9 offen sc1", tag="clr")
    e("s_mov_b64 exec, 1")
    e(f"buffer_store_dword v5, v5, {S(SWS,4)}, s8 offen sc1", tag="clr")
    e("s_mov_b64 exec, -1")
    kn = [0]
    def k_load(cnt):
        first = kn[0]
        for _ in range(cnt):
            n = kn[0]; kn[0] += 1
            if n >= 10:
                e(f"buffer_load_dwordx4 {V(KS + 4*(n-10), 4)}, v{KVO + (n&1)}, {S(SK,4)}, s84 offen offset:{(n&1)*1024} {nt_kv}", tag="k")
                continue
            if n & 1 == 0 or n == first: e(f"s_add_u32 m0, s101, {k_unit(n >> 1)}")
            e(f"buffer_load_dwordx4 v{KVO + (n&1)}, {S(SK,4)}, s84 offen offset:{(n&1)*1024} {nt_kv} lds", tag="k")
            if n & 1: e("s_add_u32 s84, s84, 4096")
    def v_dma(i, lo, hi):
        for n in range(lo, hi):
            if n == lo or n % 4 == 0:
                e(f"s_add_u32 m0, s79, {24576*(1+i) + (n>>2)*4096}")
                e(f"s_add_u32 s86, s87, {i*32*24576 + (n>>2)*4096}")
            e(f"buffer_load_dwordx4 v{VVO + (n&1)}, {S(SV,4)}, s86 offen offset:{(n&3)*1024} {nt_kv} lds", tag="v")
    wn = [0]
    def wo(cnt):
        for _ in range(cnt):
            c = wn[0]; wn[0] += 1
            e(f"s_mul_i32 s86, s90, {64*1280}"); e("s_add_u32 s86, s86, s88")
            e(f"s_add_u32 m0, s78, {WO_SLOTS[c % 7]*16384}")
            e("s_add_u32 s90, s90, 1"); e("s_and_b32 s90, s90, 15")
            for k in range(4):
                e(f"buffer_load_dwordx4 v{WVO+k}, {S(SWO,4)}, s86 offen offset:{k*1024} {nt_wo} lds", tag=f"w{c}")
    def o_pre(c):
        e(f"s_mul_i32 s81, s91, {2*49152}"); e("s_add_u32 s81, s81, s89")
        e(f"s_add_u32 m0, s78, {L_O + (c % 3)*16384}")
        e("s_add_u32 s91, s91, 1"); e("s_and_b32 s91, s91, 15")
    def o_go(c):
        for k in range(4):
            e(f"buffer_load_dwordx4 v{LO}, {S(SWS,4)}, s81 offen offset:{k*1024} {ld_o} lds", tag=f"o{c}")
    woplan = g("woplan")
    spf = list(g("spf") or [])
    if spf:
        e("s_lshl_b32 s14, s4, 2"); e("s_add_u32 s14, s14, s37"); e("s_mul_i32 s14, s14, 640")
        e(f"s_mul_i32 s15, s38, {1024*1280}"); e("s_add_u32 s14, s14, s15")
        e(f"s_add_u32 s14, s14, s{SWO}"); e(f"s_addc_u32 s15, s{SWO+1}, 0")
        e(f"s_add_u32 s16, s14, {8*81920}"); e("s_addc_u32 s17, s15, 0")
    def prefetch(slot):
        if slot < len(spf):
            for ch in spf[slot]:
                for i in range(10):
                    e(f"s_load_dword s18, {S(14 + 2*(ch >> 3), 2)}, {(ch & 7)*81920 + (i*128) % 640 + 64*(i // 5)}")
    kcls = g("kcls")
    chunk_pre(1); chunk_go(1); chunk_pre(2)
    e.wait_vm_tag("c0"); fs(); e.barrier()
    chunk_go(2)
    prefetch(0)
    def front(kc, c0, c1, nxt):
        for c in range(c0, c1):
            pre = c != kc and nxt <= min(c + 3, 9)
            if pre: chunk_pre(nxt)
            e.wait_vm_tag(f"c{c+1}", lgkm=0 if c == 8 else None)
            if g("fine") == 2: fs()
            e.barrier()
            if c == 4 or g("fine") == 2: fs()
            if c == kc: k_load(12)
            else:
                while nxt <= min(c + 3, 9):
                    if not pre: chunk_pre(nxt)
                    chunk_go(nxt); nxt += 1; pre = False
            if c == 7:
                assert kn[0] == 12
                v_dma(0, 0, 6)
                e(f"v_add_u32 v5, s101, v{LO}")
                for n in range(2): e(f"ds_write_b128 v5, {V(KS + 4*n, 4)} offset:{k_unit(5) + n*1024}")
            if c == 8:
                v_dma(1, 0, 4)
            prefetch(c + 1)
        return nxt
    c0 = min(kcls)
    nxt = front(-1, 0, c0, 3)
    st = (list(e.vm), fs.n)
    uniq = sorted(set(kcls))
    for i, kc in enumerate(kcls):
        if uniq.index(kc) > 0:
            e(f"s_cmp_eq_u32 s100, {i}"); e(f"s_cbranch_scc1 L_kc{uniq.index(kc)}")
    ends = []
    for i, kc in enumerate(uniq):
        e.label(f"L_kc{i}")
        e.vm, fs.n = list(st[0]), st[1]; kn[0] = 0
        front(kc, c0, 9, nxt)
        ends.append([t for t, _ in e.vm])
        if i + 1 < len(uniq): e("s_branch L_kj")
    assert all(x == ends[0] for x in ends) and set(ends[0]) == {"v"}, ends
    e.label("L_kj")
    if g("fine") == 2: fs()
    e.barrier()
    fs()
    v_dma(1, 4, 6)
    e(f"buffer_load_dword v31, v30, {S(SDBG,4)}, 0 offen sc1", tag="cnt")
    wo(woplan.get("pre", 0))
    prefetch(10)
    e.wait_vm_tag("v"); fs(); e.barrier()
    prefetch(11)
    e("v_cmp_gt_u32 vcc, 32, v31")
    e(f"s_mov_b32 s92, {SPIN}")
    e("s_nop 1")
    e("s_cbranch_vccz L_got0")
    stw = list(e.vm)
    e.label("L_poll0")
    e(f"buffer_load_dword v7, v30, {S(SDBG,4)}, 0 offen sc1")
    e.wait_all(lgkm=False)
    e("v_cmp_gt_u32 vcc, 32, v7")
    e("s_sub_u32 s92, s92, 1"); e("s_cbranch_scc1 L_got0")
    e("s_nop 1")
    e("s_cbranch_vccnz L_poll0")
    e.label("L_got0")
    e.vm = stw
    fs()
    wo(woplan.get("post", 0))
    assert wn[0] <= 3
    fs(); e.barrier()
    e("s_cmp_ge_u32 s4, 30"); e("s_cbranch_scc1 L_ldone")
    wo(woplan.get("ba", 0))
    o_pre(0)
    fs(); e.barrier()
    fs()
    o_go(0)
    if wn[0] <= 0: wo(1)
    o_pre(1); o_go(1)
    if wn[0] <= 1: wo(1)
    o_pre(2)
    e.wait_vm_tag(["o0", "w0"]); e.barrier()
    o_go(2)
    if wn[0] <= 2: wo(1)
    for c in range(15):
        if c + 3 < 16: o_pre(c + 3)
        e.wait_vm_tag([f"o{c+1}", f"w{c+1}"]); e.barrier()
        if c + 3 < 16: o_go(c + 3)
        if wn[0] < 16 and wn[0] <= c + 7: wo(1)
    e.label("L_ldone")
    fs.out(SWS, 1)
    e("s_endpgm")

    e.label("L_compute")
    e.vm, e.smem_pending = list(st0[0]), st0[1]
    e.lgkm = []
    common(); o_offsets()
    WQRA, XRA, PA, LO, VD, KA = 8, 16, 20, 22, 23, 248
    AF, BF, ACC, SP = 24, 88, 112, 208
    tr_addr(WQRA, 8, 3)
    e(f"s_mul_i32 s75, s37, 6144"); e(f"s_add_u32 s75, s75, {L_X}")
    e("v_lshrrev_b32 v5, 1, v4"); e("v_xor_b32 v5, v5, v3"); e("v_lshlrev_b32 v5, 4, v5")
    e("v_lshl_add_u32 v5, v4, 7, v5"); e(f"v_add_u32 v{XRA}, s75, v5"); e(f"v_xor_b32 v5, 64, v5"); e(f"v_add_u32 v{XRA+1}, s75, v5")
    e("s_lshr_b32 s76, s37, 1")
    k_addr(KA, "s76")
    for x in range(1, 8): e(f"v_xor_b32 v{KA + x}, {x << 5}, v{KA}")
    e("s_mul_i32 s77, s76, 24576"); e(f"s_add_u32 s77, s77, {L_V}")
    e("v_lshlrev_b32 v5, 10, v3"); e(f"v_sub_u32 v{VD}, s77, v5")
    e(f"v_lshlrev_b32 v{LO}, 4, v0")
    e(f"s_mul_i32 s92, s4, {FS}")
    e("s_lshl_b32 s86, s73, 3"); e("s_mul_i32 s87, s86, 43"); e("s_lshr_b32 s87, s87, 9")
    e("s_add_u32 s86, s86, 7"); e("s_mul_i32 s86, s86, 43"); e("s_lshr_b32 s86, s86, 9")
    e("v_bfe_u32 v5, v0, 3, 1"); e("v_add_u32 v5, s87, v5"); e("v_min_u32 v5, s86, v5")
    e("v_and_b32 v6, 7, v0"); e("v_lshl_add_u32 v5, v5, 3, v6"); e(f"v_mul_u32_u24 v{PA}, {FS}, v5")
    e(f"v_cmp_ne_u32 s[90:91], s92, v{PA}"); e("s_and_b64 s[90:91], s[90:91], 0xffff")
    e.wait_lgkm(0)
    stamp0()
    srd(e, SWS, 32, WS_BYTES); srd(e, SOUT, 28, OUT_BYTES); srd(e, SDBG, 30, 256)
    flag_offsets()
    e("v_mov_b32 v5, 0"); e("v_mov_b32 v6, 1")
    e("s_lshl_b32 s86, s3, 5")
    fs()
    e.barrier()
    fs()
    def bump():
        e("s_cmp_lg_u32 s37, 0"); e("s_cbranch_scc1 L_noinc")
        e("s_mov_b64 exec, 1")
        e(f"buffer_atomic_add v6, v5, {S(SDBG,4)}, s86 offen sc1"); e.vm = []
        e("s_mov_b64 exec, -1")
        e.label("L_noinc")
    def reads(c, kk, st):
        slot = c % 3
        rb = [f"ds_read_b128 {V(BF + st*12 + u*4, 4)}, v{XRA+kk} offset:{slot*24576 + u*2048}" for u in range(3)]
        ra = [f"ds_read_b64_tr_b16 {V(AF + st*32 + t*4 + j*2, 2)}, v{WQRA+t} offset:{slot*16384 + kk*8192 + j*1024}" for t in range(8) for j in range(2)]
        return ra[:2] + rb + ra[2:]
    def acc(t, u): return ACC + (t*3+u)*4
    def mfmas(st, first, prs=None):
        prs = prs or [(t, u) for t in range(8) for u in range(3)]
        return [f"{MF} {V(acc(t,u),4)}, {V(AF + st*32 + t*4, 4)}, {V(BF + st*12 + u*4, 4)}, {'0' if first else V(acc(t,u),4)}" for t, u in prs]
    def kf(n): return SP + 4*n if n < 10 else AF + 4*(n - 10)
    kr = k_reads(kf, KA)
    def tail(rd, extra):
        return rd + [extra[i:i+2] for i in range(0, len(extra), 2)]
    put(e, reads(0, 0, 0))
    for c in range(10):
        interleave(e, mfmas(0, c == 0), tail(reads(c, 1, 1), kr[10:20] if c == 9 else []), per=1)
        if c == 2: e.settle(); bump()
        e.wait_lgkm(10 if c == 9 else 0); e.barrier()
        if c in (4, 9): fs()
        if c < 9:
            interleave(e, mfmas(1, False), tail(reads(c + 1, 0, 0), kr[:10] if c == 8 else []), per=1)
    def qcvt(u):
        o = []
        for s in range(4):
            a, b = acc(2*s, u), acc(2*s+1, u)
            o += [f"v_cvt_pk_bf16_f32 v{a}, v{a}, v{a+1}", f"v_cvt_pk_bf16_f32 v{a+1}, v{a+2}, v{a+3}",
                  f"v_cvt_pk_bf16_f32 v{a+2}, v{b}, v{b+1}", f"v_cvt_pk_bf16_f32 v{a+3}, v{b+2}, v{b+3}"]
        return o
    ONE = 16
    odd = [acc(t, u) for u in range(3) for t in (1, 3, 5, 7)]
    sts = [[80, 84, 88, 92, 96, 100], odd[:6], odd[6:]]
    xtra = [[104, 108], [KA, KA + 4], [acc(0, 0), acc(2, 0)]]
    T = [Tile(u, [acc(2*s, u) for s in range(4)], sts[u], sts[u] + xtra[u], acc(6, u), kf, ONE, LO, st_o) for u in range(3)]
    prog = mfmas(1, False, [(t, u) for u in range(3) for t in range(8)]) + kr[20:] + qcvt(0) + qcvt(1) + qcvt(2)
    prog += [f"v_add_u32 v{WQRA+t}, v{VD}, v{WQRA+t}" for t in range(8)] + [f"v_mov_b32 v{ONE + r}, 0x3f803f80" for r in range(4)]
    prog += T[0].s() + T[0].softmax() + T[1].s() + T[2].s()
    ib = len(prog); prog.append("BAR V")
    vr = v_reads(kf, WQRA)
    extra = [(ib, ib + 1 + k) for k in range(len(vr))]
    prog += vr
    bonus = {}
    for u in range(3):
        if u: prog += T[u].softmax()
        prog += T[u].pv()
        n0 = len(prog); prog += T[u].outs()
        for k in range(n0, len(prog)):
            if prog[k].startswith("buffer_store"): bonus[k] = g("obonus", (1500, 700, 0))[u]
    order, tm = schedule(prog, extra, {ib: g("bv_t", 1500)}, None, verbose=g("verbose"))
    if g("verbose"): print("model cycles", tm)
    for x in order:
        if x == "BAR V":
            fs(); e.barrier(); fs()
        else: e(x)
    fs()
    RA, RA2, ORA = 8, 12, 16
    e("s_and_b32 s86, s37, 1"); e("s_lshl_b32 s86, s86, 2")
    tr_addr(RA, 4, 2, xor="s86")
    for t in range(4): e(f"v_add_u32 v{RA2+t}, 0x10000, v{RA+t}")
    e("s_lshl_b32 s87, s76, 12"); e(f"s_add_u32 s87, s87, {L_O}")
    e("s_lshl_b32 s13, s12, 13"); e(f"s_add_u32 s13, s13, {WS_P}")
    for u in range(4):
        e(f"s_add_u32 s86, s38, {u + 1}"); e("s_and_b32 s86, s86, 3")
        if u < 3:
            e(f"s_lshl_b32 s{14+u}, s86, 13"); e(f"s_lshl_b32 s{17+u}, s86, 11")
        e("s_lshl_b32 s86, s86, 10"); e("s_add_u32 s86, s86, s87"); e(f"v_add_u32 v{ORA+u}, s86, v{LO}")
    e("s_lshl_b32 s86, s38, 11"); e("s_add_u32 s86, s86, s13"); e("s_lshl_b32 s87, s38, 13"); e("s_add_u32 s87, s87, s13")
    for u in range(3):
        e(f"s_add_u32 s{14+u}, s{14+u}, s86"); e(f"s_add_u32 s{17+u}, s{17+u}, s87")
    e("s_lshl_b32 s88, s73, 3"); e("s_lshl_b32 s89, s76, 2"); e("s_add_u32 s88, s88, s89"); e("s_add_u32 s88, s88, s38")
    e(f"s_mul_i32 s88, s88, {16*2560}"); e("s_mul_i32 s89, s5, 1280"); e("s_add_u32 s88, s88, s89")
    e("s_lshl_b32 s89, s74, 8"); e("s_add_u32 s88, s88, s89"); e("s_and_b32 s89, s37, 1"); e("s_lshl_b32 s89, s89, 7"); e("s_add_u32 s88, s88, s89")
    e("v_mul_u32_u24 v21, 2560, v4"); e("v_lshl_add_u32 v21, v3, 3, v21")
    e(f"v_mul_u32_u24 v2, {F2}, v0"); e(f"v_mul_u32_u24 v23, {4*F2}, v0")
    e("s_lshl_b32 s20, 1, s38"); e("s_xor_b32 s20, s20, 15"); e("s_mov_b32 s21, 0")
    e("v_mov_b32 v5, 0"); e("v_mov_b32 v6, 1")
    e.wait_all()
    fs()
    e.barrier()
    e("s_cmp_lg_u32 s37, 0"); e("s_cbranch_scc1 L_noflag")
    e("s_mov_b64 exec, 1")
    e(f"buffer_store_dword v6, v5, {S(SWS,4)}, s8 offen sc1")
    e("s_mov_b64 exec, -1")
    e.label("L_noflag")
    e("s_cmp_ge_u32 s4, 30"); e("s_cbranch_scc1 L_cdone")
    e("s_cmp_lg_u32 s37, 1"); e("s_cbranch_scc1 L_got1")
    e("s_mov_b64 exec, s[90:91]")
    e(f"s_mov_b32 s92, {SPIN}")
    e.label("L_poll1")
    e(f"buffer_load_dword v7, v{PA}, {S(SWS,4)}, s10 offen sc1")
    e.wait_all(lgkm=False)
    e("v_cmp_ne_u32 vcc, 1, v7")
    e("s_sub_u32 s92, s92, 1"); e("s_cbranch_scc1 L_to1")
    e("s_nop 1")
    e("s_cbranch_vccz L_to1")
    if g("psleep"): e(f"s_sleep {g('psleep')}")
    e("s_branch L_poll1")
    e.label("L_to1")
    e("s_mov_b64 exec, -1")
    e.label("L_got1")
    e.barrier()
    AF2, BF2, AC2 = 24, 56, 112
    def reads2(c, kk, st):
        slot = WO_SLOTS[c % 7]
        base = RA if slot < 4 else RA2
        ra = [f"ds_read_b64_tr_b16 {V(AF2 + st*16 + t*4 + j*2, 2)}, v{base+t} offset:{(slot & 3)*16384 + kk*8192 + j*4096}" for t in range(4) for j in range(2)]
        rb = [f"ds_read_b128 {V(BF2 + st*16 + u*4, 4)}, v{ORA+u} offset:{(c % 3)*16384 + kk*8192}" for u in range(4)]
        return ra[:2] + rb + ra[2:]
    def mfmas2(st, first):
        out = []
        for t in range(4):
            for u in range(4):
                d = V(AC2 + (t*4+u)*4, 4)
                out.append(f"{MF} {d}, {V(AF2 + st*16 + t*4, 4)}, {V(BF2 + st*16 + u*4, 4)}, {'0' if first else d}")
        return out
    e.barrier()
    fs()
    put(e, reads2(0, 0, 0))
    for c in range(15):
        interleave(e, mfmas2(0, c == 0), reads2(c, 1, 1), per=1)
        e.wait_lgkm(0); e.barrier()
        if c == 7: fs()
        interleave(e, mfmas2(1, False), reads2(c + 1, 0, 0), per=1)
    def ac2(t, u): return AC2 + (t*4+u)*4
    prog = reads2(15, 1, 1)
    m0, m1 = mfmas2(0, False), mfmas2(1, False)
    prog += [m0[t*4+u] for u in range(2) for t in range(4)]
    for u in range(4):
        if u >= 2: prog += [m0[t*4+u] for t in range(4)]
        prog += [m1[t*4+u] for t in range(4)]
        if u < 3:
            for tp in range(2):
                a, b = ac2(2*tp, u), ac2(2*tp+1, u)
                prog += [f"v_cvt_pk_bf16_f32 v{a}, v{a}, v{a+1}", f"v_cvt_pk_bf16_f32 v{a+1}, v{a+2}, v{a+3}",
                         f"v_cvt_pk_bf16_f32 v{a+2}, v{b}, v{b+1}", f"v_cvt_pk_bf16_f32 v{a+3}, v{b+2}, v{b+3}",
                         f"buffer_store_dwordx4 {V(a,4)}, v{LO}, {S(SWS,4)}, s{14+u} offen offset:{tp*1024} {st_p}"]
    order, tm = schedule(prog, verbose=g("verbose"))
    put(e, order)
    fs()
    e("s_mov_b64 exec, s[20:21]")
    e(f"buffer_load_dword v7, v2, {S(SWS,4)}, s11 offen sc1")
    e(f"s_mov_b32 s92, {SPIN}")
    e.wait_all(lgkm=False)
    e(f"buffer_store_dword v6, v23, {S(SWS,4)}, s9 offen sc1")
    fs()
    e.label("L_poll2")
    e("v_cmp_ne_u32 vcc, 1, v7")
    e("s_sub_u32 s92, s92, 1"); e("s_cbranch_scc1 L_got2")
    e("s_nop 1")
    e("s_cbranch_vccz L_got2")
    if g("psleep2"): e(f"s_sleep {g('psleep2')}")
    e(f"buffer_load_dword v7, v2, {S(SWS,4)}, s11 offen sc1")
    e.wait_all(lgkm=False)
    e("s_branch L_poll2")
    e.label("L_got2")
    e("s_mov_b64 exec, -1")
    fs()
    PK = 24
    for i in range(3):
        for tp in range(2):
            e(f"buffer_load_dwordx4 {V(PK + (i*2+tp)*4, 4)}, v{LO}, {S(SWS,4)}, s{17+i} offen offset:{tp*1024} {ld_p}")
    for i in range(3):
        for tp in range(2):
            for k in range(4):
                src = PK + (i*2+tp)*4 + k; d = ac2(2*tp + (k >> 1), 3) + (k & 1)*2
                e(f"v_lshlrev_b32 v{56 + 2*(k&1)}, 16, v{src}"); e(f"v_and_b32 v{57 + 2*(k&1)}, 0xffff0000, v{src}")
                e(f"v_pk_add_f32 {V(d,2)}, {V(d,2)}, {V(56 + 2*(k&1), 2)}")
                if i == 2 and k & 1:
                    t = 2*tp + (k >> 1); a = ac2(t, 3)
                    e(f"v_cvt_pk_bf16_f32 v{80+2*t}, v{a}, v{a+1}"); e(f"v_cvt_pk_bf16_f32 v{81+2*t}, v{a+2}, v{a+3}")
                    e(f"buffer_store_dwordx2 {V(80+2*t,2)}, v21, {S(SOUT,4)}, s88 offen offset:{t*32} {st_out}")
    e.label("L_cdone")
    fs.out(SWS)
    e.label("L_end")
    e("s_endpgm")
    return e

def kdiag(opt):
    e = E()
    e("s_cmp_ge_u32 s2, 1"); e("s_cbranch_scc1 L9_end")
    e("s_load_dwordx2 s[10:11], s[0:1], 96")
    e.wait_lgkm(0)
    srd(e, 12, 10, WS_BYTES)
    e("v_lshrrev_b32 v1, 2, v0"); e("v_lshlrev_b32 v1, 11, v1"); e("v_and_b32 v2, 3, v0"); e("v_lshl_add_u32 v1, v2, 8, v1")
    for i, (field, op) in enumerate(opt["diag"]):
        for k in range(15):
            e(f"s_mov_b32 s4, {WS_ST + k*16*2048 + field*4}")
            e(f"buffer_load_dword v{8+k}, v1, s[12:15], s4 offen")
        for k in range(1, 15):
            e(f"v_{op}_u32 v8, v8, v{8+k}")
        e("v_readlane_b32 s20, v8, 0")
        for l in range(1, 64):
            e(f"v_readlane_b32 s21, v8, {l}"); e(f"s_{op}_u32 s20, s20, s21")
        e(f"s_mov_b32 s{22+i}, s20")
    e("s_sub_u32 s24, s23, s22"); e("s_min_u32 s24, s24, 10000"); e(f"s_lshl_b32 s24, s24, {opt.get('dshift', 6)}")
    e("s_memrealtime s[26:27]"); e.wait_lgkm(0)
    e.label("L9_spin")
    e("s_memrealtime s[28:29]"); e.wait_lgkm(0)
    e("s_sub_u32 s28, s28, s26"); e("s_cmp_lt_u32 s28, s24"); e("s_cbranch_scc1 L9_spin")
    e.label("L9_end")
    e("s_endpgm")
    return e

def build(opt, fn):
    K = NAME + "_kernel"
    e = kernel(opt)
    txt = header([(None, 256, 512, 163840)]) + kstart(K) + e.text() + RODATA + kdesc(K, 256, 102, 256)
    if opt.get("diag"):
        txt = header([("m_kernel", 256, 512, 163840), ("d_kernel", 1, 64, 0)]) + kstart("m_kernel") + e.text() + kstart("d_kernel") + kdiag(opt).text() + RODATA + kdesc("m_kernel", 256, 102, 256) + kdesc("d_kernel", 64)
    open(fn, "w").write(txt)
    return e

if __name__ == "__main__":
    e = build({"verbose": len(sys.argv) > 1}, "v6.s")
    print("nops", e.nops, "instrs", sum(e.count.values()))
```

```python
from asmlib import *
K = NAME + "_kernel"
STAMP_OFF = 200 << 20

def stamps_end(a):
    a("s_memrealtime s[44:45]")
    a("s_memtime s[46:47]")
    a("s_waitcnt lgkmcnt(0)")
    a("v_mov_b32 v2, s40"); a("v_mov_b32 v3, s44");
    a("s_sub_u32 s46, s46, s42")
    a("v_mov_b32 v4, s46"); a("v_mov_b32 v5, 0")
    a("v_lshrrev_b32 v6, 6, v0")
    a("s_lshl_b32 s3, s2, 2")
    a("v_add_u32 v6, s3, v6")
    a("v_lshlrev_b32 v6, 4, v6")
    a("v_and_b32 v7, 63, v0")
    a("v_cmp_eq_u32 vcc, 0, v7")
    a("s_and_saveexec_b64 s[48:49], vcc")
    a(f"s_mov_b32 s50, {STAMP_OFF}")
    a("buffer_store_dwordx4 v[2:5], v6, s[28:31], s50 offen")
    a("s_waitcnt vmcnt(0)")

def prologue(a):
    a("s_memrealtime s[40:41]")
    a("s_memtime s[42:43]")
    a("s_cmp_ge_u32 s2, 256")
    a("s_cbranch_scc1 L_end")
    a("s_load_dwordx4 s[4:7], s[0:1], 8")
    a("s_load_dwordx4 s[8:11], s[0:1], 48")
    a("s_load_dwordx2 s[32:33], s[0:1], 96")
    a("s_load_dwordx2 s[34:35], s[0:1], 24")
    a("s_waitcnt lgkmcnt(0)")
    for i, (lo) in enumerate([4, 6, 8, 10]):
        r = 12 + 4 * i
        a(f"s_mov_b32 s{r}, s{lo}"); a(f"s_mov_b32 s{r+1}, s{lo+1}"); a(f"s_mov_b32 s{r+2}, 6291456"); a(f"s_mov_b32 s{r+3}, 0x20000")
    a("s_mov_b32 s28, s32"); a("s_mov_b32 s29, s33"); a("s_mov_b32 s30, 268435456"); a("s_mov_b32 s31, 0x20000")
    a("s_mov_b32 s36, s34"); a("s_mov_b32 s37, s35"); a("s_mov_b32 s38, 5242880"); a("s_mov_b32 s39, 0x20000")

def finish(a, lds, fn, vgpr=256):
    a("L_end:")
    a("s_endpgm")
    txt = header([(None, 256, 256, lds)]) + kstart(K) + a.text() + RODATA + kdesc(K, vgpr)
    open(fn, "w").write(txt)

def kv_dma(fn, nt=""):
    a = Asm(); prologue(a)
    a("v_lshlrev_b32 v1, 4, v0")
    a("s_mul_i32 s3, s2, 24576")
    a("v_lshrrev_b32 v8, 6, v0"); a("s_nop 0"); a("v_readfirstlane_b32 s51, v8")
    a("s_lshl_b32 s51, s51, 10")
    for b in range(4):
        for i in range(6):
            a(f"s_add_u32 m0, s51, {(b*6+i)*4096}")
            a(f"s_add_u32 s52, s3, {i*4096}")
            a(f"buffer_load_dwordx4 v1, s[{12+4*b}:{15+4*b}], s52 offen {nt} lds")
    a("s_waitcnt vmcnt(0)")
    stamps_end(a)
    finish(a, 98304, fn)

def l2_stream(fn, pattern, span=1 << 20, reps=4, inflight=16, dma=False):
    a = Asm(); prologue(a)
    a("v_and_b32 v7, 63, v0")
    a("v_lshrrev_b32 v8, 6, v0"); a("s_nop 0"); a("v_readfirstlane_b32 s51, v8")
    if pattern == "linear":
        a("v_lshlrev_b32 v1, 4, v7")
        a("s_lshl_b32 s53, s51, 10"); a("v_add_u32 v1, s53, v1")
        step = 4096; sub = [0]
    elif pattern == "frag64":
        a("v_and_b32 v9, 15, v7"); a("v_mul_u32_u24 v9, 1280, v9")
        a("v_lshrrev_b32 v10, 4, v7"); a("v_lshlrev_b32 v10, 4, v10"); a("v_add_u32 v1, v9, v10")
        a("s_mul_i32 s53, s51, 20480"); a("v_add_u32 v1, s53, v1")
        step = 81920; sub = [64 * i for i in range(20)]
    elif pattern == "row256":
        a("v_lshrrev_b32 v9, 4, v7"); a("v_lshlrev_b32 v9, 13, v9")
        a("v_and_b32 v10, 15, v7"); a("v_lshlrev_b32 v10, 4, v10"); a("v_add_u32 v1, v9, v10")
        a("s_lshl_b32 s53, s51, 15"); a("v_add_u32 v1, s53, v1")
        step = 131072; sub = [256 * i for i in range(16)]
    elif pattern == "row64":
        a("v_lshrrev_b32 v9, 2, v7"); a("v_mul_u32_u24 v9, 1280, v9")
        a("v_and_b32 v10, 3, v7"); a("v_lshlrev_b32 v10, 4, v10"); a("v_add_u32 v1, v9, v10")
        a("s_mul_i32 s53, s51, 20480"); a("v_add_u32 v1, s53, v1")
        step = 81920; sub = [64 * i for i in range(20)]
    elif pattern == "row128":
        a("v_lshrrev_b32 v9, 3, v7"); a("v_mul_u32_u24 v9, 1280, v9")
        a("v_and_b32 v10, 7, v7"); a("v_lshlrev_b32 v10, 4, v10"); a("v_add_u32 v1, v9, v10")
        a("s_mul_i32 s53, s51, 10240"); a("v_add_u32 v1, s53, v1")
        step = 40960; sub = [128 * i for i in range(10)]
    if pattern == "linear":
        sub = [0];
    nouter = span // step
    per = len(sub)
    unroll_outer = max(1, 16 // per)
    a("s_lshl_b32 s54, s51, 14")
    a(f"s_mov_b32 s55, {reps}")
    a(f"s_lshr_b32 s57, s2, 3")
    a(f"s_mul_i32 s57, s57, {step*unroll_outer}")
    a("L_rep:")
    a(f"s_mov_b32 s56, {nouter // unroll_outer}")
    a("L_loop:")
    a(f"s_cmp_ge_u32 s57, {(nouter // unroll_outer) * unroll_outer * step}")
    a("s_cbranch_scc0 L_nowrap")
    a("s_mov_b32 s57, 0")
    a("L_nowrap:")
    n = 0
    for o in range(unroll_outer):
        for s in sub:
            a(f"s_add_u32 s52, s57, {o*step + s}")
            if dma:
                a(f"s_add_u32 m0, s54, {(n % 16) * 1024}")
                a("s_nop 0")
                a(f"buffer_load_dwordx4 v1, s[36:39], s52 offen lds")
            else:
                r = 16 + 4 * (n % 32)
                a(f"buffer_load_dwordx4 v[{r}:{r+3}], v1, s[36:39], s52 offen")
            a(f"s_waitcnt vmcnt({inflight})")
            n += 1
    a(f"s_add_u32 s57, s57, {step*unroll_outer}")
    a("s_sub_u32 s56, s56, 1"); a("s_cmp_lg_u32 s56, 0"); a("s_cbranch_scc1 L_loop")
    a("s_sub_u32 s55, s55, 1"); a("s_cmp_lg_u32 s55, 0"); a("s_cbranch_scc1 L_rep")
    a("s_waitcnt vmcnt(0)")
    stamps_end(a)
    finish(a, 65536, fn)
    return reps * (nouter // unroll_outer) * unroll_outer * per * 4096

if __name__ == "__main__":
    import json
    info = {}
    kv_dma("mb_kv.s"); info["mb_kv.s"] = 98304
    kv_dma("mb_kv_nt.s", "nt"); info["mb_kv_nt.s"] = 98304
    for p in ["linear", "frag64", "row256", "row64", "row128"]:
        for dma in ([False, True] if p != "frag64" else [False]):
            fn = f"mb_l2_{p}_{'dma' if dma else 'reg'}.s"
            info[fn] = l2_stream(fn, p, span=2 << 20, reps=4, inflight=15, dma=dma)
    json.dump(info, open("mb1.json", "w"))
    print(info)
```

```python
import gen6, gen4, sys
b = {"woplan": {"pre": 1, "ba": 3}, "bv_t": 1700}
gen6.build(dict(b), "g0.s"); gen6.build(dict(b, fine=1), "g1.s")
b4 = {"woplan": {"b9": 1, "bpv": 3}, "bpv_late": 2, "rot2": 6, "psleep": 2, "orders": gen6.O5, "kcls": [5, 3, 4, 2], "pk": 0}
gen4.build(b4, "g2.s"); gen4.build(dict(b4, fine=1), "g3.s")
import mb1
mb1.kv_dma("g4.s", "nt")
```

```python
import re

_REG = re.compile(r'^(-|abs\()?([vas])(\d+)\)?$')
_RNG = re.compile(r'^(-)?([vas])\[(\d+):(\d+)\]$')

def regs_of(op):
    op = op.strip()
    m = _REG.match(op)
    if m:
        return [(m.group(2), int(m.group(3)))]
    m = _RNG.match(op)
    if m:
        return [(m.group(2), i) for i in range(int(m.group(3)), int(m.group(4)) + 1)]
    if op == 'vcc':
        return [('s', 'vcc')]
    if op == 'm0':
        return [('s', 'm0')]
    if op == 'exec':
        return [('s', 'exec')]
    return []

def R(kind, lo, n=1):
    return f"{kind}{lo}" if n == 1 else f"{kind}[{lo}:{lo+n-1}]"
def V(lo, n=1): return R('v', lo, n)
def A(lo, n=1): return R('a', lo, n)
def S(lo, n=1): return R('s', lo, n)

TRANS = ('v_exp_f32', 'v_log_f32', 'v_rcp_f32', 'v_rsq_f32', 'v_sqrt_f32')

class E:
    def __init__(self):
        self.lines = []
        self.pos = 0
        self.valu_w = {}
        self.trans_w = {}
        self.mfma_w = {}
        self.mfma_c = {}
        self.store_r = {}
        self.sgpr_valu_w = {}
        self.m0_w = -100
        self.exec_valu_w = -100
        self.lgkm = []
        self.vm = []
        self.smem_pending = False
        self.nops = 0
        self.merge_age = 14
        self.count = {}
    def raw(self, s):
        self.lines.append(s)
    def comment(self, s):
        self.lines.append("; " + s)
    def label(self, s):
        self.lines.append(s + ":")
    def _nop(self, n):
        while n > 0:
            k = min(n, 16)
            self.lines.append(f"    s_nop {k-1}")
            self.pos += k; self.nops += k
            n -= k
    def _wait(self, vm=None, lgkm=None):
        parts = []
        if vm is not None:
            assert vm <= 63
            parts.append(f"vmcnt({vm})")
            self.vm = self.vm[len(self.vm) - vm:] if vm > 0 else []
        if lgkm is not None:
            lg = min(lgkm, 14)
            parts.append(f"lgkmcnt({lg})")
            self.lgkm = self.lgkm[len(self.lgkm) - lg:] if lg > 0 else []
            if lg == 0:
                self.smem_pending = False
        self.lines.append("    s_waitcnt " + " ".join(parts))
        self.pos += 1
    def _need_vm(self, pred):
        idx = -1
        for i, (tag, rs) in enumerate(self.vm):
            if pred(tag, rs):
                idx = i
        return None if idx < 0 else len(self.vm) - 1 - idx
    def _need_lgkm(self, regs):
        idx = -1
        for i, (rs, p) in enumerate(self.lgkm):
            if rs & regs:
                idx = i
        if idx < 0: return None
        while idx + 1 < len(self.lgkm) and self.pos - self.lgkm[idx + 1][1] >= self.merge_age: idx += 1
        return len(self.lgkm) - 1 - idx
    def wait_ds_writes(self):
        idx = max([i for i, (rs, p) in enumerate(self.lgkm) if not rs], default=-1)
        if idx >= 0: self._wait(lgkm=0 if self.smem_pending else len(self.lgkm) - 1 - idx)
    def wait_vm_tag(self, tags, lgkm=None):
        if not isinstance(tags, (list, tuple, set)):
            tags = [tags]
        n = self._need_vm(lambda t, rs: t in tags)
        if lgkm is not None and len(self.lgkm) <= lgkm and not self.smem_pending:
            lgkm = None
        if n is not None or lgkm is not None:
            self._wait(vm=n, lgkm=lgkm)
    def wait_all(self, vm=True, lgkm=True):
        self._wait(vm=0 if vm else None, lgkm=0 if lgkm else None)
    def wait_lgkm(self, n=0):
        if len(self.lgkm) > n or self.smem_pending:
            self._wait(lgkm=n)
    def settle(self):
        need = 0
        for r, p in self.valu_w.items(): need = max(need, 2 - (self.pos - p - 1))
        for r, (p, ps, k) in self.mfma_w.items(): need = max(need, (8 if ps == 4 else 12) - (self.pos - p - 1))
        for r, p in self.sgpr_valu_w.items(): need = max(need, 5 - (self.pos - p - 1))
        for r, p in self.store_r.items(): need = max(need, 2 - (self.pos - p - 1))
        need = max(need, 1 - (self.pos - self.m0_w - 1))
        if need > 0: self._nop(need)
    def __call__(self, text, tag=None):
        t = text.strip()
        mn, _, rest = t.partition(' ')
        self.count[mn] = self.count.get(mn, 0) + 1
        ops = [o.strip() for o in rest.split(',')] if rest else []
        mods = ''
        if ops:
            newops = []
            for o in ops:
                first, _, m = o.partition(' ')
                newops.append(first); mods += ' ' + m
            ops = newops
        dst, src = [], []
        kind = None
        if mn.startswith('v_mfma'):
            kind = 'mfma'
            dst = regs_of(ops[0]); sa = regs_of(ops[1]); sb = regs_of(ops[2]); sc = regs_of(ops[3])
            src = sa + sb + sc
            passes = 4 if '16x16' in mn else 8
        elif mn.startswith('ds_read'):
            kind = 'dsr'; dst = regs_of(ops[0]); src = regs_of(ops[1])
        elif mn.startswith('ds_write'):
            kind = 'dsw'
            for o in ops: src += regs_of(o)
        elif mn.startswith('buffer_load') or mn.startswith('global_load'):
            kind = 'vml'
            if ' lds' in mods or 'load_lds' in mn:
                for o in ops: src += regs_of(o)
                kind = 'dma'
            else:
                dst = regs_of(ops[0])
                for o in ops[1:]: src += regs_of(o)
        elif mn.startswith('buffer_store') or mn.startswith('global_store'):
            kind = 'vms'
            for o in ops: src += regs_of(o)
            data = regs_of(ops[0]) if mn.startswith('buffer') else regs_of(ops[1])
        elif mn.startswith('buffer_atomic'):
            kind = 'vma'
            for o in ops: src += regs_of(o)
            if 'sc0' in mods: dst = regs_of(ops[0])
        elif mn.startswith('buffer_wbl2') or mn.startswith('buffer_inv'):
            kind = 'vmx'
        elif mn.startswith('v_'):
            kind = 'valu'
            dst = regs_of(ops[0])
            for o in ops[1:]: src += regs_of(o)
            if 'permlane' in mn and 'swap' in mn:
                dst = regs_of(ops[0]) + regs_of(ops[1]); src = list(dst)
            if mn.startswith('v_fmac') or mn.startswith('v_pk_fmac') or mn.startswith('v_writelane'):
                src += dst
            if mn.startswith('v_cndmask') and len(ops) == 3:
                src += regs_of('vcc')
            if '_co_' in mn:
                dst += regs_of(ops[1])
        elif mn.startswith('s_'):
            kind = 'salu'
            if mn.startswith('s_load') or mn.startswith('s_memtime') or mn.startswith('s_memrealtime') or mn.startswith('s_buffer_load'):
                kind = 'smem'
            if mn in ('s_nop',):
                n = int(ops[0]) + 1
                self.lines.append("    " + t); self.pos += n
                return
            if mn == 's_waitcnt':
                raise ValueError("use wait_* helpers")
            if ops and not mn.startswith('s_cmp') and not mn.startswith('s_cbranch') and not mn.startswith('s_branch') and mn not in ('s_setprio', 's_sleep', 's_barrier'):
                dst = regs_of(ops[0])
                for o in ops[1:]: src += regs_of(o)
            else:
                for o in ops: src += regs_of(o)
        else:
            raise ValueError("unknown instr " + t)
        vsrc = set(r for r in src if r[0] in 'va'); vdst = set(r for r in dst if r[0] in 'va')
        ssrc = set(r for r in src if r[0] == 's'); sdst = set(r for r in dst if r[0] == 's')
        touch = vsrc | vdst
        nv = self._need_vm(lambda tg, rs: rs & touch)
        nl = self._need_lgkm(touch)
        if nl is not None and self.smem_pending: nl = 0
        if nv is not None or nl is not None:
            self._wait(vm=nv, lgkm=nl)
        if kind in ('vml', 'dma', 'vms', 'vma', 'vmx') and len(self.vm) >= 63:
            raise ValueError("vmcnt overflow")
        need = 0
        def dist(p): return self.pos - p - 1
        if kind == 'mfma':
            for r in vsrc:
                if r in self.valu_w: need = max(need, 2 - dist(self.valu_w[r]))
            key = (dst[0], len(dst))
            for r in set(sa + sb):
                if r in self.mfma_w:
                    p, ps, k = self.mfma_w[r]; need = max(need, (8 if ps == 4 else 12) - dist(p))
            for r in set(sc):
                if r in self.mfma_w:
                    p, ps, k = self.mfma_w[r]
                    if not (k == (sc[0], len(sc)) and ps == passes):
                        need = max(need, (6 if ps == 4 else 10) - dist(p))
            for r in vdst:
                if r in self.mfma_w and r not in set(sc):
                    p, ps, k = self.mfma_w[r]; need = max(need, (6 if ps == 4 else 10) - dist(p))
            need = max(need, 4 - dist(self.exec_valu_w))
        else:
            for r in touch:
                if r in self.mfma_w:
                    p, ps, k = self.mfma_w[r]; need = max(need, (8 if ps == 4 else 12) - dist(p))
        if kind == 'valu':
            for r in vdst:
                if r in self.mfma_c:
                    p, ps = self.mfma_c[r]; need = max(need, (3 if ps == 4 else 7) - dist(p))
                if r in self.store_r: need = max(need, 2 - dist(self.store_r[r]))
            if mn.split('_e')[0] not in TRANS or True:
                for r in vsrc:
                    if r in self.trans_w and not any(mn.startswith(x) for x in TRANS): need = max(need, 1 - dist(self.trans_w[r]))
            if 'permlane' in mn or 'dpp' in mn or 'row_' in mods or 'quad_perm' in mods:
                for r in vsrc:
                    if r in self.valu_w: need = max(need, 2 - dist(self.valu_w[r]))
            if mn.startswith('v_readfirstlane') or mn.startswith('v_readlane'):
                for r in vsrc:
                    if r in self.valu_w: need = max(need, 1 - dist(self.valu_w[r]))
            for r in ssrc:
                if r in self.sgpr_valu_w: need = max(need, 2 - dist(self.sgpr_valu_w[r]))
        if kind in ('dsr', 'vml'):
            for r in vdst:
                if r in self.store_r: need = max(need, 1 - dist(self.store_r[r]))
                if r in self.mfma_c:
                    p, ps = self.mfma_c[r]; need = max(need, (3 if ps == 4 else 7) - dist(p))
        if kind in ('vml', 'dma', 'vms', 'vma'):
            for r in ssrc:
                if r in self.sgpr_valu_w: need = max(need, 5 - dist(self.sgpr_valu_w[r]))
        if kind in ('salu', 'smem'):
            for r in ssrc:
                if r in self.sgpr_valu_w: need = max(need, 2 - dist(self.sgpr_valu_w[r]))
        if kind == 'dma':
            need = max(need, 1 - dist(self.m0_w))
        if need > 0: self._nop(need)
        self.lines.append("    " + t)
        p = self.pos
        for r in vdst:
            self.valu_w.pop(r, None); self.trans_w.pop(r, None); self.mfma_w.pop(r, None)
        if kind == 'mfma':
            for r in dst: self.mfma_w[r] = (p, passes, (dst[0], len(dst)))
            for r in sc: self.mfma_c[r] = (p, passes)
        elif kind == 'valu':
            for r in vdst:
                self.valu_w[r] = p
                if any(mn.startswith(x) for x in TRANS): self.trans_w[r] = p
            for r in sdst: self.sgpr_valu_w[r] = p
            if mn.startswith('v_cmpx'): self.exec_valu_w = p
        elif kind == 'dsr':
            self.lgkm.append((set(vdst), p))
        elif kind == 'dsw':
            self.lgkm.append((set(), p))
        elif kind == 'vml':
            self.vm.append((tag, set(vdst)))
        elif kind in ('dma', 'vmx'):
            self.vm.append((tag, set()))
        elif kind == 'vma':
            self.vm.append((tag, set(vdst)))
        elif kind == 'vms':
            self.vm.append((tag, set()))
            if len(data) >= 3:
                for r in data: self.store_r[r] = p
        elif kind == 'smem':
            self.smem_pending = True
        elif kind == 'salu':
            for r in sdst:
                self.sgpr_valu_w.pop(r, None)
                if r == ('s', 'm0'): self.m0_w = p
        self.pos += 1
    def barrier(self):
        j = getattr(self, "jitter", None)
        if j: j()
        self("s_barrier")
        if j: j()
    def text(self):
        return "\n".join(self.lines) + "\n"

def interleave(e, mf, fill, per=None, start=0):
    n = len(mf); m = len(fill); done = 0
    for i, s in enumerate(mf):
        e(s)
        if i < start: continue
        if per is None:
            tgt = (m * (i - start + 1) + (n - start) - 1) // (n - start)
        else:
            tgt = min(m, per * (i - start + 1))
        while done < tgt:
            put(e, fill[done]); done += 1
    while done < m:
        put(e, fill[done]); done += 1

def put(e, f):
    if callable(f): f()
    elif isinstance(f, tuple): e(f[0], tag=f[1])
    elif isinstance(f, list):
        for x in f: put(e, x)
    else: e(f)
```

```python
import sys, math, struct
from asmlib import *
from emit import *
from sched import schedule
from align import align

def f2u(x): return struct.unpack("<I", struct.pack("<f", x))[0]
SCALE = math.log2(math.e) / math.sqrt(128.0)
WS_P = 16 << 20
WS_F1 = 32 << 20
WS_F2 = 33 << 20
WS_ST = 64 << 20
X_BYTES, KV_BYTES, W_BYTES, OUT_BYTES, WS_BYTES = 983040, 6291456, 5242880, 1966080, 268435456
L_W, L_X = 0, 90112
L_K = 24576
def k_unit(T): return 0 if T == 5 else 24576 + T * 8192
L_V = L_X + 24576
WO_SLOTS, O_SLOTS = [2, 6, 0, 1, 3, 4, 5], [7, 8, 9]
NW, NO, L_O = 7, 3, 7 * 16384
FS, R1, F2 = 64, 512, 128
SPIN = 1 << 18
DEFAULTS = dict(kcls=[0, 2, -1, 1], pre=1, ba=4, bf=3, b2=1, lpoll=2, bv_t=1900, pk=1,
                nt_kv="nt", st_o="sc1", ld_o="sc1", st_p="sc1", ld_p="sc1", st_out="")

def srd(e, r, lo, size):
    e(f"s_mov_b32 s{r}, s{lo}"); e(f"s_mov_b32 s{r+1}, s{lo+1}")
    e(f"s_mov_b32 s{r+2}, {size}"); e(f"s_mov_b32 s{r+3}, 0x20000")

class Fine:
    def __init__(self, e, opt): self.e, self.on, self.n = e, opt.get("fine"), 0
    def __call__(self):
        if not self.on: return
        assert self.n < 32
        self.e("s_memrealtime s[94:95]"); self.e("s_memtime s[98:99]"); self.e.wait_lgkm(0)
        self.e(f"v_writelane_b32 v1, s94, {self.n}")
        self.e(f"v_writelane_b32 v1, s98, {self.n + 32}")
        self.n += 1
    def out(self, sws, ld=0):
        if not self.on: return
        e = self.e
        e.wait_all(); self()
        e("s_lshl_b32 s97, s2, 3"); e("s_add_u32 s97, s97, s37"); e(f"s_add_u32 s97, s97, {4*ld}"); e("s_lshl_b32 s97, s97, 8"); e(f"s_add_u32 s97, s97, {WS_ST}")
        e("v_lshlrev_b32 v4, 2, v0")
        e(f"buffer_store_dword v1, v4, {S(sws,4)}, s97 offen")

MF = "v_mfma_f32_16x16x32_bf16"
SX, SK, SV, SW, SWS, SWO, SOUT, SDBG = 40, 44, 48, 52, 56, 60, 44, 64
SC = 80
SO = 68

def pack4(a, b):
    return [f"v_cvt_pk_bf16_f32 v{a}, v{a}, v{a+1}", f"v_cvt_pk_bf16_f32 v{a+1}, v{a+2}, v{a+3}",
            f"v_cvt_pk_bf16_f32 v{a+2}, v{b}, v{b+1}", f"v_cvt_pk_bf16_f32 v{a+3}, v{b+2}, v{b+3}"]

class Tile:
    def __init__(self, u, q, st, ot, kf, ones, LO, st_o, pkf, pkm):
        self.__dict__.update(locals()); self.lt = q[3]
    def s(self):
        return [f"{MF} {V(self.st[T],4)}, {V(self.kf(T*4+s),4)}, {V(self.q[s],4)}, {'0' if s == 0 else V(self.st[T],4)}" for T in range(6) for s in range(4)]
    def pv(self):
        o = [f"{MF} {V(self.lt,4)}, {V(self.ones,4)}, {V(self.q[s],4)}, {'0' if s == 0 else V(self.lt,4)}" for s in range(3)]
        return o + [f"{MF} {V(self.ot[t],4)}, {V(self.kf(t*3+s),4)}, {V(self.q[s],4)}, {'0' if s == 0 else V(self.ot[t],4)}" for t in range(8) for s in range(3)]
    def softmax(self):
        MX = self.q[3]; TM = MX + 2
        o = []
        vals = [self.st[T] + r for T in range(6) for r in range(4)]
        o.append(f"v_max3_f32 v{MX}, v{vals[0]}, v{vals[1]}, v{vals[2]}")
        o.append(f"v_max3_f32 v{TM}, v{vals[3]}, v{vals[4]}, v{vals[5]}")
        for i in range(6, 22, 4):
            o.append(f"v_max3_f32 v{MX}, v{MX}, v{vals[i]}, v{vals[i+1]}")
            o.append(f"v_max3_f32 v{TM}, v{TM}, v{vals[i+2]}, v{vals[i+3]}")
        o.append(f"v_max3_f32 v{MX}, v{MX}, v{vals[22]}, v{vals[23]}")
        o.append(f"v_max_f32 v{TM+1}, v{MX}, v{TM}"); o.append(f"v_max_f32 v{MX}, v{MX}, v{TM}")
        o.append(f"v_permlane16_swap_b32 v{TM+1}, v{MX}")
        o.append(f"v_max_f32 v{TM}, v{MX}, v{TM+1}"); o.append(f"v_max_f32 v{MX}, v{MX}, v{TM+1}")
        o.append(f"v_permlane32_swap_b32 v{TM}, v{MX}")
        o.append(f"v_max_f32 v{MX}, v{MX}, v{TM}")
        o.append(f"v_mul_f32 v{MX}, s{SC+2}, v{MX}")
        def cv(T): return [f"v_cvt_pk_bf16_f32 v{self.q[T>>1] + (T&1)*2 + (r>>1)}, v{self.st[T]+r}, v{self.st[T]+r+1}" for r in (0, 2)]
        if self.pkf:
            for T in range(6):
                for r in (0, 2):
                    x = self.st[T] + r
                    o.append(f"v_pk_fma_f32 {V(x,2)}, {V(x,2)}, {S(SC,2)}, {V(MX,2)} op_sel_hi:[1,1,0]")
        for T in range(6):
            x = self.st[T]
            if not self.pkf:
                for r in range(4): o.append(f"v_fmamk_f32 v{x+r}, v{x+r}, {hex(f2u(SCALE))}, v{MX}")
            if T > 0: o += cv(T - 1)
            for r in range(4): o.append(f"v_exp_f32 v{x+r}, v{x+r}")
        return o + cv(5)
    def outs(self):
        o = [f"v_rcp_f32 v{self.lt}, v{self.lt}"]
        for sp in range(4):
            a, b = self.ot[2*sp], self.ot[2*sp+1]
            if self.pkm and sp % self.pkm == 0:
                for x in self.ot[2*sp:2*sp + 2*self.pkm]:
                    o += [f"v_pk_mul_f32 {V(x+r,2)}, {V(x+r,2)}, {V(self.lt,2)} op_sel_hi:[1,0]" for r in (0, 2)]
            if not self.pkm:
                o += [f"v_mul_f32 v{x+r}, v{self.lt}, v{x+r}" for x in (a, b) for r in range(4)]
            o += pack4(a, b)
            if self.st_o != "skip":
                o.append(f"buffer_store_dwordx4 {V(a,4)}, v{self.LO}, {S(SWS,4)}, s{SO+sp} offen offset:{self.u*1024} {self.st_o}")
        return o

WQRA, XRA, LO, VD, KA = 8, 16, 22, 23, 248
AF, BF, ACC, SP = 24, 88, 112, 208
def acc(t, u): return ACC + (t*3+u)*4
def mfmas(st, first, prs=None):
    prs = prs or [(t, u if t % 2 == 0 else 2 - u) for t in range(8) for u in range(3)]
    return [f"{MF} {V(acc(t,u),4)}, {V(AF + st*32 + t*4, 4)}, {V(BF + st*12 + u*4, 4)}, {'0' if first else V(acc(t,u),4)}" for t, u in prs]
def kf(n): return SP + 4*n if n < 10 else AF + 4*(n - 10)
kr = [f"ds_read_b64 {V(kf(T*4+s) + 2*u, 2)}, v{KA + 2*s + u} offset:{k_unit(T)}" for T in range(6) for s in range(4) for u in range(2)]
vr = [f"ds_read_b64_tr_b16 {V(kf(t*3+s) + 2*j, 2)}, v{WQRA+t} offset:{(2*s+j)*4096}" for t in range(8) for s in range(3) for j in range(2)]

def attention_order(g, st_o):
    ONE = 16
    odd = [acc(t, u) for u in range(3) for t in (1, 3, 5, 7)]
    sts = [[80, 84, 88, 92, 96, 100], odd[:6], odd[6:]]
    xtra = [[104, 108], [KA, KA + 4], [acc(0, 0), acc(2, 0)]]
    pkf, pkm = g("pkf", (1, 1, 1)), g("pkm", (4, 4, 2))
    if not g("pk"): pkf = pkm = (0, 0, 0)
    T = [Tile(u, [acc(2*s, u) for s in range(4)], sts[u], sts[u] + xtra[u], kf, ONE, LO, st_o, pkf[u], pkm[u]) for u in range(3)]
    prog = mfmas(1, False, [(t if u != 1 else 7 - t, u) for u in range(3) for t in range(8)]) + kr[20:]
    for u in range(3): prog += sum([pack4(acc(2*s, u), acc(2*s+1, u)) for s in range(4)], [])
    prog += [f"v_add_u32 v{WQRA+t}, v{VD}, v{WQRA+t}" for t in range(8)] + [f"v_mov_b32 v{ONE + r}, 0x3f803f80" for r in range(4)]
    prog += T[0].s() + T[0].softmax() + T[1].s() + T[2].s()
    ib = len(prog); prog.append("BAR V")
    extra = [(ib, ib + 1 + k) for k in range(len(vr))]
    prog += vr
    for u in range(3):
        if u: prog += T[u].softmax()
        prog += T[u].pv() + T[u].outs()
    order, tm = schedule(prog, extra, {ib: g("bv_t")}, verbose=g("verbose"), **g("sch", {}))
    if g("verbose"): print("model cycles", tm)
    return order

def spin(e, name, load, test, sleep=0):
    e(f"s_mov_b32 s92, {SPIN}")
    e.label(f"L_{name}")
    e(test)
    e("s_sub_u32 s92, s92, 1"); e(f"s_cbranch_scc1 L_{name}_ok")
    e("s_nop 1")
    e(f"s_cbranch_vccz L_{name}_ok")
    st = list(e.vm)
    if sleep: e(f"s_sleep {sleep}")
    e(load)
    e.wait_all(lgkm=False)
    e(f"s_branch L_{name}")
    e.label(f"L_{name}_ok")
    e.vm = st

def kernel(opt):
    opt = dict(DEFAULTS, **opt)
    e = E()
    g = opt.get
    nt_kv = g("nt_kv")
    st_o, ld_o, st_p, ld_p, st_out = g("st_o"), g("ld_o"), g("st_p"), g("ld_p"), g("st_out")
    e("s_load_dwordx16 s[8:23], s[0:1], 0")
    e("s_load_dwordx8 s[24:31], s[0:1], 64")
    e(f"s_load_dwordx2 {S(SWS,2)}, s[0:1], 96")
    e("s_cmp_ge_u32 s2, 256"); e("s_cbranch_scc1 L_end")
    fs = Fine(e, opt)
    if g("fine"): e("s_memrealtime s[94:95]"); e("s_memtime s[98:99]")
    e("v_lshrrev_b32 v3, 6, v0"); e("v_and_b32 v0, 63, v0"); e("v_readfirstlane_b32 s36, v3")
    e("s_and_b32 s3, s2, 7"); e("s_lshr_b32 s4, s2, 3")
    e("s_lshr_b32 s5, s3, 2")
    e("s_and_b32 s38, s3, 3"); e("s_lshl_b32 s6, s38, 3"); e("s_and_b32 s39, s4, 7"); e("s_add_u32 s6, s6, s39")
    e("s_lshr_b32 s7, s4, 3")
    e("v_lshrrev_b32 v3, 4, v0"); e("v_and_b32 v4, 15, v0")
    e("s_and_b32 s37, s36, 3")
    e("s_lshl_b32 s72, s7, 2"); e("s_add_u32 s72, s72, s37")
    if g("jitter"):
        e("s_lshl_b32 s97, s2, 3"); e("s_add_u32 s97, s97, s36"); e(f"s_mul_i32 s97, s97, {2654435761 + 2*g('jseed', 0)}")
        e("s_bfe_u32 s99, s97, 0x30014"); e("s_cmp_lg_u32 s99, 0"); e("s_cbranch_scc1 L_j0")
        for _ in range(g("jstart", 2)): e("s_sleep 100")
        e.label("L_j0")
    e("s_cmp_lt_u32 s36, 4"); e("s_cbranch_scc1 L_loader")
    e("s_getpc_b64 s[34:35]")
    e.label("L_pc")
    e("s_lshl_b32 s73, s39, 2"); e("s_add_u32 s73, s73, s37"); e("s_lshl_b32 s73, s73, 10")
    e("v_and_b32 v5, 7, v0"); e("v_lshl_add_u32 v5, v5, 7, s73")
    e("v_min_u32 v5, L_end-L_pc, v5")
    e("global_load_dword v2, v5, s[34:35]", tag="code")
    e("s_branch L_compute")
    st0 = (list(e.vm), e.smem_pending)
    if g("jitter"):
        jn = [0]
        def jit():
            jn[0] += 1; k = jn[0]
            e("s_cselect_b32 s98, 1, 0")
            e(f"s_mul_i32 s97, s97, 1103515245"); e(f"s_add_u32 s97, s97, {12345 + k}"); e(f"s_bfe_u32 s99, s97, {(g('jitter') << 16) | 16}")
            e("s_cmp_lg_u32 s99, 0"); e(f"s_cbranch_scc1 L_j{k}"); e(f"s_sleep {g('jsleep', 20)}"); e.label(f"L_j{k}")
            e("s_cmp_lg_u32 s98, 0")
        e.jitter = jit
    def stamp0():
        if g("fine"):
            e("v_writelane_b32 v1, s94, 0"); e("v_writelane_b32 v1, s98, 32"); fs.n = 1
    def ws_ids():
        e(f"s_mov_b32 s{SWS+2}, {WS_BYTES}"); e(f"s_mov_b32 s{SWS+3}, 0x20000")
        e("s_lshl_b32 s32, s5, 5"); e("s_add_u32 s32, s32, s4"); e("s_lshl_b32 s32, s32, 2"); e("s_add_u32 s32, s32, s37"); e("s_lshl_b32 s32, s32, 2")
        e("s_lshl_b32 s33, s32, 2"); e("s_add_u32 s33, s33, s38"); e(f"s_mul_i32 s33, s33, {F2}"); e(f"s_add_u32 s33, s33, {WS_F2}")
    def tile_ids():
        e("s_mul_i32 s73, s4, 52"); e("s_lshr_b32 s73, s73, 8")
        e("s_mul_i32 s74, s73, 5"); e("s_sub_u32 s74, s4, s74")
    def tr_addr(dst, n, rowshift, xor=None):
        e("v_bfe_u32 v5, v0, 2, 2"); e("v_and_b32 v6, 1, v3"); e("v_lshl_or_b32 v6, v6, 2, v5")
        if xor: e(f"v_xor_b32 v6, {xor}, v6")
        e(f"v_lshl_add_u32 v5, v3, {rowshift}, v5"); e("v_lshlrev_b32 v5, 8, v5")
        e("v_and_b32 v7, 3, v0"); e("v_lshl_add_u32 v5, v7, 3, v5")
        for t in range(n):
            e(f"v_xor_b32 v7, {t}, v6"); e(f"v_lshl_add_u32 v{dst+t}, v7, 5, v5")

    e.label("L_loader")
    e.vm = []
    WQVO, XVO, KVO, ZR, CL, VVO, WVO, KS = 8, 12, 18, 20, 21, 23, 25, 32
    e("s_lshl_b32 s75, s37, 4")
    e("v_add_u32 v5, s75, v3"); e("v_lshlrev_b32 v5, 13, v5")
    e("v_lshlrev_b32 v6, 1, v3"); e("v_xor_b32 v6, v6, v4"); e(f"v_lshl_add_u32 v{WQVO}, v6, 4, v5")
    e(f"v_add_u32 v{WQVO+1}, {4*8192 - 1024}, v{WQVO}"); e(f"v_xor_b32 v6, 128, v{WQVO}")
    e(f"v_add_u32 v{WQVO+2}, {8*8192 - 2048}, v6"); e(f"v_add_u32 v{WQVO+3}, {12*8192 - 3072}, v6")
    e("v_lshrrev_b32 v5, 3, v0"); e("v_and_b32 v6, 7, v0"); e("v_xor_b32 v6, v6, v3")
    e("v_mul_u32_u24 v5, 1280, v5"); e(f"v_lshl_add_u32 v{XVO}, v6, 4, v5"); e(f"v_xor_b32 v6, 64, v{XVO}")
    for m in range(1, 6):
        e(f"v_add_u32 v{XVO+m}, {8*m*1280 - (m % 3)*1024}, v{6 if m & 1 else XVO}")
    e(f"s_mul_i32 s76, s72, {48*1280}")
    e("s_lshl_b32 s77, s6, 8")
    e("s_lshl_b32 s78, s37, 12")
    e("s_mul_i32 s79, s37, 6144"); e(f"s_add_u32 s79, s79, {L_X}")
    e("s_sub_u32 s100, s7, s39"); e("s_bfe_u32 s93, s100, 0x10001"); e("s_and_b32 s100, s100, 3")
    orders = g("orders")
    if orders:
        pko = [sum(c << (4*i) for i, c in enumerate(o)) for o in orders]
        for o in orders: assert sorted(o) == list(range(10))
        e(f"s_mov_b32 s68, {pko[0] & 0xffffffff}"); e(f"s_mov_b32 s69, {pko[0] >> 32}")
        for i in range(1, 4):
            e(f"s_cmp_eq_u32 s100, {i}"); e(f"s_cselect_b32 s68, {pko[i] & 0xffffffff}, s68"); e(f"s_cselect_b32 s69, {pko[i] >> 32}, s69")
        e("s_and_b32 s93, s68, 15")
    for r, sz in ((SW, W_BYTES), (SX, X_BYTES)):
        e(f"s_mov_b32 s{r+2}, {sz}"); e(f"s_mov_b32 s{r+3}, 0x20000")
    def chunk(mid=None):
        e("s_mov_b32 m0, s84")
        e("s_and_b32 s86, s68, 15" if orders else "s_xor_b32 s86, s80, s93")
        fill = [["s_lshl_b32 s83, s86, 7", "s_add_u32 s83, s83, s76"], ["s_mul_i32 s85, s81, 24576", "s_add_u32 s85, s85, s79"],
                ["s_add_u32 s80, s80, 1", "s_add_u32 s81, s81, 1", "s_cmp_eq_u32 s81, 3", "s_cselect_b32 s81, 0, s81"], ["s_mov_b32 m0, s85"] + (["s_lshr_b64 s[68:69], s[68:69], 4", "s_and_b32 s86, s68, 15"] if orders else ["s_xor_b32 s86, s80, s93"])]
        for k in range(4):
            e(f"buffer_load_dwordx4 v{WQVO+k}, {S(SW,4)}, s82 offen offset:{k*1024} lds", tag="c")
            put(e, fill[k])
        fill = [["s_lshl_b32 s82, s86, 19", "s_add_u32 s82, s82, s77"], ["s_lshl_b32 s84, s81, 14"], ["s_add_u32 m0, s85, 3072", "s_add_u32 s84, s84, s78"], [], [], []]
        for m in range(6):
            e(f"buffer_load_dwordx4 v{XVO+m}, {S(SX,4)}, s83 offen offset:{(m%3)*1024} lds", tag="c")
            put(e, fill[m])
            if mid and m == 2: mid()
    e("s_mov_b32 s80, 0"); e("s_mov_b32 s81, 0")
    e("s_lshl_b32 s82, s93, 19"); e("s_add_u32 s82, s82, s77"); e("s_mov_b32 s84, s78")
    if g("fine") == 4: e("s_memtime s[68:69]")
    e.wait_lgkm(0)
    if g("fine") == 4:
        stamp0(); e("v_writelane_b32 v1, s94, 1"); e("v_writelane_b32 v1, s68, 33"); fs.n = 2; fs()
    e("s_cmp_eq_u32 s5, 0")
    e(f"s_cselect_b64 {S(SW,2)}, s[14:15], s[24:25]"); e(f"s_cselect_b64 {S(SX,2)}, s[8:9], s[18:19]")
    def clears():
        ws_ids()
        e(f"s_mul_i32 s35, s3, {4*R1}"); e(f"s_add_u32 s35, s35, {WS_F1}")
        e(f"s_mul_i32 s96, s4, {FS}"); e("s_add_u32 s96, s96, s35")
        e(f"v_mul_u32_u24 v{CL}, {4*F2}, v0"); e(f"v_add_u32 v{CL}, s33, v{CL}"); e(f"v_writelane_b32 v{CL}, s96, 4"); e(f"v_mov_b32 v{ZR}, 0")
        e("s_cmp_eq_u32 s37, 0"); e("s_cselect_b32 s70, 31, 15"); e("s_mov_b32 s71, 0")
        e("s_mov_b64 exec, s[70:71]")
        e(f"buffer_store_dword v{ZR}, v{CL}, {S(SWS,4)}, 0 offen sc1")
        e("s_mov_b64 exec, -1")
    chunk(clears)
    if g("fine") != 4: stamp0()
    fs()
    e("s_cmp_eq_u32 s5, 0")
    e(f"s_cselect_b64 {S(SK,2)}, s[10:11], s[20:21]"); e(f"s_cselect_b64 {S(SV,2)}, s[12:13], s[22:23]"); e(f"s_cselect_b64 {S(SWO,2)}, s[16:17], s[26:27]")
    for r, sz in ((SK, KV_BYTES), (SV, KV_BYTES), (SWO, W_BYTES)):
        e(f"s_mov_b32 s{r+2}, {sz}"); e(f"s_mov_b32 s{r+3}, 0x20000")
    srd(e, SDBG, 30, 256)
    tile_ids()
    e(f"v_lshlrev_b32 v{LO}, 4, v0")
    e("s_lshr_b32 s8, s72, 1"); e("s_lshl_b32 s8, s8, 5"); e("s_add_u32 s8, s8, s6"); e("s_mul_i32 s8, s8, 24576")
    e("s_and_b32 s10, s37, 1"); e("s_lshl_b32 s86, s10, 11"); e("s_add_u32 s8, s8, s86")
    e("v_xor_b32 v5, v3, v4"); e("v_lshlrev_b32 v5, 4, v5"); e("v_lshl_add_u32 v5, v3, 8, v5")
    e("s_lshl_b32 s86, s10, 7"); e(f"v_xor_b32 v{KVO}, s86, v5"); e(f"v_xor_b32 v{KVO+1}, 64, v{KVO}")
    e("s_lshl_b32 s9, s37, 11"); e(f"s_add_u32 s9, s9, {L_K}")
    e("s_lshl_b32 s87, s7, 6"); e("s_add_u32 s87, s87, s6"); e("s_mul_i32 s87, s87, 24576"); e("s_mul_i32 s86, s37, 6144"); e("s_add_u32 s87, s87, s86")
    e("v_lshlrev_b32 v5, 1, v3"); e("v_xor_b32 v5, v5, v4"); e("v_lshlrev_b32 v5, 4, v5"); e(f"v_lshl_add_u32 v{VVO}, v3, 8, v5")
    e(f"v_xor_b32 v{VVO+1}, 128, v{VVO}")
    kcls = g("kcls")
    assert max(kcls) <= 5
    pk = sum((kc + 3) << (4*i) for i, kc in enumerate(kcls))
    e("s_lshl_b32 s86, s100, 2"); e(f"s_lshr_b32 s11, {pk}, s86"); e("s_and_b32 s11, s11, 15")
    e("v_mov_b32 v6, 1"); e("s_lshl_b32 s12, s3, 5")
    e("s_branch L_chunk")
    e.label("L_next")
    e._wait(vm=10)
    e.barrier()
    e.label("L_chunk")
    e.vm = []
    chunk()
    e("s_cmp_eq_u32 s80, s11"); e("s_cbranch_scc1 L_kburst")
    e("s_cmp_lt_u32 s80, 10"); e("s_cbranch_scc1 L_next")
    e._wait(vm=10)
    e.barrier()
    e.vm = [("c", set())] * 10
    def v_dma(i, lo, hi):
        for n in range(lo, hi):
            if n == lo or n % 4 == 0:
                e(f"s_add_u32 m0, s79, {24576*(1+i) + (n>>2)*4096}")
                e(f"s_add_u32 s86, s87, {i*32*24576 + (n>>2)*4096}")
            e(f"buffer_load_dwordx4 v{VVO + (n&1)}, {S(SV,4)}, s86 offen offset:{(n&3)*1024} {nt_kv} lds", tag="v")
    v_dma(0, 0, 6)
    e(f"v_add_u32 v5, s9, v{LO}")
    for n in range(2): e(f"ds_write_b128 v5, {V(KS + 4*n, 4)} offset:{k_unit(5) + n*1024}")
    e("v_add_u32 v5, s75, v3"); e("v_mul_u32_u24 v5, 1280, v5")
    for k in range(4):
        e(f"v_or_b32 v7, {(k & 1) << 2}, v3"); e("v_lshlrev_b32 v7, 1, v7"); e("v_xor_b32 v7, v7, v4")
        e(f"v_lshl_add_u32 v7, v7, 4, v5")
        e(f"v_add_u32 v{WVO+k}, {4*k*1280 - k*1024}, v7")
    e.wait_vm_tag("c", lgkm=0); e.barrier()
    v_dma(1, 0, 4)
    e(f"s_mul_i32 s88, s38, {1024*1280}"); e("s_lshl_b32 s86, s74, 8"); e("s_add_u32 s88, s88, s86")
    e(f"s_mul_i32 s89, s3, {32*49152}"); e("s_lshl_b32 s86, s73, 13"); e("s_add_u32 s89, s89, s86")
    e("s_lshr_b32 s86, s37, 1"); e("s_mul_i32 s86, s86, 49152"); e("s_add_u32 s89, s89, s86")
    e("s_lshl_b32 s86, s10, 12"); e("s_add_u32 s89, s89, s86")
    e("s_mul_i32 s90, s73, 171"); e("s_bfe_u32 s90, s90, 0x40006"); e("s_mov_b32 s91, s90")
    wtab = sum(WO_SLOTS[c % NW] << (4*c) for c in range(16)); otab = sum(O_SLOTS[c % NO] << (4*c) for c in range(16))
    e(f"s_mov_b32 s14, {wtab & 0xffffffff}"); e(f"s_mov_b32 s15, {wtab >> 32}")
    e(f"s_mov_b32 s16, {otab & 0xffffffff}"); e(f"s_mov_b32 s17, {otab >> 32}")
    e("v_and_b32 v30, 7, v0"); e("v_lshlrev_b32 v30, 5, v30")
    e.barrier()
    fs()
    v_dma(1, 4, 6)
    cnt = f"buffer_load_dword v7, v30, {S(SDBG,4)}, 0 offen sc1"
    e(cnt)
    wn = [0]; on = [0]
    def w_pre():
        e("s_and_b32 s84, s14, 15"); e("s_lshr_b64 s[14:15], s[14:15], 4"); e("s_lshl_b32 s84, s84, 14"); e("s_add_u32 s84, s84, s78")
        e(f"s_mul_i32 s82, s90, {64*1280}"); e("s_add_u32 s82, s82, s88"); e("s_add_u32 s90, s90, 1"); e("s_and_b32 s90, s90, 15")
    def w_go():
        e("s_mov_b32 m0, s84")
        for k in range(4):
            e(f"buffer_load_dwordx4 v{WVO+k}, {S(SWO,4)}, s82 offen offset:{k*1024} lds", tag=f"w{wn[0]}")
        wn[0] += 1
    def o_pre():
        e("s_and_b32 s85, s16, 15"); e("s_lshr_b64 s[16:17], s[16:17], 4"); e("s_lshl_b32 s85, s85, 14"); e("s_add_u32 s85, s85, s78")
        e(f"s_mul_i32 s83, s91, {2*49152}"); e("s_add_u32 s83, s83, s89"); e("s_add_u32 s91, s91, 1"); e("s_and_b32 s91, s91, 15")
    def o_go():
        e("s_mov_b32 m0, s85")
        for k in range(4):
            e(f"buffer_load_dwordx4 v{LO}, {S(SWS,4)}, s83 offen offset:{k*1024} {ld_o} lds", tag=f"o{on[0]}")
        on[0] += 1
    for _ in range(g("pre")): w_pre(); w_go()
    spin(e, "cnt", cnt, "v_cmp_gt_u32 vcc, 32, v7")
    assert not any(t == "v" for t, _ in e.vm)
    fs(); e.barrier()
    e("s_lshl_b32 s86, s73, 3"); e("s_mul_i32 s87, s86, 43"); e("s_lshr_b32 s87, s87, 9")
    e("s_add_u32 s86, s86, 7"); e("s_mul_i32 s86, s86, 43"); e("s_lshr_b32 s86, s86, 9")
    e("v_bfe_u32 v5, v0, 3, 1"); e("v_add_u32 v5, s87, v5"); e("v_min_u32 v5, s86, v5")
    e("v_and_b32 v7, 7, v0"); e("v_lshl_add_u32 v5, v5, 3, v7"); e(f"v_mul_u32_u24 v29, {FS}, v5")
    e("v_cmp_ne_u32 s[24:25], s4, v5"); e("s_and_b64 s[24:25], s[24:25], 0xffff")
    e("v_mov_b32 v7, 0")
    w_pre(); o_pre()
    if g("bs"):
        e.barrier()
        for _ in range(g("bs")): w_go(); w_pre()
    fs()
    e("s_cmp_lg_u32 s37, 0")
    e.barrier()
    e("s_cbranch_scc1 L_noflag")
    e("s_mov_b64 exec, 1")
    e(f"buffer_store_dword v6, v{ZR}, {S(SWS,4)}, s96 offen sc1", tag="flag")
    e("s_mov_b64 exec, -1")
    e.label("L_noflag")
    e("s_cmp_ge_u32 s4, 30"); e("s_cbranch_scc1 L_ldone")
    poll = f"buffer_load_dword v7, v29, {S(SWS,4)}, s35 offen sc1"
    for i in range(g("ba") + 1):
        if i == g("lpoll"):
            e("s_cmp_lg_u32 s37, 0"); e("s_cbranch_scc1 L_nopoll")
            e("s_mov_b64 exec, s[24:25]")
            e(poll, tag="poll")
            e("s_mov_b64 exec, -1")
            e.label("L_nopoll")
        if i < g("ba"): w_go(); w_pre()
    full = [(t, set()) for t, _ in e.vm]
    e("s_cmp_lg_u32 s37, 0"); e("s_cbranch_scc1 L_seen")
    e("s_mov_b64 exec, s[24:25]")
    spin(e, "f1", poll, "v_cmp_ne_u32 vcc, 1, v7")
    e("s_mov_b64 exec, -1")
    e.label("L_seen")
    e.vm = full
    fs(); e.barrier()
    fs()
    lead = wn[0]
    assert 3 <= lead <= NW
    wk = [0]
    def w_piece(fresh):
        if wk[0] == 0 and wn[0] > lead: w_pre()
        if fresh or wk[0] == 0: e("s_mov_b32 m0, s84")
        e(f"buffer_load_dwordx4 v{WVO+wk[0]}, {S(SWO,4)}, s82 offen offset:{wk[0]*1024} lds", tag=f"w{wn[0]}")
        wk[0] += 1
        if wk[0] == 4: wk[0] = 0; wn[0] += 1
    o_go(); o_pre(); o_go(); o_pre()
    for i in range(g("bf", 0)): w_piece(i == 0)
    e.wait_vm_tag(["o0", "w0"]); e.barrier()
    o_go(); o_pre()
    for i in range(g("b2", 0)): w_piece(i == 0)
    assert wn[0] + (wk[0] > 0) <= NW
    rate = (64 - 4*wn[0] - wk[0]) / 13.0 + g("wbias", 0); credit = g("credit0", 0.5)
    for c in range(15):
        e.wait_vm_tag([f"o{c+1}", f"w{c+1}"]); e.barrier()
        if on[0] < 16:
            o_go()
            if on[0] < 16: o_pre()
        credit += rate
        fresh = True
        while wn[0] < 16 and (credit >= 1 or wn[0] <= c + 3) and wn[0] <= c + NW:
            w_piece(fresh); fresh = False; credit -= 1
        if g("verbose"): print("period", c, on[0], wn[0], wk[0])
    assert on[0] == 16 and wn[0] == 16
    e.label("L_ldone")
    fs.out(SWS, 1)
    e("s_endpgm")
    e.label("L_kburst")
    e._wait(vm=10)
    e.barrier()
    e.vm = []
    for n in range(12):
        if n >= 10:
            e(f"buffer_load_dwordx4 {V(KS + 4*(n-10), 4)}, v{KVO + (n&1)}, {S(SK,4)}, s8 offen offset:{(n&1)*1024} {nt_kv}")
            continue
        if n & 1 == 0: e(f"s_add_u32 m0, s9, {k_unit(n >> 1)}")
        e(f"buffer_load_dwordx4 v{KVO + (n&1)}, {S(SK,4)}, s8 offen offset:{(n&1)*1024} {nt_kv} lds")
        if n & 1: e("s_add_u32 s8, s8, 4096")
        if n == 1:
            e("s_cmp_lg_u32 s37, 0"); e("s_cbranch_scc1 L_noinc")
            e("s_mov_b64 exec, 1")
            e(f"buffer_atomic_add v6, v{ZR}, {S(SDBG,4)}, s12 offen sc1")
            e("s_mov_b64 exec, -1")
            e.label("L_noinc")
    e("s_mov_b32 s11, 0")
    e("s_cmp_lg_u32 s37, 0"); e("s_cbranch_scc1 L_kw")
    e._wait(vm=13); e("s_branch L_kb")
    e.label("L_kw")
    e._wait(vm=12)
    e.label("L_kb")
    e.barrier()
    e.vm = []
    chunk()
    e("s_branch L_chunk")

    e.label("L_compute")
    e.vm, e.smem_pending = list(st0[0]), st0[1]
    e.lgkm = []
    tile_ids(); ws_ids()
    e(f"s_mov_b32 s{SC}, {f2u(SCALE)}"); e(f"s_mov_b32 s{SC+1}, s{SC}"); e(f"s_mov_b32 s{SC+2}, {f2u(-SCALE)}")
    e(f"s_lshl_b32 s{SO}, s5, 5"); e(f"s_add_u32 s{SO}, s{SO}, s6"); e(f"s_mul_i32 s{SO}, s{SO}, 192")
    e(f"s_mul_i32 s{SO+1}, s72, 3"); e(f"s_add_u32 s{SO}, s{SO}, s{SO+1}"); e(f"s_lshl_b32 s{SO}, s{SO}, 10")
    for sp in range(1, 4): e(f"s_add_u32 s{SO+sp}, s{SO}, {sp*48*1024}")
    tr_addr(WQRA, 8, 3)
    e(f"s_mul_i32 s75, s37, 6144"); e(f"s_add_u32 s75, s75, {L_X}")
    e("v_lshrrev_b32 v5, 1, v4"); e("v_xor_b32 v5, v5, v3"); e("v_lshlrev_b32 v5, 4, v5")
    e("v_lshl_add_u32 v5, v4, 7, v5"); e(f"v_add_u32 v{XRA}, s75, v5"); e(f"v_xor_b32 v5, 64, v5"); e(f"v_add_u32 v{XRA+1}, s75, v5")
    e("s_lshr_b32 s76, s37, 1")
    e("v_lshrrev_b32 v5, 1, v3"); e("v_xor_b32 v5, v5, v4"); e("v_lshlrev_b32 v5, 4, v5"); e("v_lshl_add_u32 v5, v4, 8, v5")
    e("v_and_b32 v6, 1, v3"); e("v_lshl_add_u32 v5, v6, 3, v5")
    e("s_lshl_b32 s86, s76, 12"); e(f"s_add_u32 s86, s86, {L_K}"); e(f"v_add_u32 v{KA}, s86, v5")
    for x in range(1, 8): e(f"v_xor_b32 v{KA + x}, {x << 5}, v{KA}")
    e("s_mul_i32 s77, s76, 24576"); e(f"s_add_u32 s77, s77, {L_V}")
    e("v_lshlrev_b32 v5, 10, v3"); e(f"v_sub_u32 v{VD}, s77, v5")
    e(f"v_lshlrev_b32 v{LO}, 4, v0")
    e.wait_lgkm(0)
    stamp0()
    srd(e, SOUT, 28, OUT_BYTES)
    e("s_lshl_b32 s13, s32, 13"); e(f"s_add_u32 s13, s13, {WS_P}")
    e("s_lshl_b32 s86, s38, 11"); e("s_add_u32 s86, s86, s13"); e("s_lshl_b32 s87, s38, 13"); e("s_add_u32 s87, s87, s13")
    e("s_lshl_b32 s12, s76, 12"); e(f"s_add_u32 s12, s12, {L_O}")
    for u in range(4):
        e(f"s_add_u32 s11, s38, {u + 1}"); e("s_and_b32 s11, s11, 3")
        if u < 3:
            e(f"s_lshl_b32 s{14+u}, s11, 13"); e(f"s_add_u32 s{14+u}, s{14+u}, s86")
            e(f"s_lshl_b32 s{17+u}, s11, 11"); e(f"s_add_u32 s{17+u}, s{17+u}, s87")
        e(f"s_lshl_b32 s{24+u}, s11, 10"); e(f"s_add_u32 s{24+u}, s{24+u}, s12")
    e("s_add_u32 s11, s32, s38"); e(f"s_mul_i32 s11, s11, {4*F2}"); e(f"s_add_u32 s11, s11, {WS_F2}")
    e("s_lshl_b32 s20, 1, s38"); e("s_xor_b32 s20, s20, 15"); e("s_mov_b32 s21, 0")
    e("s_lshl_b32 s88, s73, 3"); e("s_lshl_b32 s89, s76, 2"); e("s_add_u32 s88, s88, s89"); e("s_add_u32 s88, s88, s38")
    e(f"s_mul_i32 s88, s88, {16*2560}"); e("s_mul_i32 s89, s5, 1280"); e("s_add_u32 s88, s88, s89")
    e("s_lshl_b32 s89, s74, 8"); e("s_add_u32 s88, s88, s89"); e("s_and_b32 s89, s37, 1"); e("s_lshl_b32 s22, s89, 2"); e("s_lshl_b32 s89, s89, 7"); e("s_add_u32 s88, s88, s89")
    e("v_mul_u32_u24 v21, 2560, v4"); e("v_lshl_add_u32 v21, v3, 3, v21")
    e(f"v_mul_u32_u24 v20, {F2}, v0")
    fs()
    e.barrier()
    fs()
    def reads(c, kk, st):
        slot = c % 3
        rb = [f"ds_read_b128 {V(BF + st*12 + u*4, 4)}, v{XRA+kk} offset:{slot*24576 + u*2048}" for u in range(3)]
        ra = [f"ds_read_b64_tr_b16 {V(AF + st*32 + t*4 + j*2, 2)}, v{WQRA+t} offset:{slot*16384 + kk*8192 + j*1024}" for t in range(8) for j in range(2)]
        return ra[:2] + rb + ra[2:]
    put(e, reads(0, 0, 0))
    def half0(c): interleave(e, mfmas(0, c == 0), reads(c, 1, 1) + {8: kr[5:10], 9: kr[15:20]}.get(c, []), per=1)
    def half1(c): interleave(e, mfmas(1, False), reads(c + 1, 0, 0) + {7: kr[:5], 8: kr[10:15]}.get(c, []), per=1)
    def bar(c): e.wait_lgkm(5 if c >= 8 else 0); e.barrier()
    if g("cloop", 1) and not g("fine"):
        half0(0); bar(0)
        e("s_mov_b32 s83, 2")
        e.label("L_q")
        for c in range(3): half1(c); half0(c + 1); bar(c + 1)
        e("s_sub_u32 s83, s83, 1"); e("s_cmp_lg_u32 s83, 0"); e("s_cbranch_scc1 L_q")
        for c in range(6, 9): half1(c); half0(c + 1); bar(c + 1)
    else:
        for c in range(10):
            half0(c); bar(c)
            if c in (4, 9): fs()
            if c < 9: half1(c)
    order = attention_order(g, st_o)
    for x in order:
        if x == "BAR V":
            fs(); e.barrier(); fs()
        else: e(x)
    fs()
    if g("bs") and g("bs_vm") is None: e.barrier()
    RA, RA2, ORA = 8, 12, 16
    tr_addr(RA, 4, 2, xor="s22")
    for t in range(4): e(f"v_add_u32 v{RA2+t}, 0x10000, v{RA+t}")
    for u in range(4): e(f"v_add_u32 v{ORA+u}, s{24+u}, v{LO}")
    e("v_lshlrev_b32 v23, 2, v20"); e("v_mov_b32 v6, 1")
    if g("bs") and g("bs_vm") is not None:
        e._wait(vm=g("bs_vm")); e.barrier()
    e.wait_all()
    fs()
    e("s_cmp_ge_u32 s4, 30")
    e.barrier()
    e("s_cbranch_scc1 L_cdone")
    e.barrier()
    if g("chain2", 1):
        F2R, AC2 = 24, 152
        def af2(c, kk, t): return F2R + (c & 1)*64 + kk*16 + t*4
        def bf2(c, kk, u): return F2R + (c & 1)*64 + 32 + kk*16 + u*4
        def ac2(t, u): return AC2 + (t*4+u)*4
        def reads2(c):
            slot = WO_SLOTS[c % NW]
            base = RA if slot < 4 else RA2
            ra = lambda t, kk: [f"ds_read_b64_tr_b16 {V(af2(c,kk,t) + j*2, 2)}, v{base+t} offset:{(slot & 3)*16384 + kk*8192 + j*4096}" for j in range(2)]
            rb = lambda u, kk: [f"ds_read_b128 {V(bf2(c,kk,u), 4)}, v{ORA+u} offset:{O_SLOTS[c % NO]*16384 - L_O + kk*8192}"]
            if c == 15:
                return rb(0, 0) + ra(0, 0) + rb(0, 1) + ra(0, 1) + sum([ra(t, kk) for t in range(1, 4) for kk in range(2)], []) + sum([rb(u, kk) for u in range(1, 4) for kk in range(2)], [])
            return ra(0, 0) + rb(0, 0) + ra(0, 1) + rb(0, 1) + sum([rb(u, kk) for u in range(1, 4) for kk in ((1, 0) if u & 1 else (0, 1))], []) + sum([ra(t, kk) for t in range(1, 4) for kk in range(2)], [])
        def pair(c, t, u, flip):
            o = []
            for i, kk in enumerate((1, 0) if flip else (0, 1)):
                d = V(ac2(t, u), 4)
                o.append(f"{MF} {d}, {V(af2(c,kk,t),4)}, {V(bf2(c,kk,u),4)}, {'0' if c == 0 and i == 0 else d}")
            return o
        e.barrier()
        fs()
        r0 = reads2(0)
        put(e, r0[:12])
        for c in range(15):
            m = sum([pair(c, t, u if t % 2 == 0 else 3 - u, u & 1) for t in range(4) for u in range(4)], [])
            nb = 12 if c == 0 else 8
            interleave(e, m[:nb], r0[12:] if c == 0 else [], per=2)
            e.wait_lgkm(0); e.barrier()
            if c == 7: fs()
            interleave(e, m[nb:], reads2(c + 1), per=None if c == 0 else 1)
        prog = []
        for u in range(4):
            prog += sum([pair(15, t if u % 2 == 0 else 3 - t, u, t & 1) for t in range(4)], [])
            if u < 3:
                for tp in ((0, 1) if u % 2 == 0 else (1, 0)):
                    a = ac2(2*tp, u)
                    prog += pack4(a, ac2(2*tp+1, u))
                    prog.append(f"buffer_store_dwordx4 {V(a,4)}, v{LO}, {S(SWS,4)}, s{14+u} offen offset:{tp*1024} {st_p}")
    else:
        AF2, BF2, AC2 = 24, 56, 112
        def reads2(c, kk, st):
            slot = WO_SLOTS[c % NW]
            base = RA if slot < 4 else RA2
            ra = [f"ds_read_b64_tr_b16 {V(AF2 + st*16 + t*4 + j*2, 2)}, v{base+t} offset:{(slot & 3)*16384 + kk*8192 + j*4096}" for t in range(4) for j in range(2)]
            rb = [f"ds_read_b128 {V(BF2 + st*16 + u*4, 4)}, v{ORA+u} offset:{O_SLOTS[c % NO]*16384 - L_O + kk*8192}" for u in range(4)]
            return ra[:2] + rb + ra[2:]
        def ac2(t, u): return AC2 + (t*4+u)*4
        def mf2(st, t, u, first=False):
            return f"{MF} {V(ac2(t,u),4)}, {V(AF2 + st*16 + t*4, 4)}, {V(BF2 + st*16 + u*4, 4)}, {'0' if first else V(ac2(t,u),4)}"
        def mfmas2(st, first):
            return [mf2(st, t, u if t % 2 == 0 else 3 - u, first) for t in range(4) for u in range(4)]
        e.barrier()
        fs()
        put(e, reads2(0, 0, 0))
        for c in range(15):
            interleave(e, mfmas2(0, c == 0), reads2(c, 1, 1), per=1)
            e.wait_lgkm(0); e.barrier()
            if c == 7: fs()
            interleave(e, mfmas2(1, False), reads2(c + 1, 0, 0), per=1)
        prog = reads2(15, 1, 1)
        for u in range(4):
            prog += [mf2(st, t, u) for st in range(2) for t in range(4)]
            if u < 3:
                for tp in range(2):
                    a = ac2(2*tp, u)
                    prog += pack4(a, ac2(2*tp+1, u))
                    prog.append(f"buffer_store_dwordx4 {V(a,4)}, v{LO}, {S(SWS,4)}, s{14+u} offen offset:{tp*1024} {st_p}")
    order, tm = schedule(prog, verbose=g("verbose"))
    put(e, order)
    fs()
    poll = f"buffer_load_dword v7, v20, {S(SWS,4)}, s11 offen sc1"
    e("s_mov_b64 exec, s[20:21]")
    if g("early2", 0): e(poll)
    e.wait_all(lgkm=False)
    e(f"buffer_store_dword v6, v23, {S(SWS,4)}, s33 offen sc1")
    if not g("early2", 0): e(poll)
    fs()
    spin(e, "f2", poll, "v_cmp_ne_u32 vcc, 1, v7", g("psleep2", 0))
    e("s_mov_b64 exec, -1")
    fs()
    PK = 24
    for i in range(3):
        for tp in range(2):
            e(f"buffer_load_dwordx4 {V(PK + (i*2+tp)*4, 4)}, v{LO}, {S(SWS,4)}, s{17+i} offen offset:{tp*1024} {ld_p}")
    e("s_mov_b32 s86, 0xffff0000")
    if g("otr", 1):
        e("s_lshl_b32 s87, s37, 12"); e(f"s_add_u32 s89, s88, {8*2560}")
        e("v_mul_u32_u24 v8, 144, v4"); e("v_lshl_add_u32 v8, v3, 3, v8"); e("v_add_u32 v8, s87, v8")
        e("v_lshrrev_b32 v10, 3, v0"); e("v_and_b32 v11, 7, v0"); e("v_lshlrev_b32 v11, 4, v11")
        e("v_mul_u32_u24 v9, 144, v10"); e("v_add3_u32 v9, v9, v11, s87")
        e("v_mul_u32_u24 v10, 2560, v10"); e("v_add_u32 v10, v10, v11")
    for i in range(3):
        for tp in range(2):
            for k in range(4):
                src = PK + (i*2+tp)*4 + k; d = ac2(2*tp + (k >> 1), 3) + (k & 1)*2
                e(f"v_lshlrev_b32 v{56 + 2*(k&1)}, 16, v{src}"); e(f"v_and_b32 v{57 + 2*(k&1)}, s86, v{src}")
                e(f"v_pk_add_f32 {V(d,2)}, {V(d,2)}, {V(56 + 2*(k&1), 2)}")
                if i == 2 and k & 1:
                    t = 2*tp + (k >> 1); a = ac2(t, 3)
                    e(f"v_cvt_pk_bf16_f32 v{80+2*t}, v{a}, v{a+1}"); e(f"v_cvt_pk_bf16_f32 v{81+2*t}, v{a+2}, v{a+3}")
                    if g("otr", 1): e(f"ds_write_b64 v8, {V(80+2*t,2)} offset:{t*32}")
                    else: e(f"buffer_store_dwordx2 {V(80+2*t,2)}, v21, {S(SOUT,4)}, s88 offen offset:{t*32} {st_out}")
    if g("otr", 1):
        assert WO_SLOTS[15 % NW] != 0
        for i in range(2): e(f"ds_read_b128 {V(24+4*i,4)}, v9 offset:{i*8*144}")
        e(f"buffer_store_dwordx4 v[24:27], v10, {S(SOUT,4)}, s88 offen {st_out}")
        e(f"buffer_store_dwordx4 v[28:31], v10, {S(SOUT,4)}, s89 offen {st_out}")
    e.label("L_cdone")
    fs.out(SWS)
    e.label("L_end")
    e("s_endpgm")
    return e

def build(opt, fn):
    K = NAME + "_kernel"
    e = kernel(opt)
    e.lines, fixed, missed = align(e.lines, lambda t: header([(None, 256, 512, 163840)]) + kstart(K) + t)
    if opt.get("verbose"): print("aligned", fixed, "missed", missed)
    txt = header([(None, 256, 512, 163840)]) + kstart(K) + e.text() + RODATA + kdesc(K, 256, 102, 256)
    open(fn, "w").write(txt)
    return e

if __name__ == "__main__":
    e = build({"verbose": len(sys.argv) > 1}, "v8.s")
    print("nops", e.nops, "instrs", sum(e.count.values()))
```

```python
from emit import regs_of

def parse(x):
    mn, _, rest = x.partition(' ')
    ops = [set(regs_of(o.strip().split(' ')[0])) for o in rest.split(',')] if rest else []
    ops = [set(r for r in o if r[0] in 'va') for o in ops]
    allr = lambda l: set().union(*l) if l else set()
    if mn.startswith('v_mfma'): return 'm', ops[0], allr(ops[1:])
    if mn.startswith('ds_read'): return 'd', ops[0], ops[1]
    if mn.startswith('ds_write'): return 'w', set(), allr(ops)
    if mn.startswith('buffer_store'): return 's', set(), allr(ops)
    if mn == 'BAR': return 'b', set(), set()
    if 'permlane' in mn: return 'v', allr(ops), allr(ops)
    if mn.startswith('v_pk'): return 'p', ops[0], allr(ops[1:])
    if mn.startswith('v_exp') or mn.startswith('v_rcp'): return 't', ops[0], allr(ops[1:])
    return 'v', ops[0], allr(ops[1:])

LAT0 = {'m': 48, 'd': 130, 'v': 6, 'p': 8, 't': 14, 'w': 4, 's': 4, 'b': 20}
OCC0 = {'m': 8, 'd': 4.4, 'v': 4.4, 'p': 4.6, 't': 8.4, 'w': 8, 's': 30, 'b': 4}

def schedule(prog, extra=(), earliest=None, verbose=False, pkmin=4, occ=None, lat=None, slack=1.5, shadow=False):
    OCC = dict(OCC0, **(occ or {})); LAT = dict(LAT0, **(lat or {}))
    n = len(prog); P = [parse(x) for x in prog]
    succ = [[] for _ in range(n)]; npred = [0] * n
    def edge(i, j, lat):
        succ[i].append((j, lat)); npred[j] += 1
    lastw = {}; readers = {}
    for j, (k, d, s) in enumerate(P):
        deps = {}
        for r in s:
            if r in lastw:
                i = lastw[r]; lat = LAT[P[i][0]]
                if P[i][0] == 'm' and k == 'm' and r in d: lat = 16
                if P[i][0] in 'vtp' and k == 'm': lat = max(lat, 12)
                if P[i][0] == 'v' and 'permlane' in prog[j]: lat = 12
                deps[i] = max(deps.get(i, 0), lat)
        for r in d:
            if r in lastw and lastw[r] not in deps:
                i = lastw[r]; deps[i] = max(deps.get(i, 0), LAT[P[i][0]] if P[i][0] in 'md' else 4)
            for i in readers.get(r, ()):
                if i != j: deps[i] = max(deps.get(i, 0), 12 if P[i][0] == 's' else 4)
        for i, lat in deps.items(): edge(i, j, lat)
        for r in s: readers.setdefault(r, []).append(j)
        for r in d: lastw[r] = j; readers[r] = []
    for i, j in extra: edge(i, j, LAT[P[i][0]] if P[i][0] in 'dwb' else 4)
    ready_t = [(earliest or {}).get(i, 0) for i in range(n)]
    avail = [i for i in range(n) if npred[i] == 0]
    t = 0.0; mpipe = 0.0; mlast = -100.0; lds = 0.0; order = []; inpk = False
    while avail:
        def start(i):
            k = P[i][0]; st = max(t, ready_t[i])
            if k == 'm': st = max(st, mpipe)
            elif k == 'p': st = max(st, mlast + 26)
            elif k in 'dw':
                if shadow and t == mlast + OCC['m']: st = max(t - 4, ready_t[i])
                st = max(st, lds - 16)
            return st
        pks = [i for i in avail if P[i][0] == 'p' and ready_t[i] <= t + 20]
        vec = [i for i in avail if P[i][0] in 'vtp' and ready_t[i] <= t + 20]
        if not pks: inpk = False
        elif not inpk and min(vec) in pks and (len(pks) >= pkmin or not any(P[i][0] == 'm' for i in avail)): inpk = True
        cand = [i for i in avail if not (inpk and P[i][0] == 'm') and (inpk or P[i][0] != 'p')] or avail
        i = min(cand, key=lambda i: (start(i), 0 if P[i][0] in 'mp' else 1, i))
        st = start(i); k = P[i][0]
        if k in 'vtd' and not inpk:
            ms = [j for j in avail if P[j][0] == 'm' and start(j) <= st + slack]
            if ms: i = min(ms); k = 'm'; st = start(i)
        order.append(i); avail.remove(i)
        t = max(t + 0.01, st + OCC[k])
        if k == 'm': mpipe = st + 16; mlast = st
        elif k == 'p': mpipe = max(mpipe, st + 8)
        elif k in 'dw': lds = max(lds, st) + (16 if 'b128' in prog[i] else 8)
        for j, lat in succ[i]:
            ready_t[j] = max(ready_t[j], st + lat); npred[j] -= 1
            if npred[j] == 0: avail.append(j)
        if verbose: print(int(st), prog[i][:70])
    assert len(order) == n
    return [prog[i] for i in order], t
```

```python
import gen8, sys
N = "concat_heads__gqa_block_cached__mha_block_cached__near_ridge"
gen8.build(eval(sys.argv[1]) if len(sys.argv) > 1 else {}, "final_body.s")
body = open("final_body.s").read()
ref = open(f"../cdna_kernels/{N}.s.ref").read().split("\n")
head = [l for l in ref[:ref.index(next(x for x in ref if x.startswith("; Override launch")))]]
doc = """;
; Generated by a script of my own (register allocation, instruction order, wait states and wait counts)."""
open(f"../cdna_kernels/{N}.s", "w").write("\n".join(head) + "\n" + doc + "\n" + body)
```

```python
import sys, math, struct
from asmlib import *
from emit import *
from sched import schedule
from align import align

def f2u(x): return struct.unpack("<I", struct.pack("<f", x))[0]
SCALE = math.log2(math.e) / math.sqrt(128.0)
WS_O = 0
WS_P = 16 << 20
WS_F1 = 32 << 20
WS_F2 = 33 << 20
WS_ST = 64 << 20
X_BYTES, KV_BYTES, W_BYTES, OUT_BYTES, WS_BYTES = 983040, 6291456, 5242880, 1966080, 268435456
L_W, L_E, L_X = 0, 49152, 90112
L_K = 24576
def k_unit(T): return 0 if T == 5 else 24576 + T * 8192
L_V = L_X + 24576
L_Q = 0
def orders2(leadslots):
    first = [0, 1, 2, 3, 4, 5]
    lead = {}
    for i, sl in enumerate(leadslots): lead[(sl, i % 6)] = 6 + i
    avail_at = {c: 0 for c in first}
    for (sl, m), c in lead.items(): avail_at[c] = sl
    out = []
    for m in range(6):
        o = [first[m]]; mine = {c for (sl, mm), c in lead.items() if mm == m}
        for sl in range(1, 16):
            if (sl, m) in lead: o.append(lead[(sl, m)]); continue
            cand = sorted((avail_at[c], (c - m) % 16, c) for c in range(16) if c not in o and c not in mine)
            o.append(cand[0][2])
        assert sorted(o) == list(range(16))
        out.append(o)
    return out
SPIN = 1 << 18
O5 = [[0,1,2,4,3,8,5,6,7,9],[0,2,1,3,6,4,5,7,8,9],[1,0,3,5,2,9,4,6,7,8],[1,3,0,2,7,4,5,6,8,9]]
ALT = [list(range(10)), list(range(10)), [1,0,3,2,5,4,7,6,9,8], [1,0,3,2,5,4,7,6,9,8]]
DEFAULTS = dict(orders=ALT, kcls=[0, 3, 1, 4], woplan={"pre": 1, "ba": 3}, bv_t=1700, rot2=6, psleep=2, fstride=64,
                nt_kv="nt", nt_w="", nt_x="", nt_wo="", st_o="sc1", ld_o="sc1", st_p="sc1", ld_p="sc1", st_out="")

def srd(e, r, lo, size):
    e(f"s_mov_b32 s{r}, s{lo}"); e(f"s_mov_b32 s{r+1}, s{lo+1}")
    e(f"s_mov_b32 s{r+2}, {size}"); e(f"s_mov_b32 s{r+3}, 0x20000")

class Fine:
    def __init__(self, e, opt): self.e, self.on, self.n = e, opt.get("fine"), 0
    def __call__(self):
        if not self.on: return
        assert self.n < 32
        self.e("s_memrealtime s[94:95]"); self.e("s_memtime s[98:99]"); self.e.wait_lgkm(0)
        self.e(f"v_writelane_b32 v1, s94, {self.n}")
        self.e(f"v_writelane_b32 v1, s98, {self.n + 32}")
        self.n += 1
    def out(self, sws, ld=0):
        if not self.on: return
        e = self.e
        e.wait_all(); self()
        e("s_lshl_b32 s97, s2, 3"); e("s_add_u32 s97, s97, s37"); e(f"s_add_u32 s97, s97, {4*ld}"); e("s_lshl_b32 s97, s97, 8"); e(f"s_add_u32 s97, s97, {WS_ST}")
        e("v_lshlrev_b32 v4, 2, v0")
        e(f"buffer_store_dword v1, v4, {S(sws,4)}, s97 offen")

def merge(a, b):
    out = []; i = j = 0
    while i < len(a) or j < len(b):
        if i < len(a): out.append(a[i]); i += 1
        if j < len(b): out.append(b[j]); j += 1
    return out

def ops_of(x):
    return [set(regs_of(o.strip().split(' ')[0])) for o in x.partition(' ')[2].split(',')]
def cost(x): return 2 if x.startswith("v_exp") or x.startswith("v_rcp") else 1
def weave(e, mf, fill, budget, ds=None, dsrate=1):
    fill = list(fill); acc = 0.0
    for i, m in enumerate(mf):
        o = ops_of(m); need = o[1] | o[2]
        last = max([k for k, x in enumerate(fill) if (x.startswith("ds_read") or x.startswith("v_mov")) and ops_of(x)[0] & need], default=-1)
        for _ in range(last + 1):
            acc -= cost(fill[0]); e(fill.pop(0))
        if ds:
            last = max([k for k, x in enumerate(ds) if ops_of(x)[0] & need], default=-1)
            for _ in range(last + 1): e(ds.pop(0))
        e(m); acc += budget
        if ds:
            e(ds.pop(0))
            if dsrate > 1 and ds: e(ds.pop(0))
        pend = set().union(*[ops_of(x)[0] for x in mf[max(0, i-2):]])
        while fill and acc >= cost(fill[0]):
            if fill[0].startswith("v_") and set().union(*ops_of(fill[0])[1:]) & pend:
                acc = min(acc, budget); break
            acc -= cost(fill[0]); e(fill.pop(0))
    return fill

MF = "v_mfma_f32_16x16x32_bf16"
SX, SK, SV, SW, SWS, SWO, SOUT, SDBG = 40, 44, 48, 52, 56, 60, 44, 64
SC = 96
SO = 68

class Tile:
    def __init__(self, u, q, st, ot, lt, kf, ones, LO, st_o):
        self.__dict__.update(locals())
    def s(self):
        return [f"{MF} {V(self.st[T],4)}, {V(self.kf(T*4+s),4)}, {V(self.q[s],4)}, {'0' if s == 0 else V(self.st[T],4)}" for T in range(6) for s in range(4)]
    def pv(self):
        o = [f"{MF} {V(self.lt,4)}, {V(self.ones,4)}, {V(self.q[s],4)}, {'0' if s == 0 else V(self.lt,4)}" for s in range(3)]
        return o + [f"{MF} {V(self.ot[t],4)}, {V(self.kf(t*3+s),4)}, {V(self.q[s],4)}, {'0' if s == 0 else V(self.ot[t],4)}" for t in range(8) for s in range(3)]
    def softmax(self):
        MX = self.q[3]; TM = MX + 2
        o = []
        vals = [self.st[T] + r for T in range(6) for r in range(4)]
        o.append(f"v_max3_f32 v{MX}, v{vals[0]}, v{vals[1]}, v{vals[2]}")
        o.append(f"v_max3_f32 v{TM}, v{vals[3]}, v{vals[4]}, v{vals[5]}")
        for i in range(6, 22, 4):
            o.append(f"v_max3_f32 v{MX}, v{MX}, v{vals[i]}, v{vals[i+1]}")
            o.append(f"v_max3_f32 v{TM}, v{TM}, v{vals[i+2]}, v{vals[i+3]}")
        o.append(f"v_max3_f32 v{MX}, v{MX}, v{vals[22]}, v{vals[23]}")
        o.append(f"v_max_f32 v{TM+1}, v{MX}, v{TM}"); o.append(f"v_max_f32 v{MX}, v{MX}, v{TM}")
        o.append(f"v_permlane16_swap_b32 v{TM+1}, v{MX}")
        o.append(f"v_max_f32 v{TM}, v{MX}, v{TM+1}"); o.append(f"v_max_f32 v{MX}, v{MX}, v{TM+1}")
        o.append(f"v_permlane32_swap_b32 v{TM}, v{MX}")
        o.append(f"v_max_f32 v{MX}, v{MX}, v{TM}")
        o.append(f"v_mul_f32 v{MX}, s{SC}, v{MX}")
        def cv(T): return [f"v_cvt_pk_bf16_f32 v{self.q[T>>1] + (T&1)*2 + (r>>1)}, v{self.st[T]+r}, v{self.st[T]+r+1}" for r in (0, 2)]
        for T in range(6):
            x = self.st[T]
            for r in range(4): o.append(f"v_fmamk_f32 v{x+r}, v{x+r}, {hex(f2u(SCALE))}, v{MX}")
            if T > 0: o += cv(T - 1)
            for r in range(4): o.append(f"v_exp_f32 v{x+r}, v{x+r}")
        return o + cv(5)
    def rcp(self): return [f"v_rcp_f32 v{self.lt}, v{self.lt}"]
    def out(self, sp):
        a, b = self.ot[2*sp], self.ot[2*sp+1]
        o = [f"v_mul_f32 v{a+r}, v{self.lt}, v{a+r}" for r in range(4)]
        o += [f"v_cvt_pk_bf16_f32 v{a}, v{a}, v{a+1}", f"v_cvt_pk_bf16_f32 v{a+1}, v{a+2}, v{a+3}"]
        o += [f"v_mul_f32 v{b+r}, v{self.lt}, v{b+r}" for r in range(4)]
        o += [f"v_cvt_pk_bf16_f32 v{a+2}, v{b}, v{b+1}", f"v_cvt_pk_bf16_f32 v{a+3}, v{b+2}, v{b+3}",
              f"buffer_store_dwordx4 {V(a,4)}, v{self.LO}, {S(SWS,4)}, s{SO+sp} offen offset:{self.u*1024} {self.st_o}"]
        if self.st_o == "skip": o.pop()
        return o
    def outs(self): return self.rcp() + sum([self.out(sp) for sp in range(4)], [])

def kernel(opt):
    opt = dict(DEFAULTS, **opt)
    e = E()
    g = opt.get
    nt_kv, nt_w, nt_x, nt_wo = g("nt_kv"), g("nt_w"), g("nt_x"), g("nt_wo")
    st_o, ld_o, st_p, ld_p, st_out = g("st_o"), g("ld_o"), g("st_p"), g("ld_p"), g("st_out")
    WO_SLOTS, O_SLOTS = g("rings", ([2, 6, 0, 1, 3, 4, 5], [7, 8, 9]))
    NW, NO = len(WO_SLOTS), len(O_SLOTS); L_O = min(O_SLOTS) * 16384
    FS = g("fstride")
    F2 = g("f2stride", 128)
    spoll = g("spoll", 0)
    if spoll: FS = 4
    R1 = max(128, 8 * FS)
    e("s_load_dwordx16 s[8:23], s[0:1], 0")
    e("s_load_dwordx8 s[24:31], s[0:1], 64")
    e("s_load_dwordx2 s[32:33], s[0:1], 96")
    e("s_cmp_ge_u32 s2, 256"); e("s_cbranch_scc1 L_end")
    fs = Fine(e, opt)
    if g("fine"): e("s_memrealtime s[94:95]"); e("s_memtime s[98:99]")
    e("v_lshrrev_b32 v3, 6, v0"); e("v_and_b32 v0, 63, v0"); e("v_readfirstlane_b32 s36, v3")
    e("s_and_b32 s3, s2, 7"); e("s_lshr_b32 s4, s2, 3")
    e("s_lshr_b32 s5, s3, 2")
    e("s_and_b32 s38, s3, 3"); e("s_lshl_b32 s6, s38, 3"); e("s_and_b32 s39, s4, 7"); e("s_add_u32 s6, s6, s39")
    e("s_lshr_b32 s7, s4, 3")
    e("v_lshrrev_b32 v3, 4, v0"); e("v_and_b32 v4, 15, v0")
    e("s_and_b32 s37, s36, 3")
    e("s_lshl_b32 s72, s7, 2"); e("s_add_u32 s72, s72, s37")
    e("s_cmp_lt_u32 s36, 4"); e("s_cbranch_scc1 L_loader")
    e("s_getpc_b64 s[34:35]")
    e.label("L_pc")
    e("s_lshl_b32 s73, s39, 2"); e("s_add_u32 s73, s73, s37"); e("s_mul_i32 s73, s73, 1280")
    e("v_min_u32 v5, 9, v0"); e("v_lshl_add_u32 v5, v5, 7, s73")
    e("v_min_u32 v5, L_end-L_pc, v5")
    e("global_load_dword v2, v5, s[34:35]", tag="code")
    e("s_branch L_compute")
    st0 = (list(e.vm), e.smem_pending)
    def stamp0():
        if g("fine"):
            e("v_writelane_b32 v1, s94, 0"); e("v_writelane_b32 v1, s98, 32"); fs.n = 1
    def common():
        e("s_mul_i32 s73, s4, 52"); e("s_lshr_b32 s73, s73, 8")
        e("s_mul_i32 s74, s73, 5"); e("s_sub_u32 s74, s4, s74")
        e(f"s_mov_b32 s{SC}, {f2u(-SCALE)}")
    def o_offsets():
        e(f"s_lshl_b32 s{SO}, s5, 5"); e(f"s_add_u32 s{SO}, s{SO}, s6"); e(f"s_mul_i32 s{SO}, s{SO}, 192")
        e(f"s_mul_i32 s{SO+1}, s72, 3"); e(f"s_add_u32 s{SO}, s{SO}, s{SO+1}"); e(f"s_lshl_b32 s{SO}, s{SO}, 10")
        for sp in range(1, 4): e(f"s_add_u32 s{SO+sp}, s{SO}, {sp*48*1024}")
    def flag_offsets():
        e(f"s_mul_i32 s10, s3, {4*R1}"); e(f"s_add_u32 s10, s10, {WS_F1}")
        e(f"s_mul_i32 s8, s7, {R1}"); e(f"s_mul_i32 s9, s39, {FS}"); e("s_add_u32 s8, s8, s9"); e("s_add_u32 s8, s8, s10")
        e("s_lshl_b32 s12, s5, 5"); e("s_add_u32 s12, s12, s4"); e("s_lshl_b32 s12, s12, 2"); e("s_add_u32 s12, s12, s37")
        e("s_lshl_b32 s12, s12, 2")
        e(f"s_mul_i32 s11, s12, {4*F2}"); e(f"s_add_u32 s11, s11, {WS_F2}")
        e(f"s_mul_i32 s9, s38, {F2}"); e("s_add_u32 s9, s9, s11")
        e(f"s_mul_i32 s13, s38, {4*F2}"); e("s_add_u32 s11, s11, s13")
    def tr_addr(dst, n, rowshift, xor=None, base=None):
        e("v_bfe_u32 v5, v0, 2, 2"); e("v_and_b32 v6, 1, v3"); e("v_lshl_or_b32 v6, v6, 2, v5")
        if xor: e(f"v_xor_b32 v6, {xor}, v6")
        e(f"v_lshl_add_u32 v5, v3, {rowshift}, v5"); e("v_lshlrev_b32 v5, 8, v5")
        e("v_and_b32 v7, 3, v0"); e("v_lshl_add_u32 v5, v7, 3, v5")
        if base: e(f"v_add_u32 v5, {base}, v5")
        for t in range(n):
            e(f"v_xor_b32 v7, {t}, v6"); e(f"v_lshl_add_u32 v{dst+t}, v7, 5, v5")
    def k_addr(dst, item):
        e("v_lshrrev_b32 v5, 1, v3"); e("v_xor_b32 v5, v5, v4"); e("v_lshlrev_b32 v5, 4, v5"); e("v_lshl_add_u32 v5, v4, 8, v5")
        e("v_and_b32 v6, 1, v3"); e("v_lshl_add_u32 v5, v6, 3, v5")
        e(f"s_lshl_b32 s86, {item}, 12"); e(f"s_add_u32 s86, s86, {L_K}"); e(f"v_add_u32 v{dst}, s86, v5")
    def k_reads(kf, KA):
        return [f"ds_read_b64 {V(kf(T*4+s) + 2*u, 2)}, v{KA + 2*s + u} offset:{k_unit(T)}" for T in range(6) for s in range(4) for u in range(2)]
    def v_reads(kf, VA):
        return [f"ds_read_b64_tr_b16 {V(kf(t*3+s) + 2*j, 2)}, v{VA+t} offset:{(2*s+j)*4096}" for t in range(8) for s in range(3) for j in range(2)]

    e.label("L_loader")
    e.vm = []
    WQVO, XVO, KVO, LO, VVO, WVO, KS = 8, 12, 18, 22, 23, 25, 32
    e("s_lshl_b32 s75, s37, 4")
    e("v_add_u32 v5, s75, v3"); e("v_lshlrev_b32 v5, 13, v5")
    e("v_lshlrev_b32 v6, 1, v3"); e("v_xor_b32 v6, v6, v4"); e(f"v_lshl_add_u32 v{WQVO}, v6, 4, v5")
    e(f"v_add_u32 v{WQVO+1}, {4*8192 - 1024}, v{WQVO}"); e(f"v_xor_b32 v6, 128, v{WQVO}")
    e(f"v_add_u32 v{WQVO+2}, {8*8192 - 2048}, v6"); e(f"v_add_u32 v{WQVO+3}, {12*8192 - 3072}, v6")
    e("v_lshrrev_b32 v5, 3, v0"); e("v_and_b32 v6, 7, v0"); e("v_xor_b32 v6, v6, v3")
    e("v_mul_u32_u24 v5, 1280, v5"); e(f"v_lshl_add_u32 v{XVO}, v6, 4, v5"); e(f"v_xor_b32 v6, 64, v{XVO}")
    for m in range(1, 6):
        e(f"v_add_u32 v{XVO+m}, {8*m*1280 - (m % 3)*1024}, v{6 if m & 1 else XVO}")
    e(f"s_mul_i32 s76, s72, {48*1280}")
    e("s_lshl_b32 s77, s6, 8")
    e("s_lshl_b32 s78, s37, 12")
    e("s_mul_i32 s79, s37, 6144"); e(f"s_add_u32 s79, s79, {L_X}")
    orders = g("orders")
    e("s_sub_u32 s100, s7, s39"); e("s_and_b32 s100, s100, 3")
    pk = [sum(c << (4*i) for i, c in enumerate(o)) for o in orders]
    for o in orders: assert sorted(o) == list(range(10))
    e(f"s_mov_b32 s92, {pk[0] & 0xffffffff}"); e(f"s_mov_b32 s93, {pk[0] >> 32}")
    for i in range(1, 4):
        e(f"s_cmp_eq_u32 s100, {i}"); e(f"s_cselect_b32 s92, {pk[i] & 0xffffffff}, s92"); e(f"s_cselect_b32 s93, {pk[i] >> 32}, s93")
    for r, sz in ((SW, W_BYTES), (SX, X_BYTES), (SK, KV_BYTES), (SV, KV_BYTES), (SWO, W_BYTES)):
        e(f"s_mov_b32 s{r+2}, {sz}"); e(f"s_mov_b32 s{r+3}, 0x20000")
    def chunk_pre(c):
        e(f"s_bfe_u32 s80, s{92 + c // 8}, {(4 << 16) | (4 * (c % 8))}")
        e("s_lshl_b32 s81, s80, 19"); e("s_add_u32 s82, s77, s81")
        e(f"s_add_u32 m0, s78, {L_W + (c % 3)*16384}")
        e("s_lshl_b32 s81, s80, 7"); e("s_add_u32 s83, s76, s81")
    def chunk_go(c):
        for k in range(4):
            e(f"buffer_load_dwordx4 v{WQVO+k}, {S(SW,4)}, s82 offen offset:{k*1024} {nt_w} lds", tag=f"c{c}")
        for m in range(6):
            if m % 3 == 0:
                e(f"s_add_u32 m0, s79, {(c % 3)*24576 + (m//3)*3072}")
            e(f"buffer_load_dwordx4 v{XVO+m}, {S(SX,4)}, s83 offen offset:{(m%3)*1024} {nt_x} lds", tag=f"c{c}")
    chunk_pre(0)
    e.wait_lgkm(0)
    e("s_cmp_eq_u32 s5, 0")
    e(f"s_cselect_b64 {S(SW,2)}, s[14:15], s[24:25]"); e(f"s_cselect_b64 {S(SX,2)}, s[8:9], s[18:19]")
    e(f"s_cselect_b64 {S(SK,2)}, s[10:11], s[20:21]"); e(f"s_cselect_b64 {S(SV,2)}, s[12:13], s[22:23]"); e(f"s_cselect_b64 {S(SWO,2)}, s[16:17], s[26:27]")
    chunk_go(0)
    stamp0(); fs()
    srd(e, SWS, 32, WS_BYTES); srd(e, SDBG, 30, 256)
    common()
    e(f"v_lshlrev_b32 v{LO}, 4, v0")
    e("s_lshr_b32 s84, s72, 1"); e("s_lshl_b32 s84, s84, 5"); e("s_add_u32 s84, s84, s6"); e("s_mul_i32 s84, s84, 24576")
    e("s_and_b32 s85, s37, 1"); e("s_lshl_b32 s86, s85, 11"); e("s_add_u32 s84, s84, s86")
    e("v_xor_b32 v5, v3, v4"); e("v_lshlrev_b32 v5, 4, v5"); e("v_lshl_add_u32 v5, v3, 8, v5")
    e("s_lshl_b32 s86, s85, 7"); e(f"v_xor_b32 v{KVO}, s86, v5"); e(f"v_xor_b32 v{KVO+1}, 64, v{KVO}")
    e("s_lshl_b32 s101, s37, 11"); e(f"s_add_u32 s101, s101, {L_K}")
    e("s_lshl_b32 s87, s7, 6"); e("s_add_u32 s87, s87, s6"); e("s_mul_i32 s87, s87, 24576"); e("s_mul_i32 s86, s37, 6144"); e("s_add_u32 s87, s87, s86")
    e("v_lshlrev_b32 v5, 1, v3"); e("v_xor_b32 v5, v5, v4"); e("v_lshlrev_b32 v5, 4, v5"); e(f"v_lshl_add_u32 v{VVO}, v3, 8, v5")
    e(f"v_xor_b32 v{VVO+1}, 128, v{VVO}")
    e("v_add_u32 v5, s75, v3"); e("v_mul_u32_u24 v5, 1280, v5")
    for k in range(4):
        e(f"v_or_b32 v6, {(k & 1) << 2}, v3"); e("v_lshlrev_b32 v6, 1, v6"); e("v_xor_b32 v6, v6, v4")
        e(f"v_lshl_add_u32 v6, v6, 4, v5")
        e(f"v_add_u32 v{WVO+k}, {4*k*1280 - k*1024}, v6")
    e(f"s_mul_i32 s88, s38, {1024*1280}"); e("s_lshl_b32 s86, s74, 8"); e("s_add_u32 s88, s88, s86")
    e(f"s_mul_i32 s89, s3, {32*49152}"); e("s_lshl_b32 s86, s73, 13"); e("s_add_u32 s89, s89, s86")
    e("s_lshr_b32 s34, s37, 1"); e("s_mul_i32 s86, s34, 49152"); e("s_add_u32 s89, s89, s86")
    e("s_lshl_b32 s86, s85, 12"); e("s_add_u32 s89, s89, s86")
    ord2 = g("ord2") or [[((m * 171 >> 6) + c) & 15 for c in range(16)] for m in range(6)]
    pk2 = [sum(c << (4*i) for i, c in enumerate(o)) for o in ord2]
    e(f"s_mov_b32 s90, {pk2[0] & 0xffffffff}"); e(f"s_mov_b32 s91, {pk2[0] >> 32}")
    for i in range(1, 6):
        e(f"s_cmp_eq_u32 s73, {i}"); e(f"s_cselect_b32 s90, {pk2[i] & 0xffffffff}, s90"); e(f"s_cselect_b32 s91, {pk2[i] >> 32}, s91")
    e("v_and_b32 v30, 7, v0"); e("v_lshlrev_b32 v30, 5, v30")
    flag_offsets()
    e("v_mov_b32 v5, 0"); e(f"v_mul_u32_u24 v6, {4*F2}, v0")
    e("s_mov_b64 exec, 15")
    e(f"buffer_store_dword v5, v6, {S(SWS,4)}, s9 offen sc1", tag="clr")
    e("s_mov_b64 exec, 1")
    e(f"buffer_store_dword v5, v5, {S(SWS,4)}, s8 offen sc1", tag="clr")
    e("s_mov_b64 exec, -1")
    kn = [0]
    def k_load(cnt):
        first = kn[0]
        for _ in range(cnt):
            n = kn[0]; kn[0] += 1
            if n >= 10:
                e(f"buffer_load_dwordx4 {V(KS + 4*(n-10), 4)}, v{KVO + (n&1)}, {S(SK,4)}, s84 offen offset:{(n&1)*1024} {nt_kv}", tag="k")
                continue
            if n & 1 == 0 or n == first: e(f"s_add_u32 m0, s101, {k_unit(n >> 1)}")
            e(f"buffer_load_dwordx4 v{KVO + (n&1)}, {S(SK,4)}, s84 offen offset:{(n&1)*1024} {nt_kv} lds", tag="k")
            if n & 1: e("s_add_u32 s84, s84, 4096")
    def v_dma(i, lo, hi):
        for n in range(lo, hi):
            if n == lo or n % 4 == 0:
                e(f"s_add_u32 m0, s79, {24576*(1+i) + (n>>2)*4096}")
                e(f"s_add_u32 s86, s87, {i*32*24576 + (n>>2)*4096}")
            e(f"buffer_load_dwordx4 v{VVO + (n&1)}, {S(SV,4)}, s86 offen offset:{(n&3)*1024} {nt_kv} lds", tag="v")
    wn = [0]
    def wo(cnt):
        for _ in range(cnt):
            c = wn[0]; wn[0] += 1
            e(f"s_add_u32 m0, s78, {WO_SLOTS[c % NW]*16384}")
            e(f"s_bfe_u32 s86, s{90 + c // 8}, {(4 << 16) | (4 * (c % 8))}")
            e(f"s_mul_i32 s86, s86, {64*1280}"); e("s_add_u32 s86, s86, s88")
            for k in range(4):
                e(f"buffer_load_dwordx4 v{WVO+k}, {S(SWO,4)}, s86 offen offset:{k*1024} {nt_wo} lds", tag=f"w{c}")
    def o_pre(c):
        e(f"s_add_u32 m0, s78, {O_SLOTS[c % NO]*16384}")
        e(f"s_bfe_u32 s81, s{90 + c // 8}, {(4 << 16) | (4 * (c % 8))}")
        e(f"s_mul_i32 s81, s81, {2*49152}"); e("s_add_u32 s81, s81, s89")
    def o_go(c):
        for k in range(4):
            e(f"buffer_load_dwordx4 v{LO}, {S(SWS,4)}, s81 offen offset:{k*1024} {ld_o} lds", tag=f"o{c}")
    woplan = g("woplan")
    spf = list(g("spf") or [])
    if spf:
        e("s_lshl_b32 s14, s4, 2"); e("s_add_u32 s14, s14, s37"); e("s_mul_i32 s14, s14, 640")
        e(f"s_mul_i32 s15, s38, {1024*1280}"); e("s_add_u32 s14, s14, s15")
        e(f"s_add_u32 s14, s14, s{SWO}"); e(f"s_addc_u32 s15, s{SWO+1}, 0")
        e(f"s_add_u32 s16, s14, {8*81920}"); e("s_addc_u32 s17, s15, 0")
    def prefetch(slot):
        if slot < len(spf):
            for ch in spf[slot]:
                for i in range(10):
                    e(f"s_load_dword s18, {S(14 + 2*(ch >> 3), 2)}, {(ch & 7)*81920 + (i*128) % 640 + 64*(i // 5)}")
    kcls = g("kcls")
    chunk_pre(1); chunk_go(1); chunk_pre(2)
    e.wait_vm_tag("c0"); fs(); e.barrier()
    chunk_go(2)
    prefetch(0)
    def front(kc, c0, c1, nxt):
        for c in range(c0, c1):
            pre = c != kc and nxt <= min(c + 3, 9)
            if pre: chunk_pre(nxt)
            e.wait_vm_tag(f"c{c+1}", lgkm=0 if c == 8 else None)
            if g("fine") == 2: fs()
            e.barrier()
            if c == 4 or g("fine") == 2: fs()
            if c == kc: k_load(12)
            else:
                while nxt <= min(c + 3, 9):
                    if not pre: chunk_pre(nxt)
                    chunk_go(nxt); nxt += 1; pre = False
            if c == 7:
                assert kn[0] == 12
                v_dma(0, 0, 6)
                e(f"v_add_u32 v5, s101, v{LO}")
                for n in range(2): e(f"ds_write_b128 v5, {V(KS + 4*n, 4)} offset:{k_unit(5) + n*1024}")
            if c == 8:
                v_dma(1, 0, 4)
            prefetch(c + 1)
        return nxt
    c0 = min(kcls)
    nxt = front(-1, 0, c0, 3)
    st = (list(e.vm), fs.n)
    uniq = sorted(set(kcls))
    for i, kc in enumerate(kcls):
        if uniq.index(kc) > 0:
            e(f"s_cmp_eq_u32 s100, {i}"); e(f"s_cbranch_scc1 L_kc{uniq.index(kc)}")
    ends = []
    for i, kc in enumerate(uniq):
        e.label(f"L_kc{i}")
        e.vm, fs.n = list(st[0]), st[1]; kn[0] = 0
        front(kc, c0, 9, nxt)
        ends.append([t for t, _ in e.vm])
        if i + 1 < len(uniq): e("s_branch L_kj")
    assert all(x == ends[0] for x in ends) and set(ends[0]) == {"v"}, ends
    e.label("L_kj")
    if g("fine") == 2: fs()
    e.barrier()
    fs()
    v_dma(1, 4, 6)
    e(f"buffer_load_dword v31, v30, {S(SDBG,4)}, 0 offen sc1", tag="cnt")
    wo(woplan.get("pre", 0))
    assert all(x in (0, 2, 6) for x in WO_SLOTS[:wn[0]])
    prefetch(10)
    e.wait_vm_tag("v"); fs(); e.barrier()
    prefetch(11)
    e("v_cmp_gt_u32 vcc, 32, v31")
    e(f"s_mov_b32 s92, {SPIN}")
    e("s_nop 1")
    e("s_cbranch_vccz L_got0")
    stw = list(e.vm)
    e.label("L_poll0")
    e(f"buffer_load_dword v7, v30, {S(SDBG,4)}, 0 offen sc1")
    e.wait_all(lgkm=False)
    e("v_cmp_gt_u32 vcc, 32, v7")
    e("s_sub_u32 s92, s92, 1"); e("s_cbranch_scc1 L_got0")
    e("s_nop 1")
    e("s_cbranch_vccnz L_poll0")
    e.label("L_got0")
    e.vm = stw
    fs()
    wo(woplan.get("post", 0))
    assert wn[0] <= NW and all(x < 7 for x in WO_SLOTS)
    fs(); e.barrier()
    e("s_cmp_ge_u32 s4, 30"); e("s_cbranch_scc1 L_ldone")
    wo(woplan.get("ba", 0))
    o_pre(0)
    fs(); e.barrier()
    fs()
    o_go(0)
    if wn[0] <= 0: wo(1)
    o_pre(1); o_go(1)
    if wn[0] <= 1: wo(1)
    o_pre(2)
    e.wait_vm_tag(["o0", "w0"]); e.barrier()
    o_go(2)
    if wn[0] <= 2: wo(1)
    wo(woplan.get("b2", 0))
    on = 3
    wlead = g("wlead", NW)
    for c in range(15):
        if on < 16: o_pre(on)
        e.wait_vm_tag([f"o{c+1}", f"w{c+1}"]); e.barrier()
        k = 0
        if on < 16: o_go(on); on += 1; k += 1
        if wn[0] < 16 and wn[0] <= c + 3: wo(1); k += 1
        if k < 2 and on < 16 and on <= c + NO: o_pre(on); o_go(on); on += 1; k += 1
        if k < 2 and wn[0] < 16 and wn[0] <= c + wlead: wo(1)
    e.label("L_ldone")
    fs.out(SWS, 1)
    e("s_endpgm")

    e.label("L_compute")
    e.vm, e.smem_pending = list(st0[0]), st0[1]
    e.lgkm = []
    common(); o_offsets()
    WQRA, XRA, PA, LO, VD, KA = 8, 16, 20, 22, 23, 248
    AF, BF, ACC, SP = 24, 88, 112, 208
    tr_addr(WQRA, 8, 3)
    e(f"s_mul_i32 s75, s37, 6144"); e(f"s_add_u32 s75, s75, {L_X}")
    e("v_lshrrev_b32 v5, 1, v4"); e("v_xor_b32 v5, v5, v3"); e("v_lshlrev_b32 v5, 4, v5")
    e("v_lshl_add_u32 v5, v4, 7, v5"); e(f"v_add_u32 v{XRA}, s75, v5"); e(f"v_xor_b32 v5, 64, v5"); e(f"v_add_u32 v{XRA+1}, s75, v5")
    e("s_lshr_b32 s76, s37, 1")
    k_addr(KA, "s76")
    for x in range(1, 8): e(f"v_xor_b32 v{KA + x}, {x << 5}, v{KA}")
    e("s_mul_i32 s77, s76, 24576"); e(f"s_add_u32 s77, s77, {L_V}")
    e("v_lshlrev_b32 v5, 10, v3"); e(f"v_sub_u32 v{VD}, s77, v5")
    e(f"v_lshlrev_b32 v{LO}, 4, v0")
    e(f"s_mul_i32 s92, s7, {R1}"); e(f"s_mul_i32 s93, s39, {FS}"); e("s_add_u32 s92, s92, s93")
    e("s_lshl_b32 s86, s73, 3"); e("s_mul_i32 s87, s86, 43"); e("s_lshr_b32 s87, s87, 9")
    e("s_add_u32 s86, s86, 7"); e("s_mul_i32 s86, s86, 43"); e("s_lshr_b32 s86, s86, 9")
    e("v_bfe_u32 v5, v0, 3, 1"); e("v_add_u32 v5, s87, v5"); e("v_min_u32 v5, s86, v5")
    e("v_and_b32 v6, 7, v0"); e(f"v_mul_u32_u24 v5, {R1}, v5"); e(f"v_mul_u32_u24 v6, {FS}, v6"); e(f"v_add_u32 v{PA}, v5, v6")
    e("s_lshl_b32 s81, 1, s39")
    e("s_cmp_eq_u32 s87, s7"); e("s_cselect_b32 s84, s81, 0"); e("s_cmp_eq_u32 s86, s7"); e("s_cselect_b32 s85, s81, 0")
    e(f"s_mul_i32 s82, s87, {R1}"); e(f"s_mul_i32 s83, s86, {R1}")
    e(f"v_cmp_ne_u32 s[90:91], s92, v{PA}"); e("s_and_b64 s[90:91], s[90:91], 0xffff")
    e.wait_lgkm(0)
    stamp0()
    srd(e, SWS, 32, WS_BYTES); srd(e, SOUT, 28, OUT_BYTES); srd(e, SDBG, 30, 256)
    flag_offsets()
    e("s_add_u32 s82, s82, s10"); e("s_add_u32 s83, s83, s10")
    e("v_mov_b32 v5, 0"); e("v_mov_b32 v6, 1")
    e("s_lshl_b32 s86, s3, 5")
    fs()
    e.barrier()
    fs()
    def bump():
        e("s_cmp_lg_u32 s37, 0"); e("s_cbranch_scc1 L_noinc")
        e("s_mov_b64 exec, 1")
        e(f"buffer_atomic_add v6, v5, {S(SDBG,4)}, s86 offen sc1"); e.vm = []
        e("s_mov_b64 exec, -1")
        e.label("L_noinc")
    def reads(c, kk, st):
        slot = c % 3
        rb = [f"ds_read_b128 {V(BF + st*12 + u*4, 4)}, v{XRA+kk} offset:{slot*24576 + u*2048}" for u in range(3)]
        ra = [f"ds_read_b64_tr_b16 {V(AF + st*32 + t*4 + j*2, 2)}, v{WQRA+t} offset:{slot*16384 + kk*8192 + j*1024}" for t in range(8) for j in range(2)]
        return ra[:2] + rb + ra[2:]
    def acc(t, u): return ACC + (t*3+u)*4
    def mfmas(st, first, prs=None):
        prs = prs or [(t, u) for t in range(8) for u in range(3)]
        return [f"{MF} {V(acc(t,u),4)}, {V(AF + st*32 + t*4, 4)}, {V(BF + st*12 + u*4, 4)}, {'0' if first else V(acc(t,u),4)}" for t, u in prs]
    def kf(n): return SP + 4*n if n < 10 else AF + 4*(n - 10)
    kr = k_reads(kf, KA)
    def tail(rd, extra):
        return rd + [extra[i:i+2] for i in range(0, len(extra), 2)]
    put(e, reads(0, 0, 0))
    for c in range(10):
        interleave(e, mfmas(0, c == 0), tail(reads(c, 1, 1), kr[10:20] if c == 9 else []), per=1)
        if c == 2: e.settle(); bump()
        e.wait_lgkm(10 if c == 9 else 0); e.barrier()
        if c in (4, 9): fs()
        if c < 9:
            interleave(e, mfmas(1, False), tail(reads(c + 1, 0, 0), kr[:10] if c == 8 else []), per=1)
    def qcvt(u):
        o = []
        for s in range(4):
            a, b = acc(2*s, u), acc(2*s+1, u)
            o += [f"v_cvt_pk_bf16_f32 v{a}, v{a}, v{a+1}", f"v_cvt_pk_bf16_f32 v{a+1}, v{a+2}, v{a+3}",
                  f"v_cvt_pk_bf16_f32 v{a+2}, v{b}, v{b+1}", f"v_cvt_pk_bf16_f32 v{a+3}, v{b+2}, v{b+3}"]
        return o
    ONE = 16
    odd = [acc(t, u) for u in range(3) for t in (1, 3, 5, 7)]
    sts = [[80, 84, 88, 92, 96, 100], odd[:6], odd[6:]]
    xtra = [[104, 108], [KA, KA + 4], [acc(0, 0), acc(2, 0)]]
    T = [Tile(u, [acc(2*s, u) for s in range(4)], sts[u], sts[u] + xtra[u], acc(6, u), kf, ONE, LO, st_o) for u in range(3)]
    prog = mfmas(1, False, [(t, u) for u in range(3) for t in range(8)]) + kr[20:] + qcvt(0) + qcvt(1) + qcvt(2)
    prog += [f"v_add_u32 v{WQRA+t}, v{VD}, v{WQRA+t}" for t in range(8)] + [f"v_mov_b32 v{ONE + r}, 0x3f803f80" for r in range(4)]
    prog += T[0].s() + T[0].softmax() + T[1].s() + T[2].s()
    ib = len(prog); prog.append("BAR V")
    vr = v_reads(kf, WQRA)
    extra = [(ib, ib + 1 + k) for k in range(len(vr))]
    extra += [(prog.index(x), ib) for x in T[0].s()]
    prog += vr
    bonus = {}
    for u in range(3):
        if u: prog += T[u].softmax()
        prog += T[u].pv()
        n0 = len(prog); prog += T[u].outs()
        for k in range(n0, len(prog)):
            if prog[k].startswith("buffer_store"): bonus[k] = g("obonus", (1500, 700, 0))[u]
    order, tm = schedule(prog, extra, {ib: g("bv_t", 1500)}, None, verbose=g("verbose"))
    if g("verbose"): print("model cycles", tm)
    for x in order:
        if x == "BAR V":
            fs(); e.barrier(); fs()
        else: e(x)
    fs()
    RA, RA2, ORA = 8, 12, 16
    e("s_and_b32 s86, s37, 1"); e("s_lshl_b32 s86, s86, 2")
    tr_addr(RA, 4, 2, xor="s86")
    for t in range(4): e(f"v_add_u32 v{RA2+t}, 0x10000, v{RA+t}")
    e("s_lshl_b32 s87, s76, 12"); e(f"s_add_u32 s87, s87, {L_O}")
    e("s_lshl_b32 s13, s12, 13"); e(f"s_add_u32 s13, s13, {WS_P}")
    for u in range(4):
        e(f"s_add_u32 s86, s38, {u + 1}"); e("s_and_b32 s86, s86, 3")
        if u < 3:
            e(f"s_lshl_b32 s{14+u}, s86, 13"); e(f"s_lshl_b32 s{17+u}, s86, 11")
        e("s_lshl_b32 s86, s86, 10"); e("s_add_u32 s86, s86, s87"); e(f"v_add_u32 v{ORA+u}, s86, v{LO}")
    e("s_lshl_b32 s86, s38, 11"); e("s_add_u32 s86, s86, s13"); e("s_lshl_b32 s87, s38, 13"); e("s_add_u32 s87, s87, s13")
    for u in range(3):
        e(f"s_add_u32 s{14+u}, s{14+u}, s86"); e(f"s_add_u32 s{17+u}, s{17+u}, s87")
    e("s_lshl_b32 s88, s73, 3"); e("s_lshl_b32 s89, s76, 2"); e("s_add_u32 s88, s88, s89"); e("s_add_u32 s88, s88, s38")
    e(f"s_mul_i32 s88, s88, {16*2560}"); e("s_mul_i32 s89, s5, 1280"); e("s_add_u32 s88, s88, s89")
    e("s_lshl_b32 s89, s74, 8"); e("s_add_u32 s88, s88, s89"); e("s_and_b32 s89, s37, 1"); e("s_lshl_b32 s89, s89, 7"); e("s_add_u32 s88, s88, s89")
    e("v_mul_u32_u24 v21, 2560, v4"); e("v_lshl_add_u32 v21, v3, 3, v21")
    e(f"v_mul_u32_u24 v2, {F2}, v0"); e(f"v_mul_u32_u24 v23, {4*F2}, v0")
    e("s_lshl_b32 s20, 1, s38"); e("s_xor_b32 s20, s20, 15"); e("s_mov_b32 s21, 0")
    e("v_mov_b32 v5, 0"); e("v_mov_b32 v6, 1"); e("v_mov_b32 v7, s81")
    e.wait_all()
    fs()
    e.barrier()
    e("s_cmp_lg_u32 s37, 0"); e("s_cbranch_scc1 L_noflag")
    e("s_mov_b64 exec, 1")
    e(f"buffer_store_dword v7, v5, {S(SWS,4)}, s8 offen sc1")
    e("s_mov_b64 exec, -1")
    e.label("L_noflag")
    e("s_cmp_ge_u32 s4, 30"); e("s_cbranch_scc1 L_cdone")
    e("s_cmp_lg_u32 s37, 1"); e("s_cbranch_scc1 L_got1")
    if spoll:
        e(f"s_mov_b32 s92, {spoll}")
        e.label("L_spoll")
        e(f"s_buffer_load_dwordx8 s[24:31], {S(SWS,4)}, s82 glc"); e(f"s_buffer_load_dwordx8 s[48:55], {S(SWS,4)}, s83 glc")
        e.wait_lgkm(0)
        for b in (24, 48):
            e(f"s_or_b64 {S(b,2)}, {S(b,2)}, {S(b+2,2)}"); e(f"s_or_b64 {S(b+4,2)}, {S(b+4,2)}, {S(b+6,2)}"); e(f"s_or_b64 {S(b,2)}, {S(b,2)}, {S(b+4,2)}")
            e(f"s_or_b32 s{b}, s{b}, s{b+1}"); e(f"s_or_b32 s{b}, s{b}, s{84 if b == 24 else 85}")
        e("s_and_b32 s24, s24, s48"); e("s_cmp_eq_u32 s24, 0xff"); e("s_cbranch_scc1 L_got1")
        if g("psleep"): e(f"s_sleep {g('psleep')}")
        e("s_sub_u32 s92, s92, 1"); e("s_cbranch_scc0 L_spoll")
    e("s_mov_b64 exec, s[90:91]")
    e(f"s_mov_b32 s92, {SPIN}")
    e.label("L_poll1")
    e(f"buffer_load_dword v7, v{PA}, {S(SWS,4)}, s10 offen sc1")
    e.wait_all(lgkm=False)
    e("v_cmp_eq_u32 vcc, 0, v7")
    e("s_sub_u32 s92, s92, 1"); e("s_cbranch_scc1 L_to1")
    e("s_nop 1")
    e("s_cbranch_vccz L_to1")
    if g("psleep"): e(f"s_sleep {g('psleep')}")
    e("s_branch L_poll1")
    e.label("L_to1")
    e("s_mov_b64 exec, -1")
    e.label("L_got1")
    e.barrier()
    AF2, BF2, AC2 = 24, 56, 112
    def reads2(c, kk, st):
        slot = WO_SLOTS[c % NW]
        base = RA if slot < 4 else RA2
        ra = [f"ds_read_b64_tr_b16 {V(AF2 + st*16 + t*4 + j*2, 2)}, v{base+t} offset:{(slot & 3)*16384 + kk*8192 + j*4096}" for t in range(4) for j in range(2)]
        rb = [f"ds_read_b128 {V(BF2 + st*16 + u*4, 4)}, v{ORA+u} offset:{O_SLOTS[c % NO]*16384 - L_O + kk*8192}" for u in range(4)]
        return ra[:2] + rb + ra[2:]
    def mfmas2(st, first):
        out = []
        for t in range(4):
            for u in range(4):
                d = V(AC2 + (t*4+u)*4, 4)
                out.append(f"{MF} {d}, {V(AF2 + st*16 + t*4, 4)}, {V(BF2 + st*16 + u*4, 4)}, {'0' if first else d}")
        return out
    e.barrier()
    fs()
    put(e, reads2(0, 0, 0))
    for c in range(15):
        interleave(e, mfmas2(0, c == 0), reads2(c, 1, 1), per=1)
        e.wait_lgkm(0); e.barrier()
        if c == 7: fs()
        interleave(e, mfmas2(1, False), reads2(c + 1, 0, 0), per=1)
    def ac2(t, u): return AC2 + (t*4+u)*4
    prog = reads2(15, 1, 1)
    m0, m1 = mfmas2(0, False), mfmas2(1, False)
    prog += [m0[t*4+u] for u in range(2) for t in range(4)]
    for u in range(4):
        if u >= 2: prog += [m0[t*4+u] for t in range(4)]
        prog += [m1[t*4+u] for t in range(4)]
        if u < 3:
            for tp in range(2):
                a, b = ac2(2*tp, u), ac2(2*tp+1, u)
                prog += [f"v_cvt_pk_bf16_f32 v{a}, v{a}, v{a+1}", f"v_cvt_pk_bf16_f32 v{a+1}, v{a+2}, v{a+3}",
                         f"v_cvt_pk_bf16_f32 v{a+2}, v{b}, v{b+1}", f"v_cvt_pk_bf16_f32 v{a+3}, v{b+2}, v{b+3}",
                         f"buffer_store_dwordx4 {V(a,4)}, v{LO}, {S(SWS,4)}, s{14+u} offen offset:{tp*1024} {st_p}"]
    order, tm = schedule(prog, verbose=g("verbose"))
    put(e, order)
    fs()
    e("s_mov_b64 exec, s[20:21]")
    e(f"buffer_load_dword v7, v2, {S(SWS,4)}, s11 offen sc1")
    e(f"s_mov_b32 s92, {SPIN}")
    e.wait_all(lgkm=False)
    e(f"buffer_store_dword v6, v23, {S(SWS,4)}, s9 offen sc1")
    fs()
    e.label("L_poll2")
    e("v_cmp_ne_u32 vcc, 1, v7")
    e("s_sub_u32 s92, s92, 1"); e("s_cbranch_scc1 L_got2")
    e("s_nop 1")
    e("s_cbranch_vccz L_got2")
    if g("psleep2"): e(f"s_sleep {g('psleep2')}")
    e(f"buffer_load_dword v7, v2, {S(SWS,4)}, s11 offen sc1")
    e.wait_all(lgkm=False)
    e("s_branch L_poll2")
    e.label("L_got2")
    e("s_mov_b64 exec, -1")
    fs()
    PK = 24
    for i in range(3):
        for tp in range(2):
            e(f"buffer_load_dwordx4 {V(PK + (i*2+tp)*4, 4)}, v{LO}, {S(SWS,4)}, s{17+i} offen offset:{tp*1024} {ld_p}")
    for i in range(3):
        for tp in range(2):
            for k in range(4):
                src = PK + (i*2+tp)*4 + k; d = ac2(2*tp + (k >> 1), 3) + (k & 1)*2
                e(f"v_lshlrev_b32 v{56 + 2*(k&1)}, 16, v{src}"); e(f"v_and_b32 v{57 + 2*(k&1)}, 0xffff0000, v{src}")
                e(f"v_pk_add_f32 {V(d,2)}, {V(d,2)}, {V(56 + 2*(k&1), 2)}")
                if i == 2 and k & 1:
                    t = 2*tp + (k >> 1); a = ac2(t, 3)
                    e(f"v_cvt_pk_bf16_f32 v{80+2*t}, v{a}, v{a+1}"); e(f"v_cvt_pk_bf16_f32 v{81+2*t}, v{a+2}, v{a+3}")
                    e(f"buffer_store_dwordx2 {V(80+2*t,2)}, v21, {S(SOUT,4)}, s88 offen offset:{t*32} {st_out}")
    e.label("L_cdone")
    fs.out(SWS)
    e.label("L_end")
    e("s_endpgm")
    return e

def kdiag(opt):
    e = E()
    e("s_cmp_ge_u32 s2, 1"); e("s_cbranch_scc1 L9_end")
    e("s_load_dwordx2 s[10:11], s[0:1], 96")
    e.wait_lgkm(0)
    srd(e, 12, 10, WS_BYTES)
    e("v_lshrrev_b32 v1, 2, v0"); e("v_lshlrev_b32 v1, 11, v1"); e("v_and_b32 v2, 3, v0"); e("v_lshl_add_u32 v1, v2, 8, v1")
    for i, (field, op) in enumerate(opt["diag"]):
        for k in range(15):
            e(f"s_mov_b32 s4, {WS_ST + k*16*2048 + field*4}")
            e(f"buffer_load_dword v{8+k}, v1, s[12:15], s4 offen")
        for k in range(1, 15):
            e(f"v_{op}_u32 v8, v8, v{8+k}")
        e("v_readlane_b32 s20, v8, 0")
        for l in range(1, 64):
            e(f"v_readlane_b32 s21, v8, {l}"); e(f"s_{op}_u32 s20, s20, s21")
        e(f"s_mov_b32 s{22+i}, s20")
    e("s_sub_u32 s24, s23, s22"); e("s_min_u32 s24, s24, 10000"); e(f"s_lshl_b32 s24, s24, {opt.get('dshift', 6)}")
    e("s_memrealtime s[26:27]"); e.wait_lgkm(0)
    e.label("L9_spin")
    e("s_memrealtime s[28:29]"); e.wait_lgkm(0)
    e("s_sub_u32 s28, s28, s26"); e("s_cmp_lt_u32 s28, s24"); e("s_cbranch_scc1 L9_spin")
    e.label("L9_end")
    e("s_endpgm")
    return e

def build(opt, fn):
    K = NAME + "_kernel"
    e = kernel(opt)
    if opt.get("align", 1):
        e.lines, fixed, missed = align(e.lines, lambda t: header([(None, 256, 512, 163840)]) + kstart(K) + t)
        if opt.get("verbose"): print("aligned", fixed, "missed", missed)
    txt = header([(None, 256, 512, 163840)]) + kstart(K) + e.text() + RODATA + kdesc(K, 256, 102, 256)
    if opt.get("diag"):
        txt = header([("m_kernel", 256, 512, 163840), ("d_kernel", 1, 64, 0)]) + kstart("m_kernel") + e.text() + kstart("d_kernel") + kdiag(opt).text() + RODATA + kdesc("m_kernel", 256, 102, 256) + kdesc("d_kernel", 64)
    open(fn, "w").write(txt)
    return e

if __name__ == "__main__":
    e = build({"verbose": len(sys.argv) > 1}, "v6.s")
    print("nops", e.nops, "instrs", sum(e.count.values()))
```

```python
import sys, math, struct
from asmlib import *
from emit import *
from sched import schedule
from align import align

def f2u(x): return struct.unpack("<I", struct.pack("<f", x))[0]
SCALE = math.log2(math.e) / math.sqrt(128.0)
WS_O = 0
WS_P = 16 << 20
WS_F1 = 32 << 20
WS_F2 = 33 << 20
WS_ST = 64 << 20
X_BYTES, KV_BYTES, W_BYTES, OUT_BYTES, WS_BYTES = 983040, 6291456, 5242880, 1966080, 268435456
L_W, L_E, L_X = 0, 49152, 90112
L_K = 24576
def k_unit(T): return 0 if T == 5 else 24576 + T * 8192
L_V = L_X + 24576
L_Q = 0
def orders2(leadslots):
    first = [0, 1, 2, 3, 4, 5]
    lead = {}
    for i, sl in enumerate(leadslots): lead[(sl, i % 6)] = 6 + i
    avail_at = {c: 0 for c in first}
    for (sl, m), c in lead.items(): avail_at[c] = sl
    out = []
    for m in range(6):
        o = [first[m]]; mine = {c for (sl, mm), c in lead.items() if mm == m}
        for sl in range(1, 16):
            if (sl, m) in lead: o.append(lead[(sl, m)]); continue
            cand = sorted((avail_at[c], (c - m) % 16, c) for c in range(16) if c not in o and c not in mine)
            o.append(cand[0][2])
        assert sorted(o) == list(range(16))
        out.append(o)
    return out
SPIN = 1 << 18
O5 = [[0,1,2,4,3,8,5,6,7,9],[0,2,1,3,6,4,5,7,8,9],[1,0,3,5,2,9,4,6,7,8],[1,3,0,2,7,4,5,6,8,9]]
ALT = [list(range(10)), list(range(10)), [1,0,3,2,5,4,7,6,9,8], [1,0,3,2,5,4,7,6,9,8]]
DEFAULTS = dict(orders=ALT, kcls=[0, 3, 1, 4], woplan={"pre": 1, "ba": 3}, bv_t=1700, rot2=6, psleep=2, fstride=64,
                nt_kv="nt", nt_w="", nt_x="", nt_wo="", st_o="sc1", ld_o="sc1", st_p="sc1", ld_p="sc1", st_out="")

def srd(e, r, lo, size):
    e(f"s_mov_b32 s{r}, s{lo}"); e(f"s_mov_b32 s{r+1}, s{lo+1}")
    e(f"s_mov_b32 s{r+2}, {size}"); e(f"s_mov_b32 s{r+3}, 0x20000")

class Fine:
    def __init__(self, e, opt): self.e, self.on, self.n = e, opt.get("fine"), 0
    def __call__(self):
        if not self.on: return
        assert self.n < 32
        self.e("s_memrealtime s[94:95]"); self.e("s_memtime s[98:99]"); self.e.wait_lgkm(0)
        self.e(f"v_writelane_b32 v1, s94, {self.n}")
        self.e(f"v_writelane_b32 v1, s98, {self.n + 32}")
        self.n += 1
    def out(self, sws, ld=0):
        if not self.on: return
        e = self.e
        e.wait_all(); self()
        e("s_lshl_b32 s97, s2, 3"); e("s_add_u32 s97, s97, s37"); e(f"s_add_u32 s97, s97, {4*ld}"); e("s_lshl_b32 s97, s97, 8"); e(f"s_add_u32 s97, s97, {WS_ST}")
        e("v_lshlrev_b32 v4, 2, v0")
        e(f"buffer_store_dword v1, v4, {S(sws,4)}, s97 offen")

def merge(a, b):
    out = []; i = j = 0
    while i < len(a) or j < len(b):
        if i < len(a): out.append(a[i]); i += 1
        if j < len(b): out.append(b[j]); j += 1
    return out

def ops_of(x):
    return [set(regs_of(o.strip().split(' ')[0])) for o in x.partition(' ')[2].split(',')]
def cost(x): return 2 if x.startswith("v_exp") or x.startswith("v_rcp") else 1
def weave(e, mf, fill, budget, ds=None, dsrate=1):
    fill = list(fill); acc = 0.0
    for i, m in enumerate(mf):
        o = ops_of(m); need = o[1] | o[2]
        last = max([k for k, x in enumerate(fill) if (x.startswith("ds_read") or x.startswith("v_mov")) and ops_of(x)[0] & need], default=-1)
        for _ in range(last + 1):
            acc -= cost(fill[0]); e(fill.pop(0))
        if ds:
            last = max([k for k, x in enumerate(ds) if ops_of(x)[0] & need], default=-1)
            for _ in range(last + 1): e(ds.pop(0))
        e(m); acc += budget
        if ds:
            e(ds.pop(0))
            if dsrate > 1 and ds: e(ds.pop(0))
        pend = set().union(*[ops_of(x)[0] for x in mf[max(0, i-2):]])
        while fill and acc >= cost(fill[0]):
            if fill[0].startswith("v_") and set().union(*ops_of(fill[0])[1:]) & pend:
                acc = min(acc, budget); break
            acc -= cost(fill[0]); e(fill.pop(0))
    return fill

MF = "v_mfma_f32_16x16x32_bf16"
SX, SK, SV, SW, SWS, SWO, SOUT, SDBG = 40, 44, 48, 52, 56, 60, 44, 64
SC = 96
SO = 68

class Tile:
    def __init__(self, u, q, st, ot, lt, kf, ones, LO, st_o):
        self.__dict__.update(locals())
    def s(self):
        return [f"{MF} {V(self.st[T],4)}, {V(self.kf(T*4+s),4)}, {V(self.q[s],4)}, {'0' if s == 0 else V(self.st[T],4)}" for T in range(6) for s in range(4)]
    def pv(self):
        o = [f"{MF} {V(self.lt,4)}, {V(self.ones,4)}, {V(self.q[s],4)}, {'0' if s == 0 else V(self.lt,4)}" for s in range(3)]
        return o + [f"{MF} {V(self.ot[t],4)}, {V(self.kf(t*3+s),4)}, {V(self.q[s],4)}, {'0' if s == 0 else V(self.ot[t],4)}" for t in range(8) for s in range(3)]
    def softmax(self):
        MX = self.q[3]; TM = MX + 2
        o = []
        vals = [self.st[T] + r for T in range(6) for r in range(4)]
        o.append(f"v_max3_f32 v{MX}, v{vals[0]}, v{vals[1]}, v{vals[2]}")
        o.append(f"v_max3_f32 v{TM}, v{vals[3]}, v{vals[4]}, v{vals[5]}")
        for i in range(6, 22, 4):
            o.append(f"v_max3_f32 v{MX}, v{MX}, v{vals[i]}, v{vals[i+1]}")
            o.append(f"v_max3_f32 v{TM}, v{TM}, v{vals[i+2]}, v{vals[i+3]}")
        o.append(f"v_max3_f32 v{MX}, v{MX}, v{vals[22]}, v{vals[23]}")
        o.append(f"v_max_f32 v{TM+1}, v{MX}, v{TM}"); o.append(f"v_max_f32 v{MX}, v{MX}, v{TM}")
        o.append(f"v_permlane16_swap_b32 v{TM+1}, v{MX}")
        o.append(f"v_max_f32 v{TM}, v{MX}, v{TM+1}"); o.append(f"v_max_f32 v{MX}, v{MX}, v{TM+1}")
        o.append(f"v_permlane32_swap_b32 v{TM}, v{MX}")
        o.append(f"v_max_f32 v{MX}, v{MX}, v{TM}")
        o.append(f"v_mul_f32 v{MX}, s{SC}, v{MX}")
        def cv(T): return [f"v_cvt_pk_bf16_f32 v{self.q[T>>1] + (T&1)*2 + (r>>1)}, v{self.st[T]+r}, v{self.st[T]+r+1}" for r in (0, 2)]
        for T in range(6):
            x = self.st[T]
            for r in range(4): o.append(f"v_fmamk_f32 v{x+r}, v{x+r}, {hex(f2u(SCALE))}, v{MX}")
            if T > 0: o += cv(T - 1)
            for r in range(4): o.append(f"v_exp_f32 v{x+r}, v{x+r}")
        return o + cv(5)
    def rcp(self): return [f"v_rcp_f32 v{self.lt}, v{self.lt}"]
    def out(self, sp):
        a, b = self.ot[2*sp], self.ot[2*sp+1]
        o = [f"v_mul_f32 v{a+r}, v{self.lt}, v{a+r}" for r in range(4)]
        o += [f"v_cvt_pk_bf16_f32 v{a}, v{a}, v{a+1}", f"v_cvt_pk_bf16_f32 v{a+1}, v{a+2}, v{a+3}"]
        o += [f"v_mul_f32 v{b+r}, v{self.lt}, v{b+r}" for r in range(4)]
        o += [f"v_cvt_pk_bf16_f32 v{a+2}, v{b}, v{b+1}", f"v_cvt_pk_bf16_f32 v{a+3}, v{b+2}, v{b+3}",
              f"buffer_store_dwordx4 {V(a,4)}, v{self.LO}, {S(SWS,4)}, s{SO+sp} offen offset:{self.u*1024} {self.st_o}"]
        if self.st_o == "skip": o.pop()
        return o
    def outs(self): return self.rcp() + sum([self.out(sp) for sp in range(4)], [])

def kernel(opt):
    opt = dict(DEFAULTS, **opt)
    e = E()
    g = opt.get
    nt_kv, nt_w, nt_x, nt_wo = g("nt_kv"), g("nt_w"), g("nt_x"), g("nt_wo")
    st_o, ld_o, st_p, ld_p, st_out = g("st_o"), g("ld_o"), g("st_p"), g("ld_p"), g("st_out")
    WO_SLOTS, O_SLOTS = g("rings", ([2, 6, 0, 1, 3, 4, 5], [7, 8, 9]))
    NW, NO = len(WO_SLOTS), len(O_SLOTS); L_O = min(O_SLOTS) * 16384
    FS = g("fstride")
    F2 = g("f2stride", 128)
    spoll = g("spoll", 0)
    if spoll: FS = 4
    R1 = max(128, 8 * FS)
    e("s_load_dwordx16 s[8:23], s[0:1], 0")
    e("s_load_dwordx8 s[24:31], s[0:1], 64")
    e("s_load_dwordx2 s[32:33], s[0:1], 96")
    e("s_cmp_ge_u32 s2, 256"); e("s_cbranch_scc1 L_end")
    fs = Fine(e, opt)
    if g("fine"): e("s_memrealtime s[94:95]"); e("s_memtime s[98:99]")
    e("v_lshrrev_b32 v3, 6, v0"); e("v_and_b32 v0, 63, v0"); e("v_readfirstlane_b32 s36, v3")
    e("s_and_b32 s3, s2, 7"); e("s_lshr_b32 s4, s2, 3")
    e("s_lshr_b32 s5, s3, 2")
    e("s_and_b32 s38, s3, 3"); e("s_lshl_b32 s6, s38, 3"); e("s_and_b32 s39, s4, 7"); e("s_add_u32 s6, s6, s39")
    e("s_lshr_b32 s7, s4, 3")
    e("v_lshrrev_b32 v3, 4, v0"); e("v_and_b32 v4, 15, v0")
    e("s_and_b32 s37, s36, 3")
    e("s_lshl_b32 s72, s7, 2"); e("s_add_u32 s72, s72, s37")
    e("s_cmp_lt_u32 s36, 4"); e("s_cbranch_scc1 L_loader")
    e("s_getpc_b64 s[34:35]")
    e.label("L_pc")
    e("s_lshl_b32 s73, s39, 2"); e("s_add_u32 s73, s73, s37"); e("s_mul_i32 s73, s73, 1280")
    e("v_min_u32 v5, 9, v0"); e("v_lshl_add_u32 v5, v5, 7, s73")
    e("v_min_u32 v5, L_end-L_pc, v5")
    e("global_load_dword v2, v5, s[34:35]", tag="code")
    e("s_branch L_compute")
    st0 = (list(e.vm), e.smem_pending)
    def stamp0():
        if g("fine"):
            e("v_writelane_b32 v1, s94, 0"); e("v_writelane_b32 v1, s98, 32"); fs.n = 1
    def common():
        e("s_mul_i32 s73, s4, 52"); e("s_lshr_b32 s73, s73, 8")
        e("s_mul_i32 s74, s73, 5"); e("s_sub_u32 s74, s4, s74")
        e(f"s_mov_b32 s{SC}, {f2u(-SCALE)}")
    def o_offsets():
        e(f"s_lshl_b32 s{SO}, s5, 5"); e(f"s_add_u32 s{SO}, s{SO}, s6"); e(f"s_mul_i32 s{SO}, s{SO}, 192")
        e(f"s_mul_i32 s{SO+1}, s72, 3"); e(f"s_add_u32 s{SO}, s{SO}, s{SO+1}"); e(f"s_lshl_b32 s{SO}, s{SO}, 10")
        for sp in range(1, 4): e(f"s_add_u32 s{SO+sp}, s{SO}, {sp*48*1024}")
    def flag_offsets():
        e(f"s_mul_i32 s10, s3, {4*R1}"); e(f"s_add_u32 s10, s10, {WS_F1}")
        e(f"s_mul_i32 s8, s7, {R1}"); e(f"s_mul_i32 s9, s39, {FS}"); e("s_add_u32 s8, s8, s9"); e("s_add_u32 s8, s8, s10")
        e("s_lshl_b32 s12, s5, 5"); e("s_add_u32 s12, s12, s4"); e("s_lshl_b32 s12, s12, 2"); e("s_add_u32 s12, s12, s37")
        e("s_lshl_b32 s12, s12, 2")
        e(f"s_mul_i32 s11, s12, {4*F2}"); e(f"s_add_u32 s11, s11, {WS_F2}")
        e(f"s_mul_i32 s9, s38, {F2}"); e("s_add_u32 s9, s9, s11")
        e(f"s_mul_i32 s13, s38, {4*F2}"); e("s_add_u32 s11, s11, s13")
    def tr_addr(dst, n, rowshift, xor=None, base=None):
        e("v_bfe_u32 v5, v0, 2, 2"); e("v_and_b32 v6, 1, v3"); e("v_lshl_or_b32 v6, v6, 2, v5")
        if xor: e(f"v_xor_b32 v6, {xor}, v6")
        e(f"v_lshl_add_u32 v5, v3, {rowshift}, v5"); e("v_lshlrev_b32 v5, 8, v5")
        e("v_and_b32 v7, 3, v0"); e("v_lshl_add_u32 v5, v7, 3, v5")
        if base: e(f"v_add_u32 v5, {base}, v5")
        for t in range(n):
            e(f"v_xor_b32 v7, {t}, v6"); e(f"v_lshl_add_u32 v{dst+t}, v7, 5, v5")
    def k_addr(dst, item):
        e("v_lshrrev_b32 v5, 1, v3"); e("v_xor_b32 v5, v5, v4"); e("v_lshlrev_b32 v5, 4, v5"); e("v_lshl_add_u32 v5, v4, 8, v5")
        e("v_and_b32 v6, 1, v3"); e("v_lshl_add_u32 v5, v6, 3, v5")
        e(f"s_lshl_b32 s86, {item}, 12"); e(f"s_add_u32 s86, s86, {L_K}"); e(f"v_add_u32 v{dst}, s86, v5")
    def k_reads(kf, KA):
        return [f"ds_read_b64 {V(kf(T*4+s) + 2*u, 2)}, v{KA + 2*s + u} offset:{k_unit(T)}" for T in range(6) for s in range(4) for u in range(2)]
    def v_reads(kf, VA):
        return [f"ds_read_b64_tr_b16 {V(kf(t*3+s) + 2*j, 2)}, v{VA+t} offset:{(2*s+j)*4096}" for t in range(8) for s in range(3) for j in range(2)]

    e.label("L_loader")
    e.vm = []
    WQVO, XVO, KVO, LO, VVO, WVO, KS = 8, 12, 18, 22, 23, 25, 32
    e("s_lshl_b32 s75, s37, 4")
    e("v_add_u32 v5, s75, v3"); e("v_lshlrev_b32 v5, 13, v5")
    e("v_lshlrev_b32 v6, 1, v3"); e("v_xor_b32 v6, v6, v4"); e(f"v_lshl_add_u32 v{WQVO}, v6, 4, v5")
    e(f"v_add_u32 v{WQVO+1}, {4*8192 - 1024}, v{WQVO}"); e(f"v_xor_b32 v6, 128, v{WQVO}")
    e(f"v_add_u32 v{WQVO+2}, {8*8192 - 2048}, v6"); e(f"v_add_u32 v{WQVO+3}, {12*8192 - 3072}, v6")
    e("v_lshrrev_b32 v5, 3, v0"); e("v_and_b32 v6, 7, v0"); e("v_xor_b32 v6, v6, v3")
    e("v_mul_u32_u24 v5, 1280, v5"); e(f"v_lshl_add_u32 v{XVO}, v6, 4, v5"); e(f"v_xor_b32 v6, 64, v{XVO}")
    for m in range(1, 6):
        e(f"v_add_u32 v{XVO+m}, {8*m*1280 - (m % 3)*1024}, v{6 if m & 1 else XVO}")
    e(f"s_mul_i32 s76, s72, {48*1280}")
    e("s_lshl_b32 s77, s6, 8")
    e("s_lshl_b32 s78, s37, 12")
    e("s_mul_i32 s79, s37, 6144"); e(f"s_add_u32 s79, s79, {L_X}")
    orders = g("orders")
    e("s_sub_u32 s100, s7, s39"); e("s_and_b32 s100, s100, 3")
    pk = [sum(c << (4*i) for i, c in enumerate(o)) for o in orders]
    for o in orders: assert sorted(o) == list(range(10))
    e(f"s_mov_b32 s92, {pk[0] & 0xffffffff}"); e(f"s_mov_b32 s93, {pk[0] >> 32}")
    for i in range(1, 4):
        e(f"s_cmp_eq_u32 s100, {i}"); e(f"s_cselect_b32 s92, {pk[i] & 0xffffffff}, s92"); e(f"s_cselect_b32 s93, {pk[i] >> 32}, s93")
    for r, sz in ((SW, W_BYTES), (SX, X_BYTES), (SK, KV_BYTES), (SV, KV_BYTES), (SWO, W_BYTES)):
        e(f"s_mov_b32 s{r+2}, {sz}"); e(f"s_mov_b32 s{r+3}, 0x20000")
    def chunk_pre(c):
        e(f"s_bfe_u32 s80, s{92 + c // 8}, {(4 << 16) | (4 * (c % 8))}")
        e("s_lshl_b32 s81, s80, 19"); e("s_add_u32 s82, s77, s81")
        e(f"s_add_u32 m0, s78, {L_W + (c % 3)*16384}")
        e("s_lshl_b32 s81, s80, 7"); e("s_add_u32 s83, s76, s81")
    def chunk_go(c):
        for k in range(4):
            e(f"buffer_load_dwordx4 v{WQVO+k}, {S(SW,4)}, s82 offen offset:{k*1024} {nt_w} lds", tag=f"c{c}")
        for m in range(6):
            if m % 3 == 0:
                e(f"s_add_u32 m0, s79, {(c % 3)*24576 + (m//3)*3072}")
            e(f"buffer_load_dwordx4 v{XVO+m}, {S(SX,4)}, s83 offen offset:{(m%3)*1024} {nt_x} lds", tag=f"c{c}")
        if c > 0 and sent:
            for u in range(3):
                if cplan[u] == c: clear_inbox(u)
    chunk_pre(0)
    e.wait_lgkm(0)
    e("s_cmp_eq_u32 s5, 0")
    e(f"s_cselect_b64 {S(SW,2)}, s[14:15], s[24:25]"); e(f"s_cselect_b64 {S(SX,2)}, s[8:9], s[18:19]")
    e(f"s_cselect_b64 {S(SK,2)}, s[10:11], s[20:21]"); e(f"s_cselect_b64 {S(SV,2)}, s[12:13], s[22:23]"); e(f"s_cselect_b64 {S(SWO,2)}, s[16:17], s[26:27]")
    chunk_go(0)
    stamp0(); fs()
    srd(e, SWS, 32, WS_BYTES); srd(e, SDBG, 30, 256)
    common()
    e(f"v_lshlrev_b32 v{LO}, 4, v0")
    e("s_lshr_b32 s84, s72, 1"); e("s_lshl_b32 s84, s84, 5"); e("s_add_u32 s84, s84, s6"); e("s_mul_i32 s84, s84, 24576")
    e("s_and_b32 s85, s37, 1"); e("s_lshl_b32 s86, s85, 11"); e("s_add_u32 s84, s84, s86")
    e("v_xor_b32 v5, v3, v4"); e("v_lshlrev_b32 v5, 4, v5"); e("v_lshl_add_u32 v5, v3, 8, v5")
    e("s_lshl_b32 s86, s85, 7"); e(f"v_xor_b32 v{KVO}, s86, v5"); e(f"v_xor_b32 v{KVO+1}, 64, v{KVO}")
    e("s_lshl_b32 s101, s37, 11"); e(f"s_add_u32 s101, s101, {L_K}")
    e("s_lshl_b32 s87, s7, 6"); e("s_add_u32 s87, s87, s6"); e("s_mul_i32 s87, s87, 24576"); e("s_mul_i32 s86, s37, 6144"); e("s_add_u32 s87, s87, s86")
    e("v_lshlrev_b32 v5, 1, v3"); e("v_xor_b32 v5, v5, v4"); e("v_lshlrev_b32 v5, 4, v5"); e(f"v_lshl_add_u32 v{VVO}, v3, 8, v5")
    e(f"v_xor_b32 v{VVO+1}, 128, v{VVO}")
    e("v_add_u32 v5, s75, v3"); e("v_mul_u32_u24 v5, 1280, v5")
    for k in range(4):
        e(f"v_or_b32 v6, {(k & 1) << 2}, v3"); e("v_lshlrev_b32 v6, 1, v6"); e("v_xor_b32 v6, v6, v4")
        e(f"v_lshl_add_u32 v6, v6, 4, v5")
        e(f"v_add_u32 v{WVO+k}, {4*k*1280 - k*1024}, v6")
    e(f"s_mul_i32 s88, s38, {1024*1280}"); e("s_lshl_b32 s86, s74, 8"); e("s_add_u32 s88, s88, s86")
    e(f"s_mul_i32 s89, s3, {32*49152}"); e("s_lshl_b32 s86, s73, 13"); e("s_add_u32 s89, s89, s86")
    e("s_lshr_b32 s34, s37, 1"); e("s_mul_i32 s86, s34, 49152"); e("s_add_u32 s89, s89, s86")
    e("s_lshl_b32 s86, s85, 12"); e("s_add_u32 s89, s89, s86")
    ord2 = g("ord2") or [[((m * 171 >> 6) + c) & 15 for c in range(16)] for m in range(6)]
    pk2 = [sum(c << (4*i) for i, c in enumerate(o)) for o in ord2]
    e(f"s_mov_b32 s90, {pk2[0] & 0xffffffff}"); e(f"s_mov_b32 s91, {pk2[0] >> 32}")
    for i in range(1, 6):
        e(f"s_cmp_eq_u32 s73, {i}"); e(f"s_cselect_b32 s90, {pk2[i] & 0xffffffff}, s90"); e(f"s_cselect_b32 s91, {pk2[i] >> 32}, s91")
    e("v_and_b32 v30, 7, v0"); e("v_lshlrev_b32 v30, 5, v30")
    flag_offsets()
    e("v_mov_b32 v5, 0"); e(f"v_mul_u32_u24 v6, {4*F2}, v0")
    sent = g("sent", 1)
    if sent:
        for r in range(4): e(f"v_mov_b32 v{40+r}, -1")
        e("s_add_u32 s13, s12, s38"); e("s_lshl_b32 s13, s13, 13"); e(f"s_add_u32 s13, s13, {WS_P}")
        for u in range(3):
            e(f"s_add_u32 s{20+u}, s38, {u + 1}"); e(f"s_and_b32 s{20+u}, s{20+u}, 3"); e(f"s_lshl_b32 s{20+u}, s{20+u}, 11"); e(f"s_add_u32 s{20+u}, s{20+u}, s13")
    def clear_inbox(u):
        for tp in range(2):
            e(f"buffer_store_dwordx4 v[40:43], v{LO}, {S(SWS,4)}, s{20+u} offen offset:{tp*1024} sc1", tag="clr")
    cplan = g("cplan", [0, 0, 0])
    if sent:
        for u in range(3):
            if cplan[u] == 0: clear_inbox(u)
    else:
        e("s_mov_b64 exec, 15")
        e(f"buffer_store_dword v5, v6, {S(SWS,4)}, s9 offen sc1", tag="clr")
    e("s_mov_b64 exec, 1")
    e(f"buffer_store_dword v5, v5, {S(SWS,4)}, s8 offen sc1", tag="clr")
    e("s_mov_b64 exec, -1")
    kn = [0]
    def k_load(cnt):
        first = kn[0]
        for _ in range(cnt):
            n = kn[0]; kn[0] += 1
            if n >= 10:
                e(f"buffer_load_dwordx4 {V(KS + 4*(n-10), 4)}, v{KVO + (n&1)}, {S(SK,4)}, s84 offen offset:{(n&1)*1024} {nt_kv}", tag="k")
                continue
            if n & 1 == 0 or n == first: e(f"s_add_u32 m0, s101, {k_unit(n >> 1)}")
            e(f"buffer_load_dwordx4 v{KVO + (n&1)}, {S(SK,4)}, s84 offen offset:{(n&1)*1024} {nt_kv} lds", tag="k")
            if n & 1: e("s_add_u32 s84, s84, 4096")
    def v_dma(i, lo, hi):
        for n in range(lo, hi):
            if n == lo or n % 4 == 0:
                e(f"s_add_u32 m0, s79, {24576*(1+i) + (n>>2)*4096}")
                e(f"s_add_u32 s86, s87, {i*32*24576 + (n>>2)*4096}")
            e(f"buffer_load_dwordx4 v{VVO + (n&1)}, {S(SV,4)}, s86 offen offset:{(n&3)*1024} {nt_kv} lds", tag="v")
    wn = [0]
    def wo(cnt):
        for _ in range(cnt):
            c = wn[0]; wn[0] += 1
            e(f"s_add_u32 m0, s78, {WO_SLOTS[c % NW]*16384}")
            e(f"s_bfe_u32 s86, s{90 + c // 8}, {(4 << 16) | (4 * (c % 8))}")
            e(f"s_mul_i32 s86, s86, {64*1280}"); e("s_add_u32 s86, s86, s88")
            for k in range(4):
                e(f"buffer_load_dwordx4 v{WVO+k}, {S(SWO,4)}, s86 offen offset:{k*1024} {nt_wo} lds", tag=f"w{c}")
    def o_pre(c):
        e(f"s_add_u32 m0, s78, {O_SLOTS[c % NO]*16384}")
        e(f"s_bfe_u32 s81, s{90 + c // 8}, {(4 << 16) | (4 * (c % 8))}")
        e(f"s_mul_i32 s81, s81, {2*49152}"); e("s_add_u32 s81, s81, s89")
    def o_go(c):
        for k in range(4):
            e(f"buffer_load_dwordx4 v{LO}, {S(SWS,4)}, s81 offen offset:{k*1024} {ld_o} lds", tag=f"o{c}")
    woplan = g("woplan")
    spf = list(g("spf") or [])
    if spf:
        e("s_lshl_b32 s14, s4, 2"); e("s_add_u32 s14, s14, s37"); e("s_mul_i32 s14, s14, 640")
        e(f"s_mul_i32 s15, s38, {1024*1280}"); e("s_add_u32 s14, s14, s15")
        e(f"s_add_u32 s14, s14, s{SWO}"); e(f"s_addc_u32 s15, s{SWO+1}, 0")
        e(f"s_add_u32 s16, s14, {8*81920}"); e("s_addc_u32 s17, s15, 0")
    def prefetch(slot):
        if slot < len(spf):
            for ch in spf[slot]:
                for i in range(10):
                    e(f"s_load_dword s18, {S(14 + 2*(ch >> 3), 2)}, {(ch & 7)*81920 + (i*128) % 640 + 64*(i // 5)}")
    kcls = g("kcls")
    chunk_pre(1); chunk_go(1); chunk_pre(2)
    e.wait_vm_tag("c0"); fs(); e.barrier()
    chunk_go(2)
    prefetch(0)
    def front(kc, c0, c1, nxt):
        for c in range(c0, c1):
            pre = c != kc and nxt <= min(c + 3, 9)
            if pre: chunk_pre(nxt)
            e.wait_vm_tag(f"c{c+1}", lgkm=0 if c == 8 else None)
            if g("fine") == 2: fs()
            e.barrier()
            if c == 4 or g("fine") == 2: fs()
            if c == kc: k_load(12)
            else:
                while nxt <= min(c + 3, 9):
                    if not pre: chunk_pre(nxt)
                    chunk_go(nxt); nxt += 1; pre = False
            if c == 7:
                assert kn[0] == 12
                v_dma(0, 0, 6)
                e(f"v_add_u32 v5, s101, v{LO}")
                for n in range(2): e(f"ds_write_b128 v5, {V(KS + 4*n, 4)} offset:{k_unit(5) + n*1024}")
            if c == 8:
                v_dma(1, 0, 4)
            prefetch(c + 1)
        return nxt
    c0 = min(kcls)
    nxt = front(-1, 0, c0, 3)
    st = (list(e.vm), fs.n)
    uniq = sorted(set(kcls))
    for i, kc in enumerate(kcls):
        if uniq.index(kc) > 0:
            e(f"s_cmp_eq_u32 s100, {i}"); e(f"s_cbranch_scc1 L_kc{uniq.index(kc)}")
    ends = []
    for i, kc in enumerate(uniq):
        e.label(f"L_kc{i}")
        e.vm, fs.n = list(st[0]), st[1]; kn[0] = 0
        front(kc, c0, 9, nxt)
        ends.append([t for t, _ in e.vm])
        if i + 1 < len(uniq): e("s_branch L_kj")
    assert all(x == ends[0] for x in ends) and set(ends[0]) == {"v"}, ends
    e.label("L_kj")
    if g("fine") == 2: fs()
    e.barrier()
    fs()
    v_dma(1, 4, 6)
    e(f"buffer_load_dword v31, v30, {S(SDBG,4)}, 0 offen sc1", tag="cnt")
    wo(woplan.get("pre", 0))
    assert all(x in (0, 2, 6) for x in WO_SLOTS[:wn[0]])
    prefetch(10)
    e.wait_vm_tag("v"); fs(); e.barrier()
    prefetch(11)
    e("v_cmp_gt_u32 vcc, 32, v31")
    e(f"s_mov_b32 s92, {SPIN}")
    e("s_nop 1")
    e("s_cbranch_vccz L_got0")
    stw = list(e.vm)
    e.label("L_poll0")
    e(f"buffer_load_dword v7, v30, {S(SDBG,4)}, 0 offen sc1")
    e.wait_all(lgkm=False)
    e("v_cmp_gt_u32 vcc, 32, v7")
    e("s_sub_u32 s92, s92, 1"); e("s_cbranch_scc1 L_got0")
    e("s_nop 1")
    e("s_cbranch_vccnz L_poll0")
    e.label("L_got0")
    e.vm = stw
    fs()
    wo(woplan.get("post", 0))
    assert wn[0] <= NW and all(x < 7 for x in WO_SLOTS)
    fs(); e.barrier()
    e("s_cmp_ge_u32 s4, 30"); e("s_cbranch_scc1 L_ldone")
    wo(woplan.get("ba", 0))
    o_pre(0)
    fs(); e.barrier()
    fs()
    o_go(0)
    if wn[0] <= 0: wo(1)
    o_pre(1); o_go(1)
    if wn[0] <= 1: wo(1)
    o_pre(2)
    e.wait_vm_tag(["o0", "w0"]); e.barrier()
    o_go(2)
    if wn[0] <= 2: wo(1)
    wo(woplan.get("b2", 0))
    on = 3
    wlead = g("wlead", NW)
    for c in range(15):
        if on < 16: o_pre(on)
        e.wait_vm_tag([f"o{c+1}", f"w{c+1}"]); e.barrier()
        k = 0
        if on < 16: o_go(on); on += 1; k += 1
        if wn[0] < 16 and wn[0] <= c + 3: wo(1); k += 1
        if k < 2 and on < 16 and on <= c + NO: o_pre(on); o_go(on); on += 1; k += 1
        if k < 2 and wn[0] < 16 and wn[0] <= c + wlead: wo(1)
        if c == 15 - g("defer", 3): assert on == 16 and wn[0] == 16
    e.label("L_ldone")
    fs.out(SWS, 1)
    e("s_endpgm")

    e.label("L_compute")
    e.vm, e.smem_pending = list(st0[0]), st0[1]
    e.lgkm = []
    common(); o_offsets()
    WQRA, XRA, PA, LO, VD, KA = 8, 16, 20, 22, 23, 248
    AF, BF, ACC, SP = 24, 88, 112, 208
    tr_addr(WQRA, 8, 3)
    e(f"s_mul_i32 s75, s37, 6144"); e(f"s_add_u32 s75, s75, {L_X}")
    e("v_lshrrev_b32 v5, 1, v4"); e("v_xor_b32 v5, v5, v3"); e("v_lshlrev_b32 v5, 4, v5")
    e("v_lshl_add_u32 v5, v4, 7, v5"); e(f"v_add_u32 v{XRA}, s75, v5"); e(f"v_xor_b32 v5, 64, v5"); e(f"v_add_u32 v{XRA+1}, s75, v5")
    e("s_lshr_b32 s76, s37, 1")
    k_addr(KA, "s76")
    for x in range(1, 8): e(f"v_xor_b32 v{KA + x}, {x << 5}, v{KA}")
    e("s_mul_i32 s77, s76, 24576"); e(f"s_add_u32 s77, s77, {L_V}")
    e("v_lshlrev_b32 v5, 10, v3"); e(f"v_sub_u32 v{VD}, s77, v5")
    e(f"v_lshlrev_b32 v{LO}, 4, v0")
    e(f"s_mul_i32 s92, s7, {R1}"); e(f"s_mul_i32 s93, s39, {FS}"); e("s_add_u32 s92, s92, s93")
    e("s_lshl_b32 s86, s73, 3"); e("s_mul_i32 s87, s86, 43"); e("s_lshr_b32 s87, s87, 9")
    e("s_add_u32 s86, s86, 7"); e("s_mul_i32 s86, s86, 43"); e("s_lshr_b32 s86, s86, 9")
    e("v_bfe_u32 v5, v0, 3, 1"); e("v_add_u32 v5, s87, v5"); e("v_min_u32 v5, s86, v5")
    e("v_and_b32 v6, 7, v0"); e(f"v_mul_u32_u24 v5, {R1}, v5"); e(f"v_mul_u32_u24 v6, {FS}, v6"); e(f"v_add_u32 v{PA}, v5, v6")
    e("s_lshl_b32 s81, 1, s39")
    e("s_cmp_eq_u32 s87, s7"); e("s_cselect_b32 s84, s81, 0"); e("s_cmp_eq_u32 s86, s7"); e("s_cselect_b32 s85, s81, 0")
    e(f"s_mul_i32 s82, s87, {R1}"); e(f"s_mul_i32 s83, s86, {R1}")
    e(f"v_cmp_ne_u32 s[90:91], s92, v{PA}"); e("s_and_b64 s[90:91], s[90:91], 0xffff")
    e.wait_lgkm(0)
    stamp0()
    srd(e, SWS, 32, WS_BYTES); srd(e, SOUT, 28, OUT_BYTES); srd(e, SDBG, 30, 256)
    flag_offsets()
    e("s_add_u32 s82, s82, s10"); e("s_add_u32 s83, s83, s10")
    e("v_mov_b32 v5, 0"); e("v_mov_b32 v6, 1")
    e("s_lshl_b32 s86, s3, 5")
    fs()
    e.barrier()
    fs()
    def bump():
        e("s_cmp_lg_u32 s37, 0"); e("s_cbranch_scc1 L_noinc")
        e("s_mov_b64 exec, 1")
        e(f"buffer_atomic_add v6, v5, {S(SDBG,4)}, s86 offen sc1"); e.vm = []
        e("s_mov_b64 exec, -1")
        e.label("L_noinc")
    def reads(c, kk, st):
        slot = c % 3
        rb = [f"ds_read_b128 {V(BF + st*12 + u*4, 4)}, v{XRA+kk} offset:{slot*24576 + u*2048}" for u in range(3)]
        ra = [f"ds_read_b64_tr_b16 {V(AF + st*32 + t*4 + j*2, 2)}, v{WQRA+t} offset:{slot*16384 + kk*8192 + j*1024}" for t in range(8) for j in range(2)]
        return ra[:2] + rb + ra[2:]
    def acc(t, u): return ACC + (t*3+u)*4
    def mfmas(st, first, prs=None):
        prs = prs or [(t, u if t % 2 == 0 or not g("snake", 1) else 2 - u) for t in range(8) for u in range(3)]
        return [f"{MF} {V(acc(t,u),4)}, {V(AF + st*32 + t*4, 4)}, {V(BF + st*12 + u*4, 4)}, {'0' if first else V(acc(t,u),4)}" for t, u in prs]
    def kf(n): return SP + 4*n if n < 10 else AF + 4*(n - 10)
    kr = k_reads(kf, KA)
    def tail(rd, extra):
        return rd + [extra[i:i+2] for i in range(0, len(extra), 2)]
    put(e, reads(0, 0, 0))
    for c in range(10):
        interleave(e, mfmas(0, c == 0), tail(reads(c, 1, 1), kr[10:20] if c == 9 else []), per=1)
        if c == max(2, max(cplan) + 1): e.settle(); bump()
        e.wait_lgkm(10 if c == 9 else 0); e.barrier()
        if c in (4, 9): fs()
        if c < 9:
            interleave(e, mfmas(1, False), tail(reads(c + 1, 0, 0), kr[:10] if c == 8 else []), per=1)
    def qcvt(u):
        o = []
        for s in range(4):
            a, b = acc(2*s, u), acc(2*s+1, u)
            o += [f"v_cvt_pk_bf16_f32 v{a}, v{a}, v{a+1}", f"v_cvt_pk_bf16_f32 v{a+1}, v{a+2}, v{a+3}",
                  f"v_cvt_pk_bf16_f32 v{a+2}, v{b}, v{b+1}", f"v_cvt_pk_bf16_f32 v{a+3}, v{b+2}, v{b+3}"]
        return o
    ONE = 16
    odd = [acc(t, u) for u in range(3) for t in (1, 3, 5, 7)]
    sts = [[80, 84, 88, 92, 96, 100], odd[:6], odd[6:]]
    xtra = [[104, 108], [KA, KA + 4], [acc(0, 0), acc(2, 0)]]
    T = [Tile(u, [acc(2*s, u) for s in range(4)], sts[u], sts[u] + xtra[u], acc(6, u), kf, ONE, LO, st_o) for u in range(3)]
    prog = mfmas(1, False, [(t, u) for u in range(3) for t in range(8)]) + kr[20:] + qcvt(0) + qcvt(1) + qcvt(2)
    prog += [f"v_add_u32 v{WQRA+t}, v{VD}, v{WQRA+t}" for t in range(8)] + [f"v_mov_b32 v{ONE + r}, 0x3f803f80" for r in range(4)]
    prog += T[0].s() + T[0].softmax() + T[1].s() + T[2].s()
    ib = len(prog); prog.append("BAR V")
    vr = v_reads(kf, WQRA)
    extra = [(ib, ib + 1 + k) for k in range(len(vr))]
    extra += [(prog.index(x), ib) for x in T[0].s()]
    prog += vr
    bonus = {}
    for u in range(3):
        if u: prog += T[u].softmax()
        prog += T[u].pv()
        n0 = len(prog); prog += T[u].outs()
        for k in range(n0, len(prog)):
            if prog[k].startswith("buffer_store"): bonus[k] = g("obonus", (1500, 700, 0))[u]
    order, tm = schedule(prog, extra, {ib: g("bv_t", 1500)}, None, verbose=g("verbose"))
    if g("verbose"): print("model cycles", tm)
    for x in order:
        if x == "BAR V":
            fs(); e.barrier(); fs()
        else: e(x)
    fs()
    RA, RA2, ORA = 8, 12, 16
    e("s_and_b32 s86, s37, 1"); e("s_lshl_b32 s86, s86, 2")
    tr_addr(RA, 4, 2, xor="s86")
    for t in range(4): e(f"v_add_u32 v{RA2+t}, 0x10000, v{RA+t}")
    e("s_lshl_b32 s87, s76, 12"); e(f"s_add_u32 s87, s87, {L_O}")
    e("s_lshl_b32 s13, s12, 13"); e(f"s_add_u32 s13, s13, {WS_P}")
    for u in range(4):
        e(f"s_add_u32 s86, s38, {u + 1}"); e("s_and_b32 s86, s86, 3")
        if u < 3:
            e(f"s_lshl_b32 s{14+u}, s86, 13"); e(f"s_lshl_b32 s{17+u}, s86, 11")
        e("s_lshl_b32 s86, s86, 10"); e("s_add_u32 s86, s86, s87"); e(f"v_add_u32 v{ORA+u}, s86, v{LO}")
    e("s_lshl_b32 s86, s38, 11"); e("s_add_u32 s86, s86, s13"); e("s_lshl_b32 s87, s38, 13"); e("s_add_u32 s87, s87, s13")
    for u in range(3):
        e(f"s_add_u32 s{14+u}, s{14+u}, s86"); e(f"s_add_u32 s{17+u}, s{17+u}, s87")
    e("s_lshl_b32 s88, s73, 3"); e("s_lshl_b32 s89, s76, 2"); e("s_add_u32 s88, s88, s89"); e("s_add_u32 s88, s88, s38")
    e(f"s_mul_i32 s88, s88, {16*2560}"); e("s_mul_i32 s89, s5, 1280"); e("s_add_u32 s88, s88, s89")
    e("s_lshl_b32 s89, s74, 8"); e("s_add_u32 s88, s88, s89"); e("s_and_b32 s89, s37, 1"); e("s_lshl_b32 s89, s89, 7"); e("s_add_u32 s88, s88, s89")
    e("v_mul_u32_u24 v21, 2560, v4"); e("v_lshl_add_u32 v21, v3, 3, v21")
    e(f"v_mul_u32_u24 v2, {F2}, v0"); e(f"v_mul_u32_u24 v23, {4*F2}, v0")
    e("s_lshl_b32 s20, 1, s38"); e("s_xor_b32 s20, s20, 15"); e("s_mov_b32 s21, 0")
    e("v_mov_b32 v5, 0"); e("v_mov_b32 v6, 1"); e("v_mov_b32 v7, s81")
    e.wait_all()
    fs()
    e.barrier()
    e("s_cmp_lg_u32 s37, 0"); e("s_cbranch_scc1 L_noflag")
    e("s_mov_b64 exec, 1")
    e(f"buffer_store_dword v7, v5, {S(SWS,4)}, s8 offen sc1")
    e("s_mov_b64 exec, -1")
    e.label("L_noflag")
    e("s_cmp_ge_u32 s4, 30"); e("s_cbranch_scc1 L_cdone")
    e("s_cmp_lg_u32 s37, 1"); e("s_cbranch_scc1 L_got1")
    if spoll:
        e(f"s_mov_b32 s92, {spoll}")
        e.label("L_spoll")
        e(f"s_buffer_load_dwordx8 s[24:31], {S(SWS,4)}, s82 glc"); e(f"s_buffer_load_dwordx8 s[48:55], {S(SWS,4)}, s83 glc")
        e.wait_lgkm(0)
        for b in (24, 48):
            e(f"s_or_b64 {S(b,2)}, {S(b,2)}, {S(b+2,2)}"); e(f"s_or_b64 {S(b+4,2)}, {S(b+4,2)}, {S(b+6,2)}"); e(f"s_or_b64 {S(b,2)}, {S(b,2)}, {S(b+4,2)}")
            e(f"s_or_b32 s{b}, s{b}, s{b+1}"); e(f"s_or_b32 s{b}, s{b}, s{84 if b == 24 else 85}")
        e("s_and_b32 s24, s24, s48"); e("s_cmp_eq_u32 s24, 0xff"); e("s_cbranch_scc1 L_got1")
        if g("psleep"): e(f"s_sleep {g('psleep')}")
        e("s_sub_u32 s92, s92, 1"); e("s_cbranch_scc0 L_spoll")
    e("s_mov_b64 exec, s[90:91]")
    e(f"s_mov_b32 s92, {SPIN}")
    e.label("L_poll1")
    e(f"buffer_load_dword v7, v{PA}, {S(SWS,4)}, s10 offen sc1")
    e.wait_all(lgkm=False)
    e("v_cmp_eq_u32 vcc, 0, v7")
    e("s_sub_u32 s92, s92, 1"); e("s_cbranch_scc1 L_to1")
    e("s_nop 1")
    e("s_cbranch_vccz L_to1")
    if g("psleep"): e(f"s_sleep {g('psleep')}")
    e("s_branch L_poll1")
    e.label("L_to1")
    e("s_mov_b64 exec, -1")
    e.label("L_got1")
    e.barrier()
    AF2, BF2, AC2 = 24, 56, 112
    def reads2(c, kk, st):
        slot = WO_SLOTS[c % NW]
        base = RA if slot < 4 else RA2
        ra = [f"ds_read_b64_tr_b16 {V(AF2 + st*16 + t*4 + j*2, 2)}, v{base+t} offset:{(slot & 3)*16384 + kk*8192 + j*4096}" for t in range(4) for j in range(2)]
        rb = [f"ds_read_b128 {V(BF2 + st*16 + u*4, 4)}, v{ORA+u} offset:{O_SLOTS[c % NO]*16384 - L_O + kk*8192}" for u in range(4)]
        return ra[:2] + rb + ra[2:]
    def mfmas2(st, first):
        out = []
        for t in range(4):
            for u in (range(4) if t % 2 == 0 or not g("snake", 1) else range(3, -1, -1)):
                d = V(AC2 + (t*4+u)*4, 4)
                out.append(f"{MF} {d}, {V(AF2 + st*16 + t*4, 4)}, {V(BF2 + st*16 + u*4, 4)}, {'0' if first else d}")
        return out
    e.barrier()
    fs()
    put(e, reads2(0, 0, 0))
    D = g("defer", 3)
    for c in range(16 - D):
        interleave(e, mfmas2(0, c == 0), reads2(c, 1, 1), per=1)
        e.wait_lgkm(0); e.barrier()
        if c == 7: fs()
        interleave(e, mfmas2(1, False), reads2(c + 1, 0, 0), per=1)
    def ac2(t, u): return AC2 + (t*4+u)*4
    nk = 2 * D
    afr = [AF2, AF2 + 16] + [176 + 16*i for i in range(nk - 2)]
    free_b = [BF2 + 16 + 4*i for i in range(4)] + [88 + 4*i for i in range(6)] + [176 + 16*(nk - 2) + 4*i for i in range((80 - 16*(nk - 2)) // 4)]
    prog = []; extra = []; bars = {}; earliest = {}
    for c in range(17 - D, 16):
        bars[c] = len(prog); prog.append(f"BAR {c}")
        earliest[bars[c]] = g("bar_t", (0, 200, 400, 600))[c - (17 - D)]
        if c > 17 - D: extra.append((bars[c - 1], bars[c]))
    def rd(k, x):
        c = 16 - D + k // 2
        if c in bars: extra.append((bars[c], len(prog)))
        prog.append(x)
    nb = 0
    for u in range(4):
        for k in range(nk):
            c, kk = 16 - D + k // 2, k & 1
            slot = WO_SLOTS[c % NW]; base = RA if slot < 4 else RA2
            if k == 0: b = BF2 + 4*u
            else:
                b = free_b[nb % len(free_b)]; nb += 1
                rd(k, f"ds_read_b128 {V(b, 4)}, v{ORA+u} offset:{O_SLOTS[c % NO]*16384 - L_O + kk*8192}")
                if u == 0:
                    for t in range(4):
                        for j in range(2):
                            rd(k, f"ds_read_b64_tr_b16 {V(afr[k] + t*4 + j*2, 2)}, v{base+t} offset:{(slot & 3)*16384 + kk*8192 + j*4096}")
            prog += [f"{MF} {V(ac2(t,u),4)}, {V(afr[k] + t*4, 4)}, {V(b, 4)}, {V(ac2(t,u),4)}" for t in range(4)]
        if u < 3:
            for tp in range(2):
                a, b = ac2(2*tp, u), ac2(2*tp+1, u)
                prog += [f"v_cvt_pk_bf16_f32 v{a}, v{a}, v{a+1}", f"v_cvt_pk_bf16_f32 v{a+1}, v{a+2}, v{a+3}",
                         f"v_cvt_pk_bf16_f32 v{a+2}, v{b}, v{b+1}", f"v_cvt_pk_bf16_f32 v{a+3}, v{b+2}, v{b+3}"]
                if sent: prog += [f"v_min_u32 v{a+r}, -2, v{a+r}" for r in range(4)]
                prog.append(f"buffer_store_dwordx4 {V(a,4)}, v{LO}, {S(SWS,4)}, s{14+u} offen offset:{tp*1024} {st_p}")
    order, tm = schedule(prog, extra, earliest, verbose=g("verbose"))
    if g("verbose"): print("model cycles", tm)
    for x in order:
        if x.startswith("BAR"): e.barrier()
        else: e(x)
    fs()
    PK = 24
    def fetch():
        for i in (2, 1, 0):
            for tp in range(2):
                e(f"buffer_load_dwordx4 {V(PK + (i*2+tp)*4, 4)}, v{LO}, {S(SWS,4)}, s{17+i} offen offset:{tp*1024} {ld_p}")
    if sent:
        e(f"s_mov_b32 s92, {SPIN}")
        e.settle()
        e.label("L_poll2")
        fetch()
        r = list(range(PK + 23, PK - 1, -1))
        e(f"v_max3_u32 v7, v{r[0]}, v{r[1]}, v{r[2]}")
        for k in range(3, 23, 2): e(f"v_max3_u32 v7, v7, v{r[k]}, v{r[k+1]}")
        e(f"v_max_u32 v7, v7, v{r[23]}")
        e("v_cmp_eq_u32 vcc, -1, v7")
        e("s_sub_u32 s92, s92, 1"); e("s_cbranch_scc1 L_got2")
        e("s_nop 1")
        e("s_cbranch_vccz L_got2")
        if g("psleep2"): e(f"s_sleep {g('psleep2')}")
        e("s_branch L_poll2")
        e.label("L_got2")
        fs(); fs()
    else:
        e("s_mov_b64 exec, s[20:21]")
        e(f"buffer_load_dword v7, v2, {S(SWS,4)}, s11 offen sc1")
        e(f"s_mov_b32 s92, {SPIN}")
        e.wait_all(lgkm=False)
        e(f"buffer_store_dword v6, v23, {S(SWS,4)}, s9 offen sc1")
        fs()
        e.label("L_poll2")
        e("v_cmp_ne_u32 vcc, 1, v7")
        e("s_sub_u32 s92, s92, 1"); e("s_cbranch_scc1 L_got2")
        e("s_nop 1")
        e("s_cbranch_vccz L_got2")
        if g("psleep2"): e(f"s_sleep {g('psleep2')}")
        e(f"buffer_load_dword v7, v2, {S(SWS,4)}, s11 offen sc1")
        e.wait_all(lgkm=False)
        e("s_branch L_poll2")
        e.label("L_got2")
        e("s_mov_b64 exec, -1")
        fs()
        fetch()
    for tp in range(2):
        for k in range(4):
            d = ac2(2*tp + (k >> 1), 3) + (k & 1)*2
            for i in (2, 1, 0):
                src = PK + (i*2+tp)*4 + k
                e(f"v_lshlrev_b32 v{56 + 2*i}, 16, v{src}"); e(f"v_and_b32 v{57 + 2*i}, 0xffff0000, v{src}")
            e(f"v_pk_add_f32 {V(d,2)}, {V(d,2)}, v[60:61]"); e("v_pk_add_f32 v[56:57], v[56:57], v[58:59]")
            e(f"v_pk_add_f32 {V(d,2)}, {V(d,2)}, v[56:57]")
            if k & 1:
                t = 2*tp + (k >> 1); a = ac2(t, 3)
                e(f"v_cvt_pk_bf16_f32 v{80+2*t}, v{a}, v{a+1}"); e(f"v_cvt_pk_bf16_f32 v{81+2*t}, v{a+2}, v{a+3}")
                e(f"buffer_store_dwordx2 {V(80+2*t,2)}, v21, {S(SOUT,4)}, s88 offen offset:{t*32} {st_out}")
    e.label("L_cdone")
    fs.out(SWS)
    e.label("L_end")
    e("s_endpgm")
    return e

def kdiag(opt):
    e = E()
    e("s_cmp_ge_u32 s2, 1"); e("s_cbranch_scc1 L9_end")
    e("s_load_dwordx2 s[10:11], s[0:1], 96")
    e.wait_lgkm(0)
    srd(e, 12, 10, WS_BYTES)
    e("v_lshrrev_b32 v1, 2, v0"); e("v_lshlrev_b32 v1, 11, v1"); e("v_and_b32 v2, 3, v0"); e("v_lshl_add_u32 v1, v2, 8, v1")
    for i, (field, op) in enumerate(opt["diag"]):
        for k in range(15):
            e(f"s_mov_b32 s4, {WS_ST + k*16*2048 + field*4}")
            e(f"buffer_load_dword v{8+k}, v1, s[12:15], s4 offen")
        for k in range(1, 15):
            e(f"v_{op}_u32 v8, v8, v{8+k}")
        e("v_readlane_b32 s20, v8, 0")
        for l in range(1, 64):
            e(f"v_readlane_b32 s21, v8, {l}"); e(f"s_{op}_u32 s20, s20, s21")
        e(f"s_mov_b32 s{22+i}, s20")
    e("s_sub_u32 s24, s23, s22"); e("s_min_u32 s24, s24, 10000"); e(f"s_lshl_b32 s24, s24, {opt.get('dshift', 6)}")
    e("s_memrealtime s[26:27]"); e.wait_lgkm(0)
    e.label("L9_spin")
    e("s_memrealtime s[28:29]"); e.wait_lgkm(0)
    e("s_sub_u32 s28, s28, s26"); e("s_cmp_lt_u32 s28, s24"); e("s_cbranch_scc1 L9_spin")
    e.label("L9_end")
    e("s_endpgm")
    return e

def build(opt, fn):
    K = NAME + "_kernel"
    e = kernel(opt)
    if opt.get("align", 1):
        e.lines, fixed, missed = align(e.lines, lambda t: header([(None, 256, 512, 163840)]) + kstart(K) + t)
        if opt.get("verbose"): print("aligned", fixed, "missed", missed)
    txt = header([(None, 256, 512, 163840)]) + kstart(K) + e.text() + RODATA + kdesc(K, 256, 102, 256)
    if opt.get("diag"):
        txt = header([("m_kernel", 256, 512, 163840), ("d_kernel", 1, 64, 0)]) + kstart("m_kernel") + e.text() + kstart("d_kernel") + kdiag(opt).text() + RODATA + kdesc("m_kernel", 256, 102, 256) + kdesc("d_kernel", 64)
    open(fn, "w").write(txt)
    return e

if __name__ == "__main__":
    e = build({"verbose": len(sys.argv) > 1}, "v7.s")
    print("nops", e.nops, "instrs", sum(e.count.values()))
```

```python
import gen7, gen6, sys
f = int(sys.argv[1])
R64 = ([2,0,1,3,4,5],[6,7,8,9])
gen6.build(dict(fine=f), "g0.s")
V = {
 "g1": dict(sent=0, defer=1),
 "g2": dict(sent=0, defer=3, bar_t=(0, 500)),
 "g3": dict(sent=0, defer=3, rings=R64),
 "g4": dict(sent=1, defer=3, rings=R64),
 "g5": dict(sent=1, defer=3, rings=R64, cplan=[1, 3, 5], psleep2=4),
 "g6": dict(sent=1, defer=2, psleep2=2),
 "g7": dict(sent=1, defer=3, bar_t=(0, 500), cplan=[0, 1, 2]),
}
for k, v in V.items():
    e = gen7.build(dict(v, fine=f), k + ".s")
```

```python
import sys, math, struct
from asmlib import *
from emit import *
from sched import schedule
from align import align

def f2u(x): return struct.unpack("<I", struct.pack("<f", x))[0]
SCALE = math.log2(math.e) / math.sqrt(128.0)
WS_P = 16 << 20
WS_F1 = 32 << 20
WS_F2 = 33 << 20
WS_ST = 64 << 20
X_BYTES, KV_BYTES, W_BYTES, OUT_BYTES, WS_BYTES = 983040, 6291456, 5242880, 1966080, 268435456
L_W, L_X = 0, 90112
L_K = 24576
def k_unit(T): return 0 if T == 5 else 24576 + T * 8192
L_V = L_X + 24576
WO_SLOTS, O_SLOTS = [2, 6, 0, 1, 3, 4, 5], [7, 8, 9]
NW, NO, L_O = 7, 3, 7 * 16384
FS, R1, F2 = 64, 512, 128
SPIN = 1 << 18
I10 = list(range(10))
DEFAULTS = dict(orders=[I10, I10, [1,0,3,2,5,4,8,9,6,7], [1,0,3,2,5,4,8,9,6,7]], kcls=[0, 2, -1, 0], wp=(6, 0, 4, 14, 0), rt=("7", "9", "p4"), bf=3, b2=1, d2=1, chain1=1, nb1=14, bv_t=2300, cloop=0, pk=1,
                nt_kv="nt", st_o="sc1", ld_o="sc1", st_p="sc1", ld_p="sc1", st_out="")

def srd(e, r, lo, size):
    e(f"s_mov_b32 s{r}, s{lo}"); e(f"s_mov_b32 s{r+1}, s{lo+1}")
    e(f"s_mov_b32 s{r+2}, {size}"); e(f"s_mov_b32 s{r+3}, 0x20000")

class Fine:
    def __init__(self, e, opt): self.e, self.on, self.n = e, opt.get("fine"), 0
    def __call__(self):
        if not self.on: return
        assert self.n < 32
        self.e("s_memrealtime s[94:95]"); self.e("s_memtime s[98:99]"); self.e.wait_lgkm(0)
        self.e(f"v_writelane_b32 v1, s94, {self.n}")
        self.e(f"v_writelane_b32 v1, s98, {self.n + 32}")
        self.n += 1
    def out(self, sws, ld=0):
        if not self.on: return
        e = self.e
        e.wait_all(); self()
        e("s_lshl_b32 s97, s2, 3"); e("s_add_u32 s97, s97, s37"); e(f"s_add_u32 s97, s97, {4*ld}"); e("s_lshl_b32 s97, s97, 8"); e(f"s_add_u32 s97, s97, {WS_ST}")
        e("v_lshlrev_b32 v4, 2, v0")
        e(f"buffer_store_dword v1, v4, {S(sws,4)}, s97 offen")

MF = "v_mfma_f32_16x16x32_bf16"
SX, SK, SV, SW, SWS, SWO, SOUT, SDBG = 40, 44, 48, 52, 56, 60, 44, 64
SC = 80
SO = 68

def pack4(a, b):
    return [f"v_cvt_pk_bf16_f32 v{a}, v{a}, v{a+1}", f"v_cvt_pk_bf16_f32 v{a+1}, v{a+2}, v{a+3}",
            f"v_cvt_pk_bf16_f32 v{a+2}, v{b}, v{b+1}", f"v_cvt_pk_bf16_f32 v{a+3}, v{b+2}, v{b+3}"]

class Tile:
    def __init__(self, u, q, st, ot, kf, ones, LO, st_o, pkf, pkm):
        self.__dict__.update(locals()); self.lt = q[3]
    def s(self):
        return [f"{MF} {V(self.st[T],4)}, {V(self.kf(T*4+s),4)}, {V(self.q[s],4)}, {'0' if s == 0 else V(self.st[T],4)}" for T in range(6) for s in range(4)]
    def pv(self):
        o = [f"{MF} {V(self.lt,4)}, {V(self.ones,4)}, {V(self.q[s],4)}, {'0' if s == 0 else V(self.lt,4)}" for s in range(3)]
        return o + [f"{MF} {V(self.ot[t],4)}, {V(self.kf(t*3+s),4)}, {V(self.q[s],4)}, {'0' if s == 0 else V(self.ot[t],4)}" for t in range(8) for s in range(3)]
    def softmax(self):
        MX = self.q[3]; TM = MX + 2
        o = []
        vals = [self.st[T] + r for T in range(6) for r in range(4)]
        o.append(f"v_max3_f32 v{MX}, v{vals[0]}, v{vals[1]}, v{vals[2]}")
        o.append(f"v_max3_f32 v{TM}, v{vals[3]}, v{vals[4]}, v{vals[5]}")
        for i in range(6, 22, 4):
            o.append(f"v_max3_f32 v{MX}, v{MX}, v{vals[i]}, v{vals[i+1]}")
            o.append(f"v_max3_f32 v{TM}, v{TM}, v{vals[i+2]}, v{vals[i+3]}")
        o.append(f"v_max3_f32 v{MX}, v{MX}, v{vals[22]}, v{vals[23]}")
        o.append(f"v_max_f32 v{TM+1}, v{MX}, v{TM}"); o.append(f"v_max_f32 v{MX}, v{MX}, v{TM}")
        o.append(f"v_permlane16_swap_b32 v{TM+1}, v{MX}")
        o.append(f"v_max_f32 v{TM}, v{MX}, v{TM+1}"); o.append(f"v_max_f32 v{MX}, v{MX}, v{TM+1}")
        o.append(f"v_permlane32_swap_b32 v{TM}, v{MX}")
        o.append(f"v_max_f32 v{MX}, v{MX}, v{TM}")
        o.append(f"v_mul_f32 v{MX}, s{SC+2}, v{MX}")
        def cv(T): return [f"v_cvt_pk_bf16_f32 v{self.q[T>>1] + (T&1)*2 + (r>>1)}, v{self.st[T]+r}, v{self.st[T]+r+1}" for r in (0, 2)]
        if self.pkf:
            for T in range(6):
                for r in (0, 2):
                    x = self.st[T] + r
                    o.append(f"v_pk_fma_f32 {V(x,2)}, {V(x,2)}, {S(SC,2)}, {V(MX,2)} op_sel_hi:[1,1,0]")
        for T in range(6):
            x = self.st[T]
            if not self.pkf:
                for r in range(4): o.append(f"v_fmamk_f32 v{x+r}, v{x+r}, {hex(f2u(SCALE))}, v{MX}")
            if T > 0: o += cv(T - 1)
            for r in range(4): o.append(f"v_exp_f32 v{x+r}, v{x+r}")
        return o + cv(5)
    def outs(self):
        o = [f"v_rcp_f32 v{self.lt}, v{self.lt}"]
        for sp in range(4):
            a, b = self.ot[2*sp], self.ot[2*sp+1]
            if self.pkm and sp % self.pkm == 0:
                for x in self.ot[2*sp:2*sp + 2*self.pkm]:
                    o += [f"v_pk_mul_f32 {V(x+r,2)}, {V(x+r,2)}, {V(self.lt,2)} op_sel_hi:[1,0]" for r in (0, 2)]
            if not self.pkm:
                o += [f"v_mul_f32 v{x+r}, v{self.lt}, v{x+r}" for x in (a, b) for r in range(4)]
            o += pack4(a, b)
            if self.st_o != "skip":
                o.append(f"buffer_store_dwordx4 {V(a,4)}, v{self.LO}, {S(SWS,4)}, s{SO+sp} offen offset:{self.u*1024} {self.st_o}")
        return o

WQRA, XRA, LO, VD, KA = 8, 16, 22, 23, 248
AF, BF, ACC, SP = 24, 88, 112, 208
def acc(t, u): return ACC + (t*3+u)*4
def mfmas(st, first, prs=None):
    prs = prs or [(t, u if t % 2 == 0 else 2 - u) for t in range(8) for u in range(3)]
    return [f"{MF} {V(acc(t,u),4)}, {V(AF + st*32 + t*4, 4)}, {V(BF + st*12 + u*4, 4)}, {'0' if first else V(acc(t,u),4)}" for t, u in prs]
def af(kk, t): return AF + kk*32 + t*4
def bf(c, kk, u): return (BF, SP)[c & 1] + kk*12 + u*4
def pair1(c, t, u, flip):
    o = []
    for i, kk in enumerate((1, 0) if flip else (0, 1)):
        d = V(acc(t, u), 4)
        o.append(f"{MF} {d}, {V(af(kk,t),4)}, {V(bf(c,kk,u),4)}, {'0' if c == 0 and i == 0 else d}")
    return o
def rda(c, t): return [f"ds_read_b64_tr_b16 {V(af(kk,t) + j*2, 2)}, v{WQRA+t} offset:{(c % 3)*16384 + kk*8192 + j*1024}" for kk in ((0, 1) if t % 2 == 0 else (1, 0)) for j in range(2)]
def rdb(c, u): return [f"ds_read_b128 {V(bf(c,kk,u), 4)}, v{XRA+kk} offset:{(c % 3)*24576 + u*2048}" for kk in ((0, 1) if u % 2 == 0 else (1, 0))]
def kf0(n): return SP + 4*n if n < 10 else AF + 4*(n - 10)
def kf1(n):
    if n < 6: return BF + 4*n
    if n < 10: return SP + 24 + 4*(n - 6)
    return af((n - 10) & 1, (n - 10) >> 1)
def k_reads(kf): return [f"ds_read_b64 {V(kf(T*4+s) + 2*u, 2)}, v{KA + 2*s + u} offset:{k_unit(T)}" for T in range(6) for s in range(4) for u in range(2)]
def v_reads(kf): return [f"ds_read_b64_tr_b16 {V(kf(t*3+s) + 2*j, 2)}, v{WQRA+t} offset:{(2*s+j)*4096}" for t in range(8) for s in range(3) for j in range(2)]

def attention_order(g, st_o):
    ONE = 16
    odd = [acc(t, u) for u in range(3) for t in (1, 3, 5, 7)]
    sts = [[80, 84, 88, 92, 96, 100], odd[:6], odd[6:]]
    xtra = [[104, 108], [KA, KA + 4], [acc(0, 0), acc(2, 0)]]
    ch = g("chain1"); kf = kf1 if ch else kf0; kr, vr = k_reads(kf), v_reads(kf)
    if ch:
        sts[0] = [bf(9, 0, 0), bf(9, 1, 0), bf(9, 0, 1), bf(9, 1, 1), af(0, 7), af(1, 7)]
        xtra[0] = [bf(9, 0, 2), bf(9, 1, 2)]
    pkf, pkm = g("pkf", (1, 1, 1)), g("pkm", (4, 4, 2))
    if not g("pk"): pkf = pkm = (0, 0, 0)
    T = [Tile(u, [acc(2*s, u) for s in range(4)], sts[u], sts[u] + xtra[u], kf, ONE, LO, st_o, pkf[u], pkm[u]) for u in range(3)]
    prog = mfmas(1, False, [(t if u != 1 else 7 - t, u) for u in range(3) for t in range(8)]) + kr[20:]; pre = []
    if ch:
        prog = rda(9, 7) + ["BAR 9"]
        pre = [(k, 4) for k in range(4)]
        prog += sum([pair1(9, t if u != 1 else 7 - t, u, t & 1) for u in range(3) for t in range(8)], [])
        pre += [(4, len(prog) + k) for k in range(len(kr))]
        prog += kr
    for u in range(3): prog += sum([pack4(acc(2*s, u), acc(2*s+1, u)) for s in range(4)], [])
    prog += [f"v_add_u32 v{WQRA+t}, v{VD}, v{WQRA+t}" for t in range(8)] + [f"v_mov_b32 v{ONE + r}, 0x3f803f80" for r in range(4)]
    prog += T[0].s() + T[0].softmax() + T[1].s() + T[2].s()
    ib = len(prog); prog.append("BAR V")
    extra = pre + [(ib, ib + 1 + k) for k in range(len(vr))]
    prog += vr
    for u in range(3):
        if u: prog += T[u].softmax()
        prog += T[u].pv() + T[u].outs()
    early = {ib: g("bv_t")}
    if g("bs_t"):
        prog.insert(ib + 1 + len(vr), "BAR S"); extra.append((ib, ib + 1 + len(vr))); early[ib + 1 + len(vr)] = g("bs_t")
    order, tm = schedule(prog, extra, early, verbose=g("verbose"), **g("sch", {}))
    if g("verbose"): print("model cycles", tm)
    return order

def spin(e, name, load, test, sleep=0):
    e(f"s_mov_b32 s92, {SPIN}")
    e.label(f"L_{name}")
    e(test)
    e("s_sub_u32 s92, s92, 1"); e(f"s_cbranch_scc1 L_{name}_ok")
    e("s_nop 1")
    e(f"s_cbranch_vccz L_{name}_ok")
    st = list(e.vm)
    if sleep: e(f"s_sleep {sleep}")
    e(load)
    e.wait_all(lgkm=False)
    e(f"s_branch L_{name}")
    e.label(f"L_{name}_ok")
    e.vm = st

def kernel(opt):
    opt = dict(DEFAULTS, **opt)
    e = E()
    g = opt.get
    e.merge_age = g("merge_age", 14)
    WO_SLOTS, O_SLOTS = g("rings", ([2, 6, 0, 1, 3, 4, 5], [7, 8, 9]))
    NW, NO, L_O = len(WO_SLOTS), len(O_SLOTS), min(O_SLOTS) * 16384
    FS, F2 = g("fs", 32), g("f2", 32); R1 = 8 * FS
    nt_kv = g("nt_kv")
    st_o, ld_o, st_p, ld_p, st_out = g("st_o"), g("ld_o"), g("st_p"), g("ld_p"), g("st_out")
    e("s_load_dwordx16 s[8:23], s[0:1], 0")
    e("s_load_dwordx8 s[24:31], s[0:1], 64")
    e(f"s_load_dwordx2 {S(SWS,2)}, s[0:1], 96")
    e("s_cmp_ge_u32 s2, 256"); e("s_cbranch_scc1 L_end")
    fs = Fine(e, opt)
    if g("fine"): e("s_memrealtime s[94:95]"); e("s_memtime s[98:99]")
    e("v_lshrrev_b32 v3, 6, v0"); e("v_and_b32 v0, 63, v0"); e("v_readfirstlane_b32 s36, v3")
    e("s_and_b32 s3, s2, 7"); e("s_lshr_b32 s4, s2, 3")
    e("s_lshr_b32 s5, s3, 2")
    e("s_and_b32 s38, s3, 3"); e("s_lshl_b32 s6, s38, 3"); e("s_and_b32 s39, s4, 7"); e("s_add_u32 s6, s6, s39")
    e("s_lshr_b32 s7, s4, 3")
    e("v_lshrrev_b32 v3, 4, v0"); e("v_and_b32 v4, 15, v0")
    e("s_and_b32 s37, s36, 3")
    e("s_lshl_b32 s72, s7, 2"); e("s_add_u32 s72, s72, s37")
    if g("jitter"):
        e("s_lshl_b32 s97, s2, 3"); e("s_add_u32 s97, s97, s36"); e(f"s_mul_i32 s97, s97, {2654435761 + 2*g('jseed', 0)}")
        e("s_bfe_u32 s99, s97, 0x30014"); e("s_cmp_lg_u32 s99, 0"); e("s_cbranch_scc1 L_j0")
        for _ in range(g("jstart", 2)): e("s_sleep 100")
        e.label("L_j0")
    e("s_cmp_lt_u32 s36, 4"); e("s_cbranch_scc1 L_loader")
    e("s_getpc_b64 s[34:35]")
    e.label("L_pc")
    e("s_lshl_b32 s73, s39, 2"); e("s_add_u32 s73, s73, s37"); e("s_lshl_b32 s73, s73, 10")
    e("v_and_b32 v5, 7, v0"); e("v_lshl_add_u32 v5, v5, 7, s73")
    e("v_min_u32 v5, L_end-L_pc, v5")
    e("global_load_dword v2, v5, s[34:35]", tag="code")
    e("s_branch L_compute")
    st0 = (list(e.vm), e.smem_pending)
    if g("jitter"):
        jn = [0]
        def jit():
            jn[0] += 1; k = jn[0]
            e("s_cselect_b32 s98, 1, 0")
            e(f"s_mul_i32 s97, s97, 1103515245"); e(f"s_add_u32 s97, s97, {12345 + k}"); e(f"s_bfe_u32 s99, s97, {(g('jitter') << 16) | 16}")
            e("s_cmp_lg_u32 s99, 0"); e(f"s_cbranch_scc1 L_j{k}"); e(f"s_sleep {g('jsleep', 20)}"); e.label(f"L_j{k}")
            e("s_cmp_lg_u32 s98, 0")
        e.jitter = jit
    def stamp0():
        if g("fine"):
            e("v_writelane_b32 v1, s94, 0"); e("v_writelane_b32 v1, s98, 32"); fs.n = 1
    def ws_ids():
        e(f"s_mov_b32 s{SWS+2}, {WS_BYTES}"); e(f"s_mov_b32 s{SWS+3}, 0x20000")
        e("s_lshl_b32 s32, s5, 5"); e("s_add_u32 s32, s32, s4"); e("s_lshl_b32 s32, s32, 2"); e("s_add_u32 s32, s32, s37"); e("s_lshl_b32 s32, s32, 2")
        e("s_lshl_b32 s33, s32, 2"); e("s_add_u32 s33, s33, s38"); e(f"s_mul_i32 s33, s33, {F2}"); e(f"s_add_u32 s33, s33, {WS_F2}")
    def tile_ids():
        e("s_mul_i32 s73, s4, 52"); e("s_lshr_b32 s73, s73, 8")
        e("s_mul_i32 s74, s73, 5"); e("s_sub_u32 s74, s4, s74")
    def tr_addr(dst, n, rowshift, xor=None):
        e("v_bfe_u32 v5, v0, 2, 2"); e("v_and_b32 v6, 1, v3"); e("v_lshl_or_b32 v6, v6, 2, v5")
        if xor: e(f"v_xor_b32 v6, {xor}, v6")
        e(f"v_lshl_add_u32 v5, v3, {rowshift}, v5"); e("v_lshlrev_b32 v5, 8, v5")
        e("v_and_b32 v7, 3, v0"); e("v_lshl_add_u32 v5, v7, 3, v5")
        for t in range(n):
            e(f"v_xor_b32 v7, {t}, v6"); e(f"v_lshl_add_u32 v{dst+t}, v7, 5, v5")

    e.label("L_loader")
    e.vm = []
    if g("lprio"): e(f"s_setprio {g('lprio')}")
    WQVO, XVO, KVO, ZR, CL, VVO, WVO, KS = 8, 12, 18, 20, 21, 23, 25, 32
    e("s_lshl_b32 s75, s37, 4")
    e("v_add_u32 v5, s75, v3"); e("v_lshlrev_b32 v5, 13, v5")
    e("v_lshlrev_b32 v6, 1, v3"); e("v_xor_b32 v6, v6, v4"); e(f"v_lshl_add_u32 v{WQVO}, v6, 4, v5")
    e(f"v_add_u32 v{WQVO+1}, {4*8192 - 1024}, v{WQVO}"); e(f"v_xor_b32 v6, 128, v{WQVO}")
    e(f"v_add_u32 v{WQVO+2}, {8*8192 - 2048}, v6"); e(f"v_add_u32 v{WQVO+3}, {12*8192 - 3072}, v6")
    e("v_lshrrev_b32 v5, 3, v0"); e("v_and_b32 v6, 7, v0"); e("v_xor_b32 v6, v6, v3")
    e("v_mul_u32_u24 v5, 1280, v5"); e(f"v_lshl_add_u32 v{XVO}, v6, 4, v5"); e(f"v_xor_b32 v6, 64, v{XVO}")
    for m in range(1, 6):
        e(f"v_add_u32 v{XVO+m}, {8*m*1280 - (m % 3)*1024}, v{6 if m & 1 else XVO}")
    e(f"s_mul_i32 s76, s72, {48*1280}")
    e("s_lshl_b32 s77, s6, 8")
    e("s_lshl_b32 s78, s37, 12")
    e("s_mul_i32 s79, s37, 6144"); e(f"s_add_u32 s79, s79, {L_X}")
    e("s_sub_u32 s100, s7, s39"); e("s_bfe_u32 s92, s100, 0x10001"); e("s_and_b32 s100, s100, 3")
    o2 = g("orders")[2]
    e(f"s_mul_i32 s93, s92, {o2[0]}")
    for r, sz in ((SW, W_BYTES), (SX, X_BYTES)):
        e(f"s_mov_b32 s{r+2}, {sz}"); e(f"s_mov_b32 s{r+3}, 0x20000")
    def chunk(mid=None):
        e("s_mov_b32 m0, s84")
        e("s_mov_b32 s86, s93" if mid else "s_and_b32 s86, s68, 15")
        fill = [["s_lshl_b32 s83, s86, 7", "s_add_u32 s83, s83, s76"], ["s_mul_i32 s85, s81, 24576", "s_add_u32 s85, s85, s79"],
                ["s_add_u32 s80, s80, 1", "s_add_u32 s81, s81, 1", "s_cmp_eq_u32 s81, 3", "s_cselect_b32 s81, 0, s81"], ["s_mov_b32 m0, s85"] + ([f"s_mul_i32 s86, s92, {o2[1] - 1}", "s_add_u32 s86, s86, 1"] if mid else ["s_lshr_b64 s[68:69], s[68:69], 4", "s_and_b32 s86, s68, 15"])]
        for k in range(4):
            e(f"buffer_load_dwordx4 v{WQVO+k}, {S(SW,4)}, s82 offen offset:{k*1024} {g('nt_w', '')} lds", tag="c")
            put(e, fill[k])
        fill = [["s_lshl_b32 s82, s86, 19", "s_add_u32 s82, s82, s77"], ["s_lshl_b32 s84, s81, 14"], ["s_add_u32 m0, s85, 3072", "s_add_u32 s84, s84, s78"], [], [], []]
        for m in range(6):
            e(f"buffer_load_dwordx4 v{XVO+m}, {S(SX,4)}, s83 offen offset:{(m%3)*1024} {g('nt_x', '')} lds", tag="c")
            put(e, fill[m])
            if mid and m == 2: mid()
    e("s_mov_b32 s80, 0"); e("s_mov_b32 s81, 0")
    e("s_lshl_b32 s82, s93, 19"); e("s_add_u32 s82, s82, s77"); e("s_mov_b32 s84, s78")
    e.wait_lgkm(0)
    e("s_cmp_eq_u32 s5, 0")
    e(f"s_cselect_b64 {S(SW,2)}, s[14:15], s[24:25]"); e(f"s_cselect_b64 {S(SX,2)}, s[8:9], s[18:19]")
    def clears():
        ws_ids()
        e(f"s_mul_i32 s35, s3, {4*R1}"); e(f"s_add_u32 s35, s35, {WS_F1}")
        e(f"s_mul_i32 s96, s4, {FS}"); e("s_add_u32 s96, s96, s35")
        e(f"v_mul_u32_u24 v{CL}, {4*F2}, v0"); e(f"v_add_u32 v{CL}, s33, v{CL}"); e(f"v_writelane_b32 v{CL}, s96, 4"); e(f"v_mov_b32 v{ZR}, 0")
        e("s_cmp_eq_u32 s37, 0"); e("s_cselect_b32 s70, 31, 15"); e("s_mov_b32 s71, 0")
        e("s_mov_b64 exec, s[70:71]")
        e(f"buffer_store_dword v{ZR}, v{CL}, {S(SWS,4)}, 0 offen sc1")
        e("s_mov_b64 exec, -1")
    chunk(clears)
    stamp0(); fs()
    e("s_cmp_eq_u32 s5, 0")
    e(f"s_cselect_b64 {S(SK,2)}, s[10:11], s[20:21]"); e(f"s_cselect_b64 {S(SV,2)}, s[12:13], s[22:23]"); e(f"s_cselect_b64 {S(SWO,2)}, s[16:17], s[26:27]")
    for r, sz in ((SK, KV_BYTES), (SV, KV_BYTES), (SWO, W_BYTES)):
        e(f"s_mov_b32 s{r+2}, {sz}"); e(f"s_mov_b32 s{r+3}, 0x20000")
    srd(e, SDBG, 30, 256)
    tile_ids()
    e(f"v_lshlrev_b32 v{LO}, 4, v0")
    e("s_lshr_b32 s8, s72, 1"); e("s_lshl_b32 s8, s8, 5"); e("s_add_u32 s8, s8, s6"); e("s_mul_i32 s8, s8, 24576")
    e("s_and_b32 s10, s37, 1"); e("s_lshl_b32 s86, s10, 11"); e("s_add_u32 s8, s8, s86")
    e("v_xor_b32 v5, v3, v4"); e("v_lshlrev_b32 v5, 4, v5"); e("v_lshl_add_u32 v5, v3, 8, v5")
    e("s_lshl_b32 s86, s10, 7"); e(f"v_xor_b32 v{KVO}, s86, v5"); e(f"v_xor_b32 v{KVO+1}, 64, v{KVO}")
    e("s_lshl_b32 s9, s37, 11"); e(f"s_add_u32 s9, s9, {L_K}")
    e("s_lshl_b32 s87, s7, 6"); e("s_add_u32 s87, s87, s6"); e("s_mul_i32 s87, s87, 24576"); e("s_mul_i32 s86, s37, 6144"); e("s_add_u32 s87, s87, s86")
    e("v_lshlrev_b32 v5, 1, v3"); e("v_xor_b32 v5, v5, v4"); e("v_lshlrev_b32 v5, 4, v5"); e(f"v_lshl_add_u32 v{VVO}, v3, 8, v5")
    e(f"v_xor_b32 v{VVO+1}, 128, v{VVO}")
    orders = g("orders")
    for i, o in enumerate(orders): assert sorted(o) == list(range(10)) and o[:2] == ([0, 1], o2[:2])[i >> 1]
    pko = [sum(c << (4*i) for i, c in enumerate(o[1:])) for o in orders]
    e(f"s_mov_b32 s68, {pko[0] & 0xffffffff}"); e(f"s_mov_b32 s69, {pko[0] >> 32}")
    for i in range(1, 4):
        if pko[i] != pko[0]:
            e(f"s_cmp_eq_u32 s100, {i}"); e(f"s_cselect_b32 s68, {pko[i] & 0xffffffff}, s68"); e(f"s_cselect_b32 s69, {pko[i] >> 32}, s69")
    wt = g("wt")
    if wt:
        tab = sum(c << (4*i) for i, c in enumerate(wt)); nl = 5 * len(wt)
        e(f"v_min_u32 v46, {nl - 1}, v0"); e("v_mul_u32_u24 v5, 52, v46"); e("v_lshrrev_b32 v5, 8, v5")
        e("v_mul_u32_u24 v7, 5, v5"); e("v_sub_u32 v46, v46, v7"); e("v_lshlrev_b32 v46, 7, v46"); e("v_lshlrev_b32 v5, 2, v5")
        e(f"s_mov_b32 s22, {tab & 0xffffffff}"); e(f"s_mov_b32 s23, {tab >> 32}"); e("v_lshrrev_b64 v[48:49], v5, s[22:23]"); e("v_and_b32 v48, 15, v48")
        e("v_mul_u32_u24 v48, 81920, v48"); e("v_add_u32 v46, v46, v48")
        e("s_lshl_b32 s22, s4, 2"); e("s_add_u32 s22, s22, s37"); e("s_mul_i32 s22, s22, 640"); e(f"s_mul_i32 s86, s38, {1024*1280}"); e("s_add_u32 s22, s22, s86")
    kcls = g("kcls")
    assert max(kcls) <= 5
    pk = sum((kc + 3) << (4*i) for i, kc in enumerate(kcls))
    e("s_lshl_b32 s86, s100, 2"); e(f"s_lshr_b32 s11, {pk}, s86"); e("s_and_b32 s11, s11, 15")
    e("v_mov_b32 v6, 1"); e("s_lshl_b32 s12, s3, 5")
    e("s_branch L_chunk")
    e.label("L_next")
    e._wait(vm=10)
    e.barrier()
    e.label("L_chunk")
    e.vm = []
    chunk()
    e("s_cmp_eq_u32 s80, s11"); e("s_cbranch_scc1 L_kburst")
    e("s_cmp_lt_u32 s80, 10"); e("s_cbranch_scc1 L_next")
    e._wait(vm=10)
    e.barrier()
    e.vm = [("c", set())] * 10
    def v_dma(i, lo, hi):
        for n in range(lo, hi):
            if n == lo or n % 4 == 0:
                e(f"s_add_u32 m0, s79, {24576*(1+i) + (n>>2)*4096}")
                e(f"s_add_u32 s86, s87, {i*32*24576 + (n>>2)*4096}")
            e(f"buffer_load_dwordx4 v{VVO + (n&1)}, {S(SV,4)}, s86 offen offset:{(n&3)*1024} {nt_kv} lds", tag="v")
    v_dma(0, 0, 6)
    e("s_getpc_b64 s[20:21]")
    e.label("L_pc2")
    e("s_lshl_b32 s86, s39, 2"); e("s_add_u32 s86, s86, s37"); e("s_lshl_b32 s86, s86, 10")
    e("v_and_b32 v44, 7, v0"); e("v_lshl_add_u32 v44, v44, 7, s86"); e("v_min_u32 v44, L_end-L_pc2, v44")
    def retouch(where):
        if where in g("rt"): e("global_load_dword v45, v44, s[20:21]", tag="code"); e.vm[-1] = ("code", set())
        tl = g("tlb", {}).get(where, "")
        if "o" in tl:
            e("s_lshl_b32 s86, s5, 5"); e("s_add_u32 s86, s86, s6"); e("s_mul_i32 s86, s86, 192"); e("s_mul_i32 s13, s72, 3"); e("s_add_u32 s86, s86, s13"); e("s_lshl_b32 s86, s86, 10")
            e(f"buffer_load_dword v45, v{ZR}, {S(SWS,4)}, s86 offen sc1", tag="code"); e.vm[-1] = ("code", set())
        if "p" in tl:
            e("s_add_u32 s86, s32, s38"); e("s_lshl_b32 s86, s86, 2"); e("s_add_u32 s86, s86, s38"); e("s_lshl_b32 s86, s86, 11"); e(f"s_add_u32 s86, s86, {WS_P}")
            e(f"buffer_load_dword v45, v{ZR}, {S(SWS,4)}, s86 offen sc1", tag="code"); e.vm[-1] = ("code", set())
        if "u" in tl:
            srd(e, SX, 28, OUT_BYTES)
            e("s_min_u32 s86, s73, 5"); e("s_lshl_b32 s86, s86, 3"); e("s_add_u32 s86, s86, s38"); e(f"s_mul_i32 s86, s86, {16*2560}"); e("s_mul_i32 s13, s5, 1280"); e("s_add_u32 s86, s86, s13")
            e("s_lshl_b32 s13, s74, 8"); e("s_add_u32 s86, s86, s13")
            e(f"buffer_load_dword v45, v{ZR}, {S(SX,4)}, s86 offen sc1", tag="code"); e.vm[-1] = ("code", set())
    retouch("7")
    e(f"v_add_u32 v5, s9, v{LO}")
    for n in range(2): e(f"ds_write_b128 v5, {V(KS + 4*n, 4)} offset:{k_unit(5) + n*1024}")
    e("v_add_u32 v5, s75, v3"); e("v_mul_u32_u24 v5, 1280, v5")
    for k in range(4):
        e(f"v_or_b32 v7, {(k & 1) << 2}, v3"); e("v_lshlrev_b32 v7, 1, v7"); e("v_xor_b32 v7, v7, v4")
        e(f"v_lshl_add_u32 v7, v7, 4, v5")
        e(f"v_add_u32 v{WVO+k}, {4*k*1280 - k*1024}, v7")
    e.wait_vm_tag("c", lgkm=0); e.barrier()
    nv = g("nv", 0); v8 = min(g("v8", 4), 6 - nv)
    v_dma(1, 0, v8)
    if nv:
        e(f"v_add_u32 v5, s79, v{LO}")
        for n in range(6 - nv, 6): e(f"ds_write_b128 v5, {V(64 + 4*n, 4)} offset:{2*24576 + n*1024}")
    e(f"s_mul_i32 s88, s38, {1024*1280}"); e("s_lshl_b32 s86, s74, 8"); e("s_add_u32 s88, s88, s86")
    e(f"s_mul_i32 s89, s3, {32*49152}"); e("s_lshl_b32 s86, s73, 13"); e("s_add_u32 s89, s89, s86")
    e("s_lshr_b32 s86, s37, 1"); e("s_mul_i32 s86, s86, 49152"); e("s_add_u32 s89, s89, s86")
    e("s_lshl_b32 s86, s10, 12"); e("s_add_u32 s89, s89, s86")
    e("s_mul_i32 s90, s73, 171"); e("s_bfe_u32 s90, s90, 0x40006")
    if g("rotn"):
        e(f"s_and_b32 s91, s74, {g('rotn')[0]}"); e(f"s_mul_i32 s91, s91, {g('rotn')[1]}"); e("s_add_u32 s90, s90, s91"); e("s_and_b32 s90, s90, 15")
    e("s_mov_b32 s91, s90")
    wtab = sum(WO_SLOTS[c % NW] << (4*c) for c in range(16)); otab = sum(O_SLOTS[c % NO] << (4*c) for c in range(16))
    e(f"s_mov_b32 s14, {wtab & 0xffffffff}"); e(f"s_mov_b32 s15, {wtab >> 32}")
    e(f"s_mov_b32 s16, {otab & 0xffffffff}"); e(f"s_mov_b32 s17, {otab >> 32}")
    e("v_and_b32 v30, 7, v0"); e("v_lshlrev_b32 v30, 5, v30")
    e.barrier()
    fs()
    v_dma(1, v8, 6 - nv)
    cnt = f"buffer_load_dword v7, v30, {S(SDBG,4)}, 0 offen sc1"
    e(cnt)
    wn = [0]; on = [0]
    def w_pre():
        e("s_and_b32 s84, s14, 15"); e("s_lshr_b64 s[14:15], s[14:15], 4"); e("s_lshl_b32 s84, s84, 14"); e("s_add_u32 s84, s84, s78")
        e(f"s_mul_i32 s82, s90, {64*1280}"); e("s_add_u32 s82, s82, s88"); e("s_add_u32 s90, s90, 1"); e("s_and_b32 s90, s90, 15")
    wk = [0]; wready = [False]
    def w_prep():
        if wk[0] == 0 and not wready[0] and wn[0] < 16: w_pre(); wready[0] = True
    def w_piece(fresh):
        w_prep()
        if fresh or wk[0] == 0: e("s_mov_b32 m0, s84")
        e(f"buffer_load_dwordx4 v{WVO+wk[0]}, {S(SWO,4)}, s82 offen offset:{wk[0]*1024} lds", tag=f"w{wn[0]}")
        wk[0] += 1
        if wk[0] == 4: wk[0] = 0; wn[0] += 1; wready[0] = False
    def w_run(n):
        for i in range(n): w_piece(i == 0)
    wp = g("wp")
    def o_pre():
        e("s_and_b32 s85, s16, 15"); e("s_lshr_b64 s[16:17], s[16:17], 4"); e("s_lshl_b32 s85, s85, 14"); e("s_add_u32 s85, s85, s78")
        e(f"s_mul_i32 s83, s91, {2*49152}"); e("s_add_u32 s83, s83, s89"); e("s_add_u32 s91, s91, 1"); e("s_and_b32 s91, s91, 15")
    def o_go():
        e("s_mov_b32 m0, s85")
        for k in range(4):
            e(f"buffer_load_dwordx4 v{LO}, {S(SWS,4)}, s83 offen offset:{k*1024} {ld_o} lds", tag=f"o{on[0]}")
        on[0] += 1
    retouch("9")
    w_run(wp[0])
    spin(e, "cnt", cnt, "v_cmp_gt_u32 vcc, 32, v7")
    assert not any(t == "v" for t, _ in e.vm)
    e.wait_lgkm(0)
    fs(); e.barrier()
    w_run(wp[1])
    assert all(x in (0, 2, 6) for x in WO_SLOTS[:wn[0] + (wk[0] > 0)])
    e("s_lshl_b32 s86, s73, 3"); e("s_mul_i32 s87, s86, 43"); e("s_lshr_b32 s87, s87, 9")
    e("s_add_u32 s86, s86, 7"); e("s_mul_i32 s86, s86, 43"); e("s_lshr_b32 s86, s86, 9")
    e("v_bfe_u32 v5, v0, 3, 1"); e("v_add_u32 v5, s87, v5"); e("v_min_u32 v5, s86, v5")
    e("v_and_b32 v7, 7, v0"); e("v_lshl_add_u32 v5, v5, 3, v7"); e(f"v_mul_u32_u24 v29, {FS}, v5")
    e("v_cmp_ne_u32 s[24:25], s4, v5"); e("s_and_b64 s[24:25], s[24:25], 0xffff")
    e("v_mov_b32 v7, 0"); e("v_mov_b32 v2, 0")
    w_prep(); o_pre()
    if wp[2]:
        e.barrier()
        retouch("S")
        w_run(wp[2]); w_prep()
    fs()
    e("s_cmp_lg_u32 s37, 0")
    e.barrier()
    e("s_cbranch_scc1 L_noflag")
    e("s_mov_b64 exec, 1")
    e(f"buffer_store_dword v6, v{ZR}, {S(SWS,4)}, s96 offen sc1", tag="flag")
    e("s_mov_b64 exec, -1")
    e.label("L_noflag")
    e("s_cmp_ge_u32 s4, 30"); e("s_cbranch_scc1 L_ldone")
    poll = f"buffer_load_dword v7, v29, {S(SWS,4)}, s35 offen sc1"
    retouch("A")
    w_run(wp[3])
    e("s_cmp_lg_u32 s37, 0"); e("s_cbranch_scc1 L_nopoll")
    e("s_mov_b64 exec, s[24:25]")
    two = len(wp) > 5
    e(poll.replace("v7,", "v2,") if two else poll, tag="poll")
    e("s_mov_b64 exec, -1")
    e.label("L_nopoll")
    w_run(wp[4])
    if two:
        e("s_cmp_lg_u32 s37, 0"); e("s_cbranch_scc1 L_nopoll2")
        e("s_mov_b64 exec, s[24:25]")
        e(poll, tag="poll")
        e("s_mov_b64 exec, -1")
        e.label("L_nopoll2")
        w_run(wp[5])
    w_prep()
    full = [(t, set()) for t, _ in e.vm]
    e("s_cmp_lg_u32 s37, 0"); e("s_cbranch_scc1 L_seen")
    e("s_mov_b64 exec, s[24:25]")
    if two:
        e("v_cmp_ne_u32 vcc, 1, v2"); e("s_nop 3"); e("s_cbranch_vccz L_f1_ok")
    spin(e, "f1", poll, "v_cmp_ne_u32 vcc, 1, v7")
    e("s_mov_b64 exec, -1")
    e.label("L_seen")
    e.vm = full
    fs(); e.barrier()
    fs()
    assert wn[0] >= 3
    for _ in range(g("o0", 2)): o_go(); o_pre()
    for i in range(g("bf", 0)): w_piece(i == 0)
    e.wait_vm_tag(["o0", "w0"]); e.barrier()
    while on[0] < NO: o_go(); o_pre()
    for i in range(g("b2", 0)): w_piece(i == 0)
    assert wn[0] + (wk[0] > 0) <= NW
    rate = (64 - 4*wn[0] - wk[0]) / 13.0 + g("wbias", 0); credit = g("credit0", 0.5)
    for c in range(15):
        e.wait_vm_tag([f"o{c+1}", f"w{c+1}"]); e.barrier()
        if on[0] < 16:
            o_go()
            if on[0] < 16: o_pre()
        retouch(f"p{c}")
        credit += rate
        fresh = True
        while wn[0] < 16 and (credit >= 1 or wn[0] <= c + 3) and wn[0] <= c + NW:
            w_piece(fresh); fresh = False; credit -= 1
        if g("verbose"): print("period", c, on[0], wn[0], wk[0])
    assert on[0] == 16 and wn[0] == 16
    e.label("L_ldone")
    fs.out(SWS, 1)
    e("s_endpgm")
    e.label("L_kburst")
    e._wait(vm=10)
    e.barrier()
    e.vm = []
    for n in range(12):
        if n >= 10:
            e(f"buffer_load_dwordx4 {V(KS + 4*(n-10), 4)}, v{KVO + (n&1)}, {S(SK,4)}, s8 offen offset:{(n&1)*1024} {nt_kv}")
            continue
        if n & 1 == 0: e(f"s_add_u32 m0, s9, {k_unit(n >> 1)}")
        e(f"buffer_load_dwordx4 v{KVO + (n&1)}, {S(SK,4)}, s8 offen offset:{(n&1)*1024} {nt_kv} lds")
        if n & 1: e("s_add_u32 s8, s8, 4096")
        if n == 1:
            e("s_cmp_lg_u32 s37, 0"); e("s_cbranch_scc1 L_noinc")
            e("s_mov_b64 exec, 1")
            e(f"buffer_atomic_add v6, v{ZR}, {S(SDBG,4)}, s12 offen sc1")
            e("s_mov_b64 exec, -1")
            e.label("L_noinc")
    e("s_mov_b32 s11, 0")
    e("s_cmp_lg_u32 s37, 0"); e("s_cbranch_scc1 L_kw")
    e._wait(vm=13); e("s_branch L_kb")
    e.label("L_kw")
    e._wait(vm=12)
    e.label("L_kb")
    e.barrier()
    e.vm = []
    for n in range(6 - nv, 6):
        e(f"s_add_u32 s86, s87, {32*24576 + (n>>2)*4096}")
        e(f"buffer_load_dwordx4 {V(64 + 4*n, 4)}, v{VVO + (n&1)}, {S(SV,4)}, s86 offen offset:{(n&3)*1024} {nt_kv}")
    if wt: e(f"buffer_load_dword v47, v46, {S(SWO,4)}, s22 offen")
    chunk()
    e("s_branch L_chunk")

    e.label("L_compute")
    e.vm, e.smem_pending = list(st0[0]), st0[1]
    e.lgkm = []
    if g("cprio"): e(f"s_setprio {g('cprio')}")
    tile_ids(); ws_ids()
    e(f"s_mov_b32 s{SC}, {f2u(SCALE)}"); e(f"s_mov_b32 s{SC+1}, s{SC}"); e(f"s_mov_b32 s{SC+2}, {f2u(-SCALE)}")
    e(f"s_lshl_b32 s{SO}, s5, 5"); e(f"s_add_u32 s{SO}, s{SO}, s6"); e(f"s_mul_i32 s{SO}, s{SO}, 192")
    e(f"s_mul_i32 s{SO+1}, s72, 3"); e(f"s_add_u32 s{SO}, s{SO}, s{SO+1}"); e(f"s_lshl_b32 s{SO}, s{SO}, 10")
    for sp in range(1, 4): e(f"s_add_u32 s{SO+sp}, s{SO}, {sp*48*1024}")
    tr_addr(WQRA, 8, 3)
    e(f"s_mul_i32 s75, s37, 6144"); e(f"s_add_u32 s75, s75, {L_X}")
    e("v_lshrrev_b32 v5, 1, v4"); e("v_xor_b32 v5, v5, v3"); e("v_lshlrev_b32 v5, 4, v5")
    e("v_lshl_add_u32 v5, v4, 7, v5"); e(f"v_add_u32 v{XRA}, s75, v5"); e(f"v_xor_b32 v5, 64, v5"); e(f"v_add_u32 v{XRA+1}, s75, v5")
    e("s_lshr_b32 s76, s37, 1")
    e("v_lshrrev_b32 v5, 1, v3"); e("v_xor_b32 v5, v5, v4"); e("v_lshlrev_b32 v5, 4, v5"); e("v_lshl_add_u32 v5, v4, 8, v5")
    e("v_and_b32 v6, 1, v3"); e("v_lshl_add_u32 v5, v6, 3, v5")
    e("s_lshl_b32 s86, s76, 12"); e(f"s_add_u32 s86, s86, {L_K}"); e(f"v_add_u32 v{KA}, s86, v5")
    for x in range(1, 8): e(f"v_xor_b32 v{KA + x}, {x << 5}, v{KA}")
    e("s_mul_i32 s77, s76, 24576"); e(f"s_add_u32 s77, s77, {L_V}")
    e("v_lshlrev_b32 v5, 10, v3"); e(f"v_sub_u32 v{VD}, s77, v5")
    e(f"v_lshlrev_b32 v{LO}, 4, v0")
    e.wait_lgkm(0)
    stamp0()
    srd(e, SOUT, 28, OUT_BYTES)
    e("s_lshl_b32 s13, s32, 13"); e(f"s_add_u32 s13, s13, {WS_P}")
    e("s_lshl_b32 s86, s38, 11"); e("s_add_u32 s86, s86, s13"); e("s_lshl_b32 s87, s38, 13"); e("s_add_u32 s87, s87, s13")
    e("s_lshl_b32 s12, s76, 12"); e(f"s_add_u32 s12, s12, {L_O}")
    for u in range(4):
        e(f"s_add_u32 s11, s38, {u + 1}"); e("s_and_b32 s11, s11, 3")
        if u < 3:
            e(f"s_lshl_b32 s{14+u}, s11, 13"); e(f"s_add_u32 s{14+u}, s{14+u}, s86")
            e(f"s_lshl_b32 s{17+u}, s11, 11"); e(f"s_add_u32 s{17+u}, s{17+u}, s87")
        e(f"s_lshl_b32 s{24+u}, s11, 10"); e(f"s_add_u32 s{24+u}, s{24+u}, s12")
    e("s_add_u32 s11, s32, s38"); e(f"s_mul_i32 s11, s11, {4*F2}"); e(f"s_add_u32 s11, s11, {WS_F2}")
    e("s_lshl_b32 s20, 1, s38"); e("s_xor_b32 s20, s20, 15"); e("s_mov_b32 s21, 0")
    e("s_lshl_b32 s88, s73, 3"); e("s_lshl_b32 s89, s76, 2"); e("s_add_u32 s88, s88, s89"); e("s_add_u32 s88, s88, s38")
    e(f"s_mul_i32 s88, s88, {16*2560}"); e("s_mul_i32 s89, s5, 1280"); e("s_add_u32 s88, s88, s89")
    e("s_lshl_b32 s89, s74, 8"); e("s_add_u32 s88, s88, s89"); e("s_and_b32 s89, s37, 1"); e("s_lshl_b32 s22, s89, 2"); e("s_lshl_b32 s89, s89, 7"); e("s_add_u32 s88, s88, s89")
    e("v_mul_u32_u24 v21, 2560, v4"); e("v_lshl_add_u32 v21, v3, 3, v21")
    e(f"v_mul_u32_u24 v20, {F2}, v0")
    fs()
    e.barrier()
    fs()
    def reads(c, kk, st):
        slot = c % 3
        rb = [f"ds_read_b128 {V(BF + st*12 + u*4, 4)}, v{XRA+kk} offset:{slot*24576 + u*2048}" for u in range(3)]
        ra = [f"ds_read_b64_tr_b16 {V(AF + st*32 + t*4 + j*2, 2)}, v{WQRA+t} offset:{slot*16384 + kk*8192 + j*1024}" for t in range(8) for j in range(2)]
        return ra[:2] + rb + ra[2:]
    kr = k_reads(kf0)
    if not g("chain1"): put(e, reads(0, 0, 0))
    def half0(c): interleave(e, mfmas(0, c == 0), reads(c, 1, 1) + {8: kr[5:10], 9: kr[15:20]}.get(c, []), per=1)
    def half1(c): interleave(e, mfmas(1, False), reads(c + 1, 0, 0) + {7: kr[:5], 8: kr[10:15]}.get(c, []), per=1)
    def bar(c): e.wait_lgkm(5 if c >= 8 else 0); e.barrier()
    if g("chain1"):
        r0 = rda(0, 0)[:2] + rdb(0, 0)[:1] + rda(0, 0)[2:] + rdb(0, 0)[1:] + rdb(0, 1) + rdb(0, 2) + sum([rda(0, t) for t in range(1, 8)], [])
        put(e, r0[:14])
        NB = g("nb1", 10)
        for c in range(9):
            m = []
            for t in range(8):
                for i in range(3): m += pair1(c, t, i if t % 2 == 0 else 2 - i, (t*3 + i) & 1)
            nb = 20 if c == 0 else NB
            interleave(e, m[:nb], r0[14:] if c == 0 else rda(c, 7), per=2 if c == 0 else 1)
            e.wait_lgkm(0); e.barrier()
            if c == 4: fs()
            qa = [(6*t + 5, x) for t in range(7) for x in rda(c + 1, t)]; qb = rdb(c + 1, 0) + rdb(c + 1, 1) + rdb(c + 1, 2)
            for i in range(nb, 48):
                e(m[i])
                for _ in range(2 if len(qa) + len(qb) > 47 - i else 1):
                    if qa and qa[0][0] <= i: e(qa.pop(0)[1])
                    elif qb: e(qb.pop(0))
            assert not qa and not qb
    elif g("cloop", 1) and not g("fine"):
        half0(0); bar(0)
        e("s_mov_b32 s83, 2")
        e.label("L_q")
        for c in range(3): half1(c); half0(c + 1); bar(c + 1)
        e("s_sub_u32 s83, s83, 1"); e("s_cmp_lg_u32 s83, 0"); e("s_cbranch_scc1 L_q")
        for c in range(6, 9): half1(c); half0(c + 1); bar(c + 1)
    else:
        for c in range(10):
            half0(c); bar(c)
            if c in (4, 9) or g("fine") == 2: fs()
            if c < 9: half1(c)
    order = attention_order(g, st_o)
    for x in order:
        if x == "BAR V":
            fs(); e.barrier(); fs()
        elif x == "BAR S": e.barrier()
        elif x == "BAR 9":
            e.wait_lgkm(0); e.barrier(); fs()
        else: e(x)
    fs()
    if wp[2] and not g("bs_t"): e.barrier()
    RA, RA2, ORA = 8, 12, 16
    tr_addr(RA, 4, 2, xor="s22")
    for t in range(4): e(f"v_add_u32 v{RA2+t}, 0x10000, v{RA+t}")
    for u in range(4): e(f"v_add_u32 v{ORA+u}, s{24+u}, v{LO}")
    e("v_lshlrev_b32 v23, 2, v20"); e("v_mov_b32 v6, 1")
    e.wait_all()
    fs()
    e("s_cmp_ge_u32 s4, 30")
    e.barrier()
    e("s_cbranch_scc1 L_cdone")
    e.barrier()
    if g("chain2", 1):
        F2R, AC2 = 24, 152
        def af2(c, kk, t): return F2R + (c & 1)*64 + kk*16 + t*4
        def bf2(c, kk, u): return F2R + (c & 1)*64 + 32 + kk*16 + u*4
        def ac2(t, u): return AC2 + (t*4+u)*4
        def reads2(c):
            slot = WO_SLOTS[c % NW]
            base = RA if slot < 4 else RA2
            ra = lambda t, kk: [f"ds_read_b64_tr_b16 {V(af2(c,kk,t) + j*2, 2)}, v{base+t} offset:{(slot & 3)*16384 + kk*8192 + j*4096}" for j in range(2)]
            rb = lambda u, kk: [f"ds_read_b128 {V(bf2(c,kk,u), 4)}, v{ORA+u} offset:{O_SLOTS[c % NO]*16384 - L_O + kk*8192}"]
            if c == 15:
                return rb(0, 0) + ra(0, 0) + rb(0, 1) + ra(0, 1) + sum([ra(t, kk) for t in range(1, 4) for kk in range(2)], []) + sum([rb(u, kk) for u in range(1, 4) for kk in range(2)], [])
            return ra(0, 0) + rb(0, 0) + ra(0, 1) + rb(0, 1) + sum([rb(u, kk) for u in range(1, 4) for kk in ((1, 0) if u & 1 else (0, 1))], []) + sum([ra(t, kk) for t in range(1, 4) for kk in range(2)], [])
        def pair(c, t, u, flip):
            o = []
            for i, kk in enumerate((1, 0) if flip else (0, 1)):
                d = V(ac2(t, u), 4)
                o.append(f"{MF} {d}, {V(af2(c,kk,t),4)}, {V(bf2(c,kk,u),4)}, {'0' if c == 0 and i == 0 else d}")
            return o
        e.barrier()
        fs()
        r0 = reads2(0)
        put(e, r0[:12])
        d2 = g("d2", 0)
        for c in range(15):
            m = sum([pair(c, t, u if t % 2 == 0 else 3 - u, u & 1) for t in range(4) for u in range(4)], [])
            if c == 14 and d2:
                m = sum([pair(c, t, u if t % 2 == 0 else 2 - u, (3*t + u) & 1) for t in range(4) for u in range(3)], [])
                e.barrier()
                interleave(e, m, reads2(15), per=1)
                continue
            nb = g("nb0", 12) if c == 0 else g("nb2", 8)
            interleave(e, m[:nb], r0[12:] if c == 0 else [], per=2)
            e.wait_lgkm(0); e.barrier()
            if c == 7 or (g("fine") == 2 and c in (1, 3, 5, 9, 11, 13)): fs()
            interleave(e, m[nb:], reads2(c + 1), per=None if 32 - nb < 24 else 1)
        prog = []
        for u in range(4):
            if u == 3 and d2: prog += sum([pair(15, 3 - t, 3, 0) + pair(14, 3 - t, 3, 0) for t in range(4)], [])
            else: prog += sum([pair(15, t if u % 2 == 0 else 3 - t, u, t & 1) for t in range(4)], [])
            if u < 3:
                for tp in ((0, 1) if u % 2 == 0 else (1, 0)):
                    a = ac2(2*tp, u)
                    prog += pack4(a, ac2(2*tp+1, u))
                    prog.append(f"buffer_store_dwordx4 {V(a,4)}, v{LO}, {S(SWS,4)}, s{14+u} offen offset:{tp*1024} {st_p}")
    else:
        AF2, BF2, AC2 = 24, 56, 112
        def reads2(c, kk, st):
            slot = WO_SLOTS[c % NW]
            base = RA if slot < 4 else RA2
            ra = [f"ds_read_b64_tr_b16 {V(AF2 + st*16 + t*4 + j*2, 2)}, v{base+t} offset:{(slot & 3)*16384 + kk*8192 + j*4096}" for t in range(4) for j in range(2)]
            rb = [f"ds_read_b128 {V(BF2 + st*16 + u*4, 4)}, v{ORA+u} offset:{O_SLOTS[c % NO]*16384 - L_O + kk*8192}" for u in range(4)]
            return ra[:2] + rb + ra[2:]
        def ac2(t, u): return AC2 + (t*4+u)*4
        def mf2(st, t, u, first=False):
            return f"{MF} {V(ac2(t,u),4)}, {V(AF2 + st*16 + t*4, 4)}, {V(BF2 + st*16 + u*4, 4)}, {'0' if first else V(ac2(t,u),4)}"
        def mfmas2(st, first):
            return [mf2(st, t, u if t % 2 == 0 else 3 - u, first) for t in range(4) for u in range(4)]
        e.barrier()
        fs()
        put(e, reads2(0, 0, 0))
        for c in range(15):
            interleave(e, mfmas2(0, c == 0), reads2(c, 1, 1), per=1)
            e.wait_lgkm(0); e.barrier()
            if c == 7 or (g("fine") == 2 and c in (1, 3, 5, 9, 11, 13)): fs()
            interleave(e, mfmas2(1, False), reads2(c + 1, 0, 0), per=1)
        prog = reads2(15, 1, 1)
        for u in range(4):
            prog += [mf2(st, t, u) for st in range(2) for t in range(4)]
            if u < 3:
                for tp in range(2):
                    a = ac2(2*tp, u)
                    prog += pack4(a, ac2(2*tp+1, u))
                    prog.append(f"buffer_store_dwordx4 {V(a,4)}, v{LO}, {S(SWS,4)}, s{14+u} offen offset:{tp*1024} {st_p}")
    order, tm = schedule(prog, verbose=g("verbose"))
    put(e, order)
    fs()
    poll = f"buffer_load_dword v7, v20, {S(SWS,4)}, s11 offen sc1"
    e("s_mov_b64 exec, s[20:21]")
    if g("early2", 0): e(poll)
    e.wait_all(lgkm=False)
    e(f"buffer_store_dword v6, v23, {S(SWS,4)}, s33 offen sc1")
    if g("pdelay2"): e(f"s_sleep {g('pdelay2')}")
    if not g("early2", 0): e(poll)
    fs()
    spin(e, "f2", poll, "v_cmp_ne_u32 vcc, 1, v7", g("psleep2", 0))
    e("s_mov_b64 exec, -1")
    fs()
    PK = 24
    for i in range(3):
        for tp in range(2):
            e(f"buffer_load_dwordx4 {V(PK + (i*2+tp)*4, 4)}, v{LO}, {S(SWS,4)}, s{17+i} offen offset:{tp*1024} {ld_p}")
    e("s_mov_b32 s86, 0xffff0000")
    if g("otr", 1):
        e("s_lshl_b32 s87, s37, 12"); e(f"s_add_u32 s89, s88, {8*2560}")
        e("v_mul_u32_u24 v8, 144, v4"); e("v_lshl_add_u32 v8, v3, 3, v8"); e("v_add_u32 v8, s87, v8")
        e("v_lshrrev_b32 v10, 3, v0"); e("v_and_b32 v11, 7, v0"); e("v_lshlrev_b32 v11, 4, v11")
        e("v_mul_u32_u24 v9, 144, v10"); e("v_add3_u32 v9, v9, v11, s87")
        e("v_mul_u32_u24 v10, 2560, v10"); e("v_add_u32 v10, v10, v11")
    for i in range(3):
        for tp in range(2):
            for k in range(4):
                src = PK + (i*2+tp)*4 + k; d = ac2(2*tp + (k >> 1), 3) + (k & 1)*2
                e(f"v_lshlrev_b32 v{56 + 2*(k&1)}, 16, v{src}"); e(f"v_and_b32 v{57 + 2*(k&1)}, s86, v{src}")
                e(f"v_pk_add_f32 {V(d,2)}, {V(d,2)}, {V(56 + 2*(k&1), 2)}")
                if i == 2 and k & 1:
                    t = 2*tp + (k >> 1); a = ac2(t, 3)
                    e(f"v_cvt_pk_bf16_f32 v{80+2*t}, v{a}, v{a+1}"); e(f"v_cvt_pk_bf16_f32 v{81+2*t}, v{a+2}, v{a+3}")
                    if g("otr", 1): e(f"ds_write_b64 v8, {V(80+2*t,2)} offset:{t*32}")
                    else: e(f"buffer_store_dwordx2 {V(80+2*t,2)}, v21, {S(SOUT,4)}, s88 offen offset:{t*32} {st_out}")
    if g("otr", 1):
        assert 0 not in (WO_SLOTS[15 % NW], WO_SLOTS[14 % NW])
        for i in range(2): e(f"ds_read_b128 {V(24+4*i,4)}, v9 offset:{i*8*144}")
        e(f"buffer_store_dwordx4 v[24:27], v10, {S(SOUT,4)}, s88 offen {st_out}")
        e(f"buffer_store_dwordx4 v[28:31], v10, {S(SOUT,4)}, s89 offen {st_out}")
    e.label("L_cdone")
    fs.out(SWS)
    e.label("L_end")
    e("s_endpgm")
    return e

def build(opt, fn):
    K = NAME + "_kernel"
    e = kernel(opt)
    e.lines, fixed, missed = align(e.lines, lambda t: header([(None, 256, 512, 163840)]) + kstart(K) + t)
    if opt.get("verbose"): print("aligned", fixed, "missed", missed)
    txt = header([(None, 256, 512, 163840)]) + kstart(K) + e.text() + RODATA + kdesc(K, 256, 102, 256)
    open(fn, "w").write(txt)
    return e

if __name__ == "__main__":
    e = build({"verbose": len(sys.argv) > 1}, "v8.s")
    print("nops", e.nops, "instrs", sum(e.count.values()))
```
